```python
import torch

def _softmax(x, axis=-1):
    return torch.softmax(x, dim=axis)

def _gelu(x):
    return torch.nn.functional.gelu(x, approximate='tanh')

def _silu(x):
    return torch.nn.functional.silu(x)

def _sigmoid(x):
    return torch.sigmoid(x)

def _layernorm(x, axis=-1, eps=1e-05):
    m = x.mean(dim=axis, keepdim=True)
    v = x.var(dim=axis, keepdim=True, unbiased=False)
    return (x - m) / torch.sqrt(v + eps)

def _scatter_add(tgt, idx, src, axis=0):
    return tgt.clone().index_add_(axis, idx, src)

def _segment_sum(src, seg, n):
    out = torch.zeros((n,) + src.shape[1:], dtype=src.dtype)
    return out.index_add_(0, seg, src)

def _pad(x, pw):
    flat = tuple((v for pair in reversed(pw) for v in pair))
    return torch.nn.functional.pad(x, flat)
kernel_name = 'gather_scatter__tensor_product_equiv_equiformer__graph'

def setup_inputs():

    _w = lambda a: (lambda t: t.to(torch.bfloat16) if t.is_floating_point() else t)(torch.as_tensor(a))
    N, deg, C, De = (10000, 32, 128, max(0, 1))
    E = N * deg
    src = (lambda lo, hi, *s: torch.randint(lo, hi, s))(0, N, E).to(torch.int64)
    dst = (lambda lo, hi, *s: torch.randint(lo, hi, s))(0, N, E).to(torch.int64)
    rvec = (lambda *s: torch.randn(*s, dtype=torch.bfloat16) * 0.05)(E, 3).to(float)
    rn = (torch.linalg.norm(rvec, dim=-1, keepdim=True) + 1e-06).to(float)
    rhat = (rvec / rn).to(float)
    eps = torch.zeros((3, 3, 3), dtype=float)
    eps[0, 1, 2] = eps[1, 2, 0] = eps[2, 0, 1] = 1.0
    eps[0, 2, 1] = eps[2, 1, 0] = eps[1, 0, 2] = -1.0
    return {'x': _w((lambda *s: torch.randn(*s, dtype=torch.bfloat16) * 0.4)(N, 4 * C).to(float)), 'rhat': _w(rhat), 'e_attr': _w((lambda *s: torch.randn(*s, dtype=torch.bfloat16) * 0.4)(E, De).to(float)), 'src': _w(src), 'dst': _w(dst), 'w_rad': _w((lambda *s: torch.randn(*s, dtype=torch.bfloat16) * 0.4)(De, 5 * C).to(float)), 'w_si0': _w((lambda *s: torch.randn(*s, dtype=torch.bfloat16) * 0.4)(2 * C, C).to(float)), 'w_si1': _w((lambda *s: torch.randn(*s, dtype=torch.bfloat16) * 0.05)(3 * C, C).to(float)), 'cg_eps': _w(eps)}

def reference(x, rhat, e_attr, src, dst, w_rad, w_si0, w_si1, cg_eps):
    N = x.shape[0]
    C = w_si0.shape[1]
    E = rhat.shape[0]
    x0 = x[:, :C].clone()
    x1 = x[:, C:].reshape(N, 3, C)
    R = (e_attr @ w_rad).reshape(E, 5, C)
    f0 = x0[src]
    f1 = x1[src]
    Y1 = rhat
    p00_0 = f0 * R[:, 0, :]
    p11_0 = torch.einsum('ejc,ej->ec', f1, Y1) * R[:, 1, :]
    p01_1 = torch.einsum('ec,ej->ejc', f0, Y1) * R[:, 2, :][:, None, :]
    p10_1 = f1 * R[:, 3, :][:, None, :]
    p11_1 = torch.einsum('ijk,ekc,ej->eic', cg_eps, f1, Y1) * R[:, 4, :][:, None, :]
    m0 = torch.concatenate([p00_0, p11_0], axis=-1) @ w_si0
    m1 = torch.einsum('ejp,pc->ejc', torch.concatenate([p01_1, p10_1, p11_1], axis=-1), w_si1)
    agg0 = _segment_sum(m0, dst, N)
    agg1 = _segment_sum(m1.reshape(E, 3 * C), dst, N).reshape(N, 3, C)
    gate = _sigmoid(agg0)
    out1 = agg1 * gate[:, None, :]
    return torch.concatenate([agg0, out1.reshape(N, 3 * C)], axis=-1)
```

```python
import sys
NAME = "gather_scatter__tensor_product_equiv_equiformer__graph"
OPT = dict(a.split('=') for a in sys.argv[2:]) if len(sys.argv) > 2 else {}
def opt(k, d): return type(d)(OPT.get(k, d))

N = 10000; E = 320000
NB = 250; NPB = 40
G = 250; CH = 1280
WS_REC = 0
WS_TAB = 4 << 20
WS_WF = 5 << 20
U = 10
OOB = 0x7F000000
L_OFFS = 0; OFFS_STRIDE = 288
L_COEF = 12288; COEF_STRIDE = 512
L_FLAG = 32768
L_F = 33792
L_CNT = L_F
L_ST = L_F + 2048
L_F0 = L_F; L_F1 = L_F + 3 * 8192
LDS_MAIN = L_F + 122880

out = []
def e(s): out.append("    " + s)
def lab(s): out.append(s + ":")
def c(s): out.append("    ; " + s)

def header():
    ref = open("cdna_kernels/%s.s.ref" % NAME).read().split("\n")
    for l in ref:
        if l.startswith("; Override") : break
        out.append(l)
    out.append("; @launch kernel=gstp_bin_kernel grid=(%d,1,1) block=(384,1,1) lds=6144" % G)
    out.append("; @launch kernel=gstp_main_kernel grid=(%d,1,1) block=(512,1,1) lds=%d" % (NB, LDS_MAIN))
    out.append('.amdgcn_target "amdgcn-amd-amdhsa--gfx950"')
    out.append(".text")

def kstart(name):
    out.append(".globl %s" % name)
    out.append(".p2align 8")
    out.append(".type %s,@function" % name)
    lab(name)

def kdesc(name, vgpr, sgpr):
    out.append(".p2align 6")
    out.append(".amdhsa_kernel %s" % name)
    out.append("  .amdhsa_next_free_vgpr %d" % vgpr)
    out.append("  .amdhsa_next_free_sgpr %d" % sgpr)
    out.append("  .amdhsa_accum_offset %d" % ((vgpr + 3) // 4 * 4))
    out.append("  .amdhsa_group_segment_fixed_size 0")
    out.append("  .amdhsa_kernarg_size 96")
    out.append("  .amdhsa_user_sgpr_count 2")
    out.append("  .amdhsa_user_sgpr_kernarg_segment_ptr 1")
    out.append("  .amdhsa_system_sgpr_workgroup_id_x 1")
    out.append(".end_amdhsa_kernel")

def wave_scan(v):
    for sh in (1, 2, 4, 8):
        e("s_nop 1")
        e("v_add_u32_dpp %s, %s, %s row_shr:%d row_mask:0xf bank_mask:0xf bound_ctrl:0" % (v, v, v, sh))
    e("s_nop 1")
    e("v_add_u32_dpp %s, %s, %s row_bcast:15 row_mask:0xa bank_mask:0xf" % (v, v, v))
    e("s_nop 1")
    e("v_add_u32_dpp %s, %s, %s row_bcast:31 row_mask:0xc bank_mask:0xf" % (v, v, v))

def k1():
    kstart("gstp_bin_kernel")
    e("s_cmp_ge_u32 s2, %d" % G)
    e("s_cbranch_scc1 L1_end")
    e("s_load_dwordx16 s[4:19], s[0:1], 0")
    e("s_load_dwordx2 s[20:21], s[0:1], 88")
    e("v_lshrrev_b32 v4, 6, v0")
    e("s_nop 0")
    e("v_readfirstlane_b32 s3, v4")
    e("s_cmp_eq_u32 s3, 5")
    e("s_cbranch_scc1 L1_help")
    e("s_mul_i32 s22, s2, %d" % (CH * 4))
    e("s_mul_i32 s23, s2, %d" % (CH * 6))
    e("s_mul_i32 s24, s2, %d" % (CH * 2))
    e("v_lshl_add_u32 v1, v0, 4, s22")
    e("v_mul_u32_u24 v2, 24, v0")
    e("v_add_u32 v2, s23, v2")
    e("v_lshl_add_u32 v3, v0, 3, s24")
    e("v_lshlrev_b32 v4, 2, v0")
    e("v_mov_b32 v5, 0")
    e("ds_write_b32 v4, v5")
    e("s_waitcnt lgkmcnt(0)")
    e("global_load_dwordx4 v[8:11], v1, s[12:13]")
    e("global_load_dwordx4 v[12:15], v1, s[10:11]")
    e("global_load_dwordx4 v[16:19], v2, s[6:7]")
    e("global_load_dwordx2 v[20:21], v2, s[6:7] offset:16")
    e("global_load_dwordx2 v[22:23], v3, s[8:9]")
    e("v_mov_b32 v5, 1")
    e("s_barrier")
    e("s_waitcnt vmcnt(4)")
    for k in range(4):
        e("v_mul_u32_u24 v%d, 0xcccd, v%d" % (24 + k, 8 + k))
        e("v_lshrrev_b32 v%d, 21, v%d" % (24 + k, 24 + k))
        e("v_mul_u32_u24 v6, 40, v%d" % (24 + k))
        e("v_sub_u32 v%d, v%d, v6" % (8 + k, 8 + k))
        e("v_lshlrev_b32 v%d, 2, v%d" % (24 + k, 24 + k))
        e("ds_add_rtn_u32 v%d, v%d, v5" % (28 + k, 24 + k))
    e("s_waitcnt vmcnt(3)")
    for k in range(4):
        e("v_mul_u32_u24 v6, 39, v%d" % (12 + k))
        e("v_lshrrev_b32 v6, 16, v6")
        e("v_lshl_add_u32 v6, v%d, 3, v6" % (8 + k))
        e("v_lshl_or_b32 v%d, v%d, 10, v6" % (34 + 4 * k, 12 + k))
    e("s_waitcnt vmcnt(0)")
    def unpack(dst, idx, base):
        r = base + idx // 2
        if idx % 2 == 0: e("v_lshlrev_b32 %s, 16, v%d" % (dst, r))
        else: e("v_and_b32 %s, 0xffff0000, v%d" % (dst, r))
    for k in range(4):
        unpack("v48", k, 22)
        for j in range(3):
            unpack("v%d" % (49 + j), 3 * k + j, 16)
        for j in range(3):
            e("v_mul_f32 v%d, v48, v%d" % (49 + j, 49 + j))
        e("v_cvt_pk_bf16_f32 v%d, v48, v49" % (32 + 4 * k))
        e("v_cvt_pk_bf16_f32 v%d, v50, v51" % (33 + 4 * k))
    e("s_waitcnt lgkmcnt(0)")
    e("s_barrier")
    e("v_and_b32 v4, 63, v0")
    e("v_lshlrev_b32 v4, 4, v4")
    e("ds_read_b128 v[52:55], v4")
    e("s_add_u32 s25, s3, 1")
    e("s_lshl_b32 s25, s25, 10")
    e("s_waitcnt lgkmcnt(0)")
    e("v_add_u32 v57, v52, v53")
    e("v_add_u32 v58, v57, v54")
    e("v_add_u32 v59, v58, v55")
    e("v_mov_b32 v60, v59")
    wave_scan("v60")
    e("v_sub_u32 v60, v60, v59")
    e("v_add_u32 v61, v60, v52")
    e("v_add_u32 v62, v60, v57")
    e("v_add_u32 v63, v60, v58")
    e("v_add_u32 v7, s25, v4")
    e("ds_write_b128 v7, v[60:63]")
    for k in range(4):
        e("v_add_u32 v%d, s25, v%d" % (24 + k, 24 + k))
    e("s_waitcnt lgkmcnt(0)")
    for k in range(4):
        e("ds_read_b32 v%d, v%d" % (24 + k, 24 + k))
    e("s_cmp_lg_u32 s3, 0")
    e("s_cbranch_scc1 L1_notab")
    for k in range(4):
        e("v_lshl_or_b32 v%d, v%d, 16, v%d" % (60 + k, 52 + k, 60 + k))
    e("s_lshl_b32 s26, s2, 10")
    e("s_add_u32 s26, s26, %d" % WS_TAB)
    e("v_add_u32 v7, s26, v4")
    e("global_store_dwordx4 v7, v[60:63], s[20:21]")
    lab("L1_notab")
    e("s_mul_i32 s26, s2, %d" % (CH * 12))
    e("s_add_u32 s26, s26, %d" % WS_REC)
    e("v_mov_b32 v6, s26")
    e("s_waitcnt lgkmcnt(0)")
    for k in range(4):
        e("v_add_u32 v%d, v%d, v%d" % (24 + k, 24 + k, 28 + k))
        e("v_mad_u32_u24 v%d, v%d, 12, v6" % (24 + k, 24 + k))
        e("global_store_dwordx3 v%d, v[%d:%d], s[20:21]" % (24 + k, 32 + 4 * k, 34 + 4 * k))
    e("s_endpgm")
    lab("L1_help")
    e("v_and_b32 v1, 63, v0")
    e("s_waitcnt lgkmcnt(0)")
    e("s_cmp_ge_u32 s2, 160")
    e("s_cbranch_scc1 L1_now")
    e("s_mul_i32 s22, s2, 3277")
    e("s_lshr_b32 s22, s22, 16")
    e("s_mul_i32 s23, s22, 20")
    e("s_sub_u32 s23, s2, s23")
    e("s_cmp_lt_u32 s23, 8")
    e("s_cselect_b64 s[24:25], s[16:17], s[18:19]")
    e("s_cselect_b32 s26, 0, 8")
    e("s_sub_u32 s26, s23, s26")
    e("s_lshl_b32 s26, s26, 13")
    e("s_lshl_b32 s27, s22, 5")
    e("s_add_u32 s26, s26, s27")
    e("v_lshrrev_b32 v2, 4, v1")
    e("v_and_b32 v3, 15, v1")
    e("v_lshlrev_b32 v4, 11, v2")
    e("v_lshl_add_u32 v4, v3, 1, v4")
    e("v_add_u32 v4, s26, v4")
    e("s_lshl_b32 s27, s23, 6")
    e("v_lshl_add_u32 v5, v2, 4, s27")
    e("global_load_dwordx4 v[16:19], v5, s[14:15]")
    for i in range(8):
        e("global_load_ushort v%d, v4, s[24:25] offset:%d" % (8 + i, 256 * i))
    lab("L1_now")
    e("s_barrier")
    e("s_barrier")
    if opt("prefetch", 1):
        e("s_mul_i32 s28, s2, 40960")
        e("v_lshl_add_u32 v6, v1, 4, s28")
        for i in range(10):
            for j in range(4):
                e("global_load_dwordx4 v[40:43], v6, s[4:5] offset:%d" % (1024 * j))
            if i < 9: e("v_add_u32 v6, 4096, v6")
        nx = 40
    else:
        nx = 0
    e("s_cmp_ge_u32 s2, 160")
    e("s_cbranch_scc1 L1_end")
    e("s_waitcnt vmcnt(%d)" % nx)
    for i in range(8):
        e("v_lshlrev_b32 v%d, 16, v%d" % (8 + i, 8 + i))
        unpack("v20", i, 16)
        e("v_mul_f32 v%d, v20, v%d" % (8 + i, 8 + i))
    for i in range(4):
        e("v_cvt_pk_bf16_f32 v%d, v%d, v%d" % (24 + i, 8 + 2 * i, 9 + 2 * i))
    e("s_lshl_b32 s26, s2, 10")
    e("s_add_u32 s26, s26, %d" % WS_WF)
    e("v_lshl_add_u32 v7, v1, 4, s26")
    e("global_store_dwordx4 v7, v[24:27], s[20:21]")
    lab("L1_end")
    e("s_endpgm")

ACC = 0; LB = [160, 192]; BT = [224, 228]; AF = 232; CR = 236; OR_ = 240; AD = 242
SEL01 = 244; SEL23 = 245; LC = 246; VOA = 247; VCA = 248; RB = 249; REM = 250; PEND = 251; TID = 252
def rec(i): return 160 + 4 * i
def kad(i): return 200 + i
T0 = 210
MSK = 20
def msk(i): return "s[%d:%d]" % (MSK + 2 * i, MSK + 2 * i + 1)

def k2():
    kstart("gstp_main_kernel")
    e("s_cmp_ge_u32 s2, %d" % NB)
    e("s_cbranch_scc1 L2_end")
    e("s_load_dwordx2 s[8:9], s[0:1], 0")
    e("s_load_dwordx2 s[12:13], s[0:1], 72")
    e("s_load_dwordx2 s[14:15], s[0:1], 88")
    e("v_mov_b32 v%d, v0" % TID)
    e("v_lshrrev_b32 v%d, 6, v0" % T0)
    e("s_and_b32 s4, s2, 7")
    e("s_lshr_b32 s5, s2, 3")
    e("s_mul_i32 s16, s4, 31")
    e("s_min_u32 s4, s4, 2")
    e("s_add_u32 s16, s16, s4")
    e("s_add_u32 s16, s16, s5")
    e("v_readfirstlane_b32 s17, v%d" % T0)
    e("v_lshrrev_b32 v%d, 1, v0" % (T0 + 1))
    e("v_min_u32 v%d, %d, v%d" % (T0 + 1, G - 1, T0 + 1))
    e("s_lshl_b32 s4, s16, 2")
    e("s_add_u32 s4, s4, %d" % WS_TAB)
    e("v_lshl_add_u32 v%d, v%d, 10, s4" % (T0 + 2, T0 + 1))
    e("s_waitcnt lgkmcnt(0)")
    e("global_load_dword v%d, v%d, s[14:15]" % (T0 + 3, T0 + 2))
    e("s_mov_b32 s10, %d" % (N * 1024))
    e("s_mov_b32 s11, 0x20000")
    e("s_mov_b32 s18, 0x05040100")
    e("s_mov_b32 s19, 0x07060302")
    e("v_and_b32 v%d, 15, v0" % LC)
    e("v_lshlrev_b32 v%d, 4, v%d" % (LC, LC))
    Z = 0x0c0c
    C = [0x0100, 0x0302, 0x0504, 0x0706]
    rows = {0: (C[0], Z, Z, Z), 1: (Z, C[1], C[2], C[3]),
            4: (C[1], Z, Z, Z), 5: (Z, C[0], Z, Z), 6: (Z, Z, Z, C[2]), 7: (Z, Z, C[3], Z),
            8: (C[2], Z, Z, Z), 9: (Z, Z, C[0], Z), 10: (Z, C[3], Z, Z), 11: (Z, Z, Z, C[1]),
            12: (C[3], Z, Z, Z), 13: (Z, Z, Z, C[0]), 14: (Z, Z, C[1], Z), 15: (Z, C[2], Z, Z)}
    e("v_mov_b32 v%d, 0x0c0c0c0c" % SEL01)
    e("v_mov_b32 v%d, 0x0c0c0c0c" % SEL23)
    e("s_mov_b32 s6, 0x00010001")
    e("s_mov_b32 s7, 0x00010001")
    for m, q in rows.items():
        e("s_lshl_b64 exec, s[6:7], %d" % m)
        lo = q[0] | q[1] << 16; hi = q[2] | q[3] << 16
        if lo != 0x0c0c0c0c: e("v_mov_b32 v%d, 0x%08x" % (SEL01, lo))
        if hi != 0x0c0c0c0c: e("v_mov_b32 v%d, 0x%08x" % (SEL23, hi))
    e("s_mov_b64 exec, -1")
    for r in range(160):
        e("v_mov_b32 v%d, 0" % r)
    e("s_mul_i32 s42, s17, 1280")
    e("s_add_u32 s42, s42, %d" % L_ST)
    e("s_waitcnt vmcnt(0)")
    t = T0
    e("v_and_b32 v%d, 1, v%d" % (t + 4, TID))
    e("v_and_b32 v%d, 0xffff, v%d" % (t + 5, t + 3))
    e("v_lshrrev_b32 v%d, 16, v%d" % (REM, t + 3))
    e("v_cmp_gt_u32 vcc, %d, v%d" % (2 * G, TID))
    e("v_mul_u32_u24 v%d, %d, v%d" % (t + 6, CH, t + 1))
    e("v_cndmask_b32 v%d, 0, v%d, vcc" % (REM, REM))
    e("v_add3_u32 v%d, v%d, v%d, v%d" % (t + 6, t + 6, t + 5, t + 4))
    e("v_mul_u32_u24 v%d, 12, v%d" % (RB, t + 6))
    if WS_REC: e("v_add_u32 v%d, %d, v%d" % (RB, WS_REC, RB))
    e("v_sub_u32 v%d, v%d, v%d" % (REM, REM, t + 4))
    lab("L2_batch")
    e("v_add_u32 v%d, 1, v%d" % (t, REM))
    e("v_ashrrev_i32 v%d, 1, v%d" % (t, t))
    e("v_max_i32 v%d, 0, v%d" % (t, t))
    e("v_min_i32 v%d, %d, v%d" % (t, U, t))
    e("v_lshlrev_b32 v%d, v%d, 1" % (PEND, t) if False else "v_mov_b32 v%d, 1" % (t + 1))
    e("v_lshlrev_b32 v%d, v%d, v%d" % (PEND, t, t + 1))
    e("v_add_u32 v%d, -1, v%d" % (PEND, PEND))
    lab("L2_pass")
    for i in range(U):
        e("v_and_b32 v%d, %d, v%d" % (t + (i & 1), 1 << i, PEND))
        e("v_cmp_ne_u32 %s, 0, v%d" % (msk(i), t + (i & 1)))
    for i in range(U):
        e("s_mov_b64 exec, %s" % msk(i))
        e("global_load_dwordx3 v[%d:%d], v%d, s[14:15] offset:%d" % (rec(i), rec(i) + 2, RB, 24 * i))
    e("s_mov_b64 exec, -1")
    z = T0 + 2
    for k in range(4): e("v_mov_b32 v%d, 0" % (z + k))
    for k in range(4): e("v_mov_b32 v%d, 0x%x" % (z + 4 + k, OOB))
    e("v_lshlrev_b32 v%d, 4, v%d" % (t, TID))
    e("v_lshlrev_b32 v%d, 3, v%d" % (t + 1, TID))
    e("ds_write_b128 v%d, v[%d:%d] offset:%d" % (t, z + 4, z + 7, L_OFFS))
    e("ds_write_b64 v%d, v[%d:%d] offset:%d" % (t + 1, z + 4, z + 5, L_OFFS + 8192))
    e("ds_write_b128 v%d, v[%d:%d] offset:%d" % (t, z, z + 3, L_COEF))
    e("ds_write_b128 v%d, v[%d:%d] offset:%d" % (t, z, z + 3, L_COEF + 8192))
    e("ds_write_b64 v%d, v[%d:%d] offset:%d" % (t + 1, z, z + 1, L_COEF + 16384))
    e("v_lshlrev_b32 v%d, 2, v%d" % (t + 10, TID))
    e("ds_write_b32 v%d, v%d offset:%d" % (t + 10, z, L_CNT))
    e("s_mov_b64 exec, 1")
    e("ds_write_b64 v%d, v[%d:%d] offset:%d" % (z, z, z + 1, L_FLAG))
    e("s_mov_b64 exec, -1")
    one = T0 + 11
    e("v_mov_b32 v%d, 1" % one)
    e("s_waitcnt lgkmcnt(0)")
    e("s_barrier")
    for i in range(U):
        e("s_waitcnt vmcnt(%d)" % (U - 1 - i))
        e("s_mov_b64 exec, %s" % msk(i))
        e("v_and_b32 v%d, 0x3ff, v%d" % (kad(i), rec(i) + 2))
        e("v_lshlrev_b32 v%d, 2, v%d" % (kad(i), kad(i)))
        e("ds_add_rtn_u32 v%d, v%d, v%d offset:%d" % (rec(i) + 3, kad(i), one, L_CNT))
    e("s_mov_b64 exec, -1")
    e("s_waitcnt lgkmcnt(0)")
    e("s_barrier")
    cc = 212
    e("v_and_b32 v%d, 63, v%d" % (t, TID))
    e("v_lshlrev_b32 v%d, 5, v%d" % (t, t))
    e("v_cmp_gt_u32 vcc, %d, v%d" % (NPB * 32, t))
    e("s_and_b64 exec, exec, vcc")
    e("ds_read_b128 v[%d:%d], v%d offset:%d" % (cc, cc + 3, t, L_CNT))
    e("ds_read_b64 v[%d:%d], v%d offset:%d" % (cc + 4, cc + 5, t, L_CNT + 16))
    p = 220
    f = 228
    e("s_waitcnt lgkmcnt(0)")
    e("v_mov_b32 v%d, v%d" % (p + 1, cc))
    for k in range(2, 7):
        e("v_add_u32 v%d, v%d, v%d" % (p + k, p + k - 1, cc + k - 1))
    e("v_mov_b32 v%d, 0" % f)
    e("v_max_u32 v%d, 8, v%d" % (f + 1, cc))
    for k in range(2, 6):
        e("v_add_u32 v%d, v%d, v%d" % (f + k, f + k - 1, cc + k - 1))
        e("v_max_u32 v%d, %d, v%d" % (f + k, 8 * k, f + k))
    e("v_cmp_lt_u32 vcc, 48, v%d" % (p + 6))
    e("v_mov_b32 v%d, 48" % (p + 7))
    e("v_cndmask_b32 v%d, v%d, 64, vcc" % (p + 7, p + 7) if False else "v_mov_b32 v%d, 64" % p)
    e("v_cndmask_b32 v%d, v%d, v%d, vcc" % (p + 7, p + 7, p))
    e("v_sub_u32 v%d, v%d, v%d" % (p + 7, p + 7, p + 6))
    e("v_max_i32 v%d, 0, v%d" % (p + 7, p + 7))
    for k in range(1, 6):
        e("v_add_u32 v%d, v%d, v%d" % (p + k, p + k, p + 7))
        e("v_min_u32 v%d, v%d, v%d" % (f + k, f + k, p + k))
    e("v_add_u32 v%d, s42, v%d" % (t, t))
    e("ds_write_b128 v%d, v[%d:%d]" % (t, f, f + 3))
    e("ds_write_b64 v%d, v[%d:%d] offset:16" % (t, f + 4, f + 5))
    e("v_add_u32 v%d, v%d, v%d" % (p, f + 5, cc + 5))
    e("v_min_u32 v%d, 64, v%d" % (p, p))
    e("v_add_u32 v%d, 15, v%d" % (p, p))
    e("v_lshrrev_b32 v%d, 4, v%d" % (p, p))
    e("s_mov_b64 exec, -1")
    e("s_mul_i32 s4, s17, 5")
    e("s_mov_b32 s40, 0")
    for u in range(5):
        e("v_readlane_b32 s5, v%d, s4" % p)
        e("s_add_u32 s4, s4, 1")
        e("s_nop 0")
        e("s_max_u32 s40, s40, s5")
    e("s_waitcnt lgkmcnt(0)")
    st = 228
    for i in range(U):
        e("s_mov_b64 exec, %s" % msk(i))
        e("v_add_u32 v%d, s42, v%d" % (st + i, kad(i)))
        e("ds_read_b32 v%d, v%d" % (st + i, st + i))
    e("s_movk_i32 s4, %d" % OFFS_STRIDE)
    for i in range(U):
        sl = rec(i) + 3
        a = T0 + 4 * (i & 1)
        e("s_mov_b64 exec, %s" % msk(i))
        e("s_waitcnt lgkmcnt(%d)" % min(15, (U - 1 - i) + 2 * i) if False else "s_waitcnt lgkmcnt(0)" if i == 0 else "s_nop 0")
        e("v_add_u32 v%d, v%d, v%d" % (sl, sl, st + i))
        e("v_cmp_gt_u32 vcc, 64, v%d" % sl)
        e("s_and_b64 exec, exec, vcc")
        if opt("permslot", 1):
            e("v_and_b32 v%d, 3, v%d" % (a, sl))
            e("v_bfe_u32 v%d, v%d, 2, 1" % (a + 1, sl))
            e("v_lshl_or_b32 v%d, v%d, 1, v%d" % (a, a, a + 1))
            e("v_and_or_b32 v%d, v%d, 56, v%d" % (sl, sl, a))
        e("v_lshlrev_b32 v%d, 2, v%d" % (sl, sl))
        e("v_lshrrev_b32 v%d, 5, v%d" % (a, kad(i)))
        e("v_mad_u32_u24 v%d, v%d, s4, v%d" % (a + 1, a, sl))
        e("v_lshl_add_u32 v%d, v%d, 8, v%d" % (a + 2, a, sl))
        e("v_lshlrev_b32 v%d, 1, v%d" % (a + 2, a + 2))
        e("v_and_b32 v%d, 0xfffffc00, v%d" % (rec(i) + 2, rec(i) + 2))
        e("ds_write_b32 v%d, v%d offset:%d" % (a + 1, rec(i) + 2, L_OFFS))
        e("ds_write_b64 v%d, v[%d:%d] offset:%d" % (a + 2, rec(i), rec(i) + 1, L_COEF))
        e("v_and_b32 v%d, 0x%x, v%d" % (PEND, 0xffffffff ^ (1 << i), PEND))
    e("s_mov_b64 exec, -1")
    e("v_mov_b32 v%d, 0" % t)
    e("v_mov_b32 v%d, 1" % (t + 1))
    e("v_cmp_ne_u32 vcc, 0, v%d" % PEND)
    e("s_mov_b64 exec, vcc")
    e("ds_write_b32 v%d, v%d offset:%d" % (t, t + 1, L_FLAG))
    e("s_mov_b64 exec, -1")
    e("v_cmp_lt_i32 vcc, %d, v%d" % (2 * U, REM))
    e("s_mov_b64 exec, vcc")
    e("ds_write_b32 v%d, v%d offset:%d" % (t, t + 1, L_FLAG + 4))
    e("s_mov_b64 exec, -1")
    e("v_bfe_u32 v%d, v%d, 4, 2" % (VCA, TID))
    e("s_mul_i32 s4, s17, %d" % (5 * OFFS_STRIDE))
    e("s_mul_i32 s5, s17, %d" % (5 * COEF_STRIDE))
    e("v_lshl_add_u32 v%d, v%d, 3, s4" % (VOA, VCA))
    e("v_lshl_add_u32 v%d, v%d, 4, s5" % (VCA, VCA))
    e("s_waitcnt lgkmcnt(0)")
    e("s_barrier")
    e("ds_read_b64 v[%d:%d], v%d offset:%d" % (t + 2, t + 3, t, L_FLAG))
    def ooff(g): return L_OFFS + (g % 5) * OFFS_STRIDE + (g // 5) * 32
    def coff(g): return L_COEF + (g % 5) * COEF_STRIDE + (g // 5) * 64
    def loads(buf):
        for i in range(8):
            e("buffer_load_dwordx4 v[%d:%d], v%d, s[8:11], 0 offen offset:%d" %
              (LB[buf] + 4 * i, LB[buf] + 4 * i + 3, AD + (i >> 2), 256 * (i & 3)))
    e("ds_read_b64 v[%d:%d], v%d offset:%d" % (OR_, OR_ + 1, VOA, ooff(0)))
    e("ds_read_b64 v[%d:%d], v%d offset:%d" % (BT[0], BT[0] + 1, VOA, ooff(1)))
    e("s_waitcnt lgkmcnt(0)")
    e("v_readfirstlane_b32 s44, v%d" % (t + 2))
    e("v_readfirstlane_b32 s45, v%d" % (t + 3))
    e("s_cmp_eq_u32 s40, 0")
    e("s_cbranch_scc1 L2_swept")
    e("v_add_u32 v%d, v%d, v%d" % (AD, OR_, LC))
    e("v_add_u32 v%d, v%d, v%d" % (AD + 1, OR_ + 1, LC))
    loads(0)
    e("v_add_u32 v%d, v%d, v%d" % (AD, BT[0], LC))
    e("v_add_u32 v%d, v%d, v%d" % (AD + 1, BT[0] + 1, LC))
    loads(1)
    e("ds_read_b64 v[%d:%d], v%d offset:%d" % (OR_, OR_ + 1, VOA, ooff(2)))
    e("ds_read_b128 v[%d:%d], v%d offset:%d" % (CR, CR + 3, VCA, coff(0)))
    out.append(".p2align 6")
    lab("L2_sweep")
    for g in range(10):
        u = g % 5; buf = g & 1; L = LB[buf]
        e("s_waitcnt lgkmcnt(0)")
        e("v_perm_b32 v%d, v%d, v%d, v%d" % (AF + 0, CR + 1, CR + 0, SEL01))
        e("v_perm_b32 v%d, v%d, v%d, v%d" % (AF + 1, CR + 1, CR + 0, SEL23))
        e("v_perm_b32 v%d, v%d, v%d, v%d" % (AF + 2, CR + 3, CR + 2, SEL01))
        e("v_perm_b32 v%d, v%d, v%d, v%d" % (AF + 3, CR + 3, CR + 2, SEL23))
        e("v_add_u32 v%d, v%d, v%d" % (AD, OR_, LC))
        e("v_add_u32 v%d, v%d, v%d" % (AD + 1, OR_ + 1, LC))
        e("ds_read_b64 v[%d:%d], v%d offset:%d" % (OR_, OR_ + 1, VOA, ooff(g + 3)))
        e("ds_read_b128 v[%d:%d], v%d offset:%d" % (CR, CR + 3, VCA, coff(g + 1)))
        e("s_waitcnt vmcnt(8)")
        def P(j):
            d = j >> 1; s = "s19" if j & 1 else "s18"
            for tt in range(4):
                e("v_perm_b32 v%d, v%d, v%d, %s" % (BT[j & 1] + tt, L + 4 * (2 * tt + 1) + d, L + 4 * (2 * tt) + d, s))
        def M(j):
            a = ACC + 32 * u + 4 * j
            e("v_mfma_f32_16x16x32_bf16 v[%d:%d], v[%d:%d], v[%d:%d], v[%d:%d]" %
              (a, a + 3, AF, AF + 3, BT[j & 1], BT[j & 1] + 3, a, a + 3))
        P(0); P(1); M(0)
        for j in range(2, 8):
            P(j); M(j - 1)
        loads(buf)
        M(7)
    e("v_add_u32 v%d, 64, v%d" % (VOA, VOA))
    e("v_add_u32 v%d, 128, v%d" % (VCA, VCA))
    e("s_sub_u32 s40, s40, 1")
    e("s_cmp_lg_u32 s40, 0")
    e("s_cbranch_scc1 L2_sweep")
    lab("L2_swept")
    e("s_or_b32 s4, s44, s45")
    e("s_cmp_eq_u32 s4, 0")
    e("s_cbranch_scc1 L2_epi")
    e("s_waitcnt vmcnt(0) lgkmcnt(0)")
    e("s_barrier")
    e("s_cmp_lg_u32 s44, 0")
    e("s_cbranch_scc1 L2_pass")
    e("v_add_u32 v%d, %d, v%d" % (RB, 24 * U, RB))
    e("v_add_u32 v%d, %d, v%d" % (REM, -2 * U, REM))
    e("s_branch L2_batch")
    lab("L2_epi")
    WF = 160
    lane = 253
    e("s_waitcnt lgkmcnt(0)")
    e("v_and_b32 v%d, 63, v%d" % (lane, TID))
    e("v_lshlrev_b32 v%d, 4, v%d" % (254, lane))
    e("s_mul_i32 s4, s17, 20480")
    e("s_add_u32 s4, s4, %d" % (WS_WF + 4096))
    e("s_add_u32 s46, s14, s4")
    e("s_addc_u32 s47, s15, 0")
    for ks in range(20):
        if ks and ks % 8 == 0:
            e("s_add_u32 s46, s46, 8192")
            e("s_addc_u32 s47, s47, 0")
        e("global_load_dwordx4 v[%d:%d], v254, s[46:47] offset:%d" % (WF + 4 * ks, WF + 4 * ks + 3, (ks % 8) * 1024 - 4096))
    LA = 240; TS = 241; LBB = 242; SG = 243; SG2 = 244; ADR = 245; TMP = 246
    TA = [248, 164 if False else 248]
    e("v_lshrrev_b32 v%d, 4, v%d" % (TMP, lane))
    e("v_and_b32 v%d, 3, v%d" % (SG, lane))
    e("v_bfe_u32 v%d, v%d, 2, 2" % (ADR, lane))
    e("v_lshlrev_b32 v%d, 8, v%d" % (LA, SG))
    e("v_lshl_add_u32 v%d, v%d, 10, v%d" % (LA, ADR, LA))
    e("v_and_b32 v%d, 1, v%d" % (ADR, ADR))
    e("v_mul_u32_u24 v%d, 12, v%d" % (ADR, ADR))
    e("v_or_b32 v%d, v%d, v%d" % (SG, SG, ADR))
    e("v_lshlrev_b32 v%d, 4, v%d" % (SG, SG))
    e("v_mov_b32 v%d, v%d" % (SG2, SG))
    e("v_add_u32 v%d, %d, v%d" % (LBB, L_F0 + 16384, LA))
    e("v_mov_b32 v%d, 8192" % TS)
    e("v_mov_b32 v%d, v%d" % (TMP, LA))
    e("v_add_u32 v%d, %d, v%d" % (LA, L_F0, LA))
    for gp in range(1, 4):
        lo = 0xffff0000 if gp == 1 else 0
        hi = {1: 0, 2: 0x0000ffff, 3: 0xffff0000}[gp]
        e("s_mov_b32 exec_lo, 0x%x" % lo)
        e("s_mov_b32 exec_hi, 0x%x" % hi)
        e("v_add_u32 v%d, %d, v%d" % (LA, L_F1 + (gp - 1) * 24576, TMP))
        e("v_add_u32 v%d, %d, v%d" % (LBB, L_F1 + (7 if gp == 3 else 6) * 12288, TMP))
        e("v_mov_b32 v%d, 12288" % TS)
        if gp == 2: e("v_xor_b32 v%d, 128, v%d" % (SG2, SG2))
    e("s_mov_b64 exec, -1")
    e("s_mul_i32 s4, s17, 5")
    e("s_mov_b32 s48, 0xffff0000")
    e("s_mov_b32 s49, -1")
    TA0 = 248; TA1 = 252
    e("v_mov_b32 v%d, v%d" % (247, lane))
    lane = 247
    for u in range(5):
        A = ACC + 32 * u
        e("s_lshr_b32 s5, s4, 4")
        e("s_and_b32 s6, s4, 15")
        e("s_lshl_b32 s6, s6, 4")
        e("s_cmp_lt_u32 s4, 32")
        e("s_cselect_b64 s[50:51], -1, 0")
        e("v_mad_u32_u24 v%d, v%d, s5, v%d" % (ADR, TS, LA))
        e("v_cndmask_b32 v%d, v%d, v%d, s[50:51]" % (ADR, LBB, ADR))
        e("v_cndmask_b32 v%d, v%d, v%d, s[50:51]" % (TMP, SG2, SG))
        e("v_xor_b32 v%d, s6, v%d" % (TMP, TMP))
        e("v_add_u32 v%d, v%d, v%d" % (ADR, ADR, TMP))
        for dd in range(4):
            e("v_cvt_pk_bf16_f32 v%d, v%d, v%d" % (TA0 + dd, A + 8 * dd, A + 8 * dd + 4))
        e("ds_write_b128 v%d, v[%d:%d]" % (ADR, TA0, TA0 + 3))
        for dd in range(4):
            e("v_cvt_pk_bf16_f32 v%d, v%d, v%d" % (TA1 + dd, A + 8 * dd + 1, A + 8 * dd + 5))
        e("ds_write_b128 v%d, v[%d:%d] offset:4096" % (ADR, TA1, TA1 + 3))
        for j in range(8):
            e("v_sub_f32 v%d, v%d, v%d" % (A + 4 * j + 2, A + 4 * j + 2, A + 4 * j + 3))
        for dd in range(4):
            e("v_cvt_pk_bf16_f32 v%d, v%d, v%d" % (A + dd, A + 8 * dd + 2, A + 8 * dd + 6))
        e("s_mov_b64 exec, s[48:49]")
        e("ds_write_b128 v%d, v[%d:%d] offset:8192" % (ADR, A, A + 3))
        e("s_mov_b64 exec, -1")
        e("s_add_u32 s4, s4, 1")
    RA = [240, 241, 242, 243]
    e("s_waitcnt lgkmcnt(0)")
    e("v_lshrrev_b32 v%d, 4, v%d" % (TMP, lane))
    e("v_and_b32 v%d, 15, v%d" % (ADR, lane))
    e("v_xor_b32 v%d, v%d, v%d" % (RA[0], ADR, TMP))
    e("v_lshlrev_b32 v%d, 4, v%d" % (RA[0], RA[0]))
    e("v_lshl_add_u32 v%d, v%d, 8, v%d" % (RA[0], TMP, RA[0]))
    e("v_xor_b32 v%d, 0xc0, v%d" % (RA[1], RA[0]))
    e("v_add_u32 v%d, %d, v%d" % (RA[2], L_F + 65536, RA[0]))
    e("v_add_u32 v%d, %d, v%d" % (RA[3], L_F + 65536, RA[1]))
    e("v_add_u32 v%d, %d, v%d" % (RA[0], L_F, RA[0]))
    e("v_add_u32 v%d, %d, v%d" % (RA[1], L_F, RA[1]))
    VO = [248, 249, 250]; VOX = 251
    e("s_mul_i32 s4, s16, %d" % (NPB * 1024))
    e("s_lshl_b32 s5, s17, 5")
    e("s_add_u32 s4, s4, s5")
    e("v_lshlrev_b32 v%d, 10, v%d" % (VO[0], ADR))
    e("v_lshl_add_u32 v%d, v%d, 3, v%d" % (VO[0], TMP, VO[0]))
    e("v_add_u32 v%d, s4, v%d" % (VO[0], VO[0]))
    e("v_add_u32 v%d, 16384, v%d" % (VO[1], VO[0]))
    e("v_add_u32 v%d, 32768, v%d" % (VO[2], VO[0]))
    e("v_mov_b32 v%d, v%d" % (VOX, VO[2]))
    e("s_mov_b32 s52, 0xff00ff00")
    e("s_mov_b32 s53, 0xff00ff00")
    e("s_mov_b64 exec, s[52:53]")
    e("v_add_u32 v%d, %d, v%d" % (VOX, -8192 + 256, VOX))
    e("s_mov_b64 exec, -1")
    e("s_barrier")
    seq = []
    for ks in range(8):
        for tau in range(3): seq.append((ks, 4 * tau, tau * 8192 + ks * 1024, ks, ks == 0))
    for ks in range(12):
        for tl in range(8): seq.append((8 + ks, 12 + 4 * tl, 24576 + tl * 12288 + ks * 1024, ks, ks == 0))
    RING = 48; NR = 16; AHEAD = 12
    def rd(n):
        wk, acc, off, ks, first = seq[n]
        hi = off >= 65536
        r = RING + 4 * (n % NR)
        e("ds_read_b128 v[%d:%d], v%d offset:%d" % (r, r + 3, RA[(2 if hi else 0) + (ks & 1)], off - (65536 if hi else 0)))
    for n in range(AHEAD): rd(n)
    GT = 112
    lastw = -1
    gate_code = []
    for tau in range(3):
        for rr in range(4):
            g = GT + 4 * tau + rr; a = 4 * tau + rr
            gate_code.append("v_mul_f32 v%d, 0xbfb8aa3b, v%d" % (g, a))
    for k in range(12): gate_code.append("v_exp_f32 v%d, v%d" % (GT + k, GT + k))
    for k in range(12): gate_code.append("v_add_f32 v%d, 1.0, v%d" % (GT + k, GT + k))
    for k in range(12): gate_code.append("v_rcp_f32 v%d, v%d" % (GT + k, GT + k))
    for tau in range(3):
        gate_code.append("v_cvt_pk_bf16_f32 v%d, v%d, v%d" % (128 + 2 * tau, 4 * tau, 4 * tau + 1))
        gate_code.append("v_cvt_pk_bf16_f32 v%d, v%d, v%d" % (129 + 2 * tau, 4 * tau + 2, 4 * tau + 3))
    for rr in range(4): gate_code.append("v_mov_b32 v%d, v%d" % (124 + rr, GT + 8 + rr))
    for rr in range(4): gate_code.append("v_mov_b32_dpp v%d, v%d row_shr:8 row_mask:0xf bank_mask:0xc" % (124 + rr, GT + 8 + rr))
    for n in range(len(seq)):
        wk, acc, off, ks, first = seq[n]
        if wk != lastw:
            e("s_waitcnt vmcnt(%d)" % (19 - wk)); lastw = wk
        left = min(AHEAD, len(seq) - n) - 1
        e("s_waitcnt lgkmcnt(%d)" % left)
        r = RING + 4 * (n % NR)
        e("v_mfma_f32_16x16x32_bf16 v[%d:%d], v[%d:%d], v[%d:%d], %s" %
          (acc, acc + 3, WF + 4 * wk, WF + 4 * wk + 3, r, r + 3, "0" if first else "v[%d:%d]" % (acc, acc + 3)))
        if n + AHEAD < len(seq): rd(n + AHEAD)
        if n >= 24 + 10 and gate_code:
            e(gate_code.pop(0))
    assert not gate_code
    e("global_store_dwordx2 v%d, v[128:129], s[12:13]" % VO[0])
    e("global_store_dwordx2 v%d, v[130:131], s[12:13]" % VO[1])
    e("s_not_b64 exec, s[52:53]")
    e("global_store_dwordx2 v%d, v[132:133], s[12:13]" % VO[2])
    e("s_mov_b64 exec, -1")
    e("s_nop 4")
    for tl in range(8):
        a = 12 + 4 * tl
        if tl < 6: i = tl // 2; tau = tl % 2; g = GT + 4 * tau; vo = VO[tau]; off = 256 * (i + 1)
        elif tl == 6: g = 124; vo = VOX; off = 256
        else: g = GT + 8; vo = VO[2]; off = 768
        for rr in range(4):
            e("v_mul_f32 v%d, v%d, v%d" % (a + rr, a + rr, g + rr))
        e("v_cvt_pk_bf16_f32 v%d, v%d, v%d" % (a, a, a + 1))
        e("v_cvt_pk_bf16_f32 v%d, v%d, v%d" % (a + 1, a + 2, a + 3))
        if tl == 7: e("s_not_b64 exec, s[52:53]")
        e("global_store_dwordx2 v%d, v[%d:%d], s[12:13] offset:%d" % (vo, a, a + 1, off))
    lab("L2_end")
    e("s_endpgm")

header()
k1()
k2()
out.append('.section .rodata,"a"')
kdesc("gstp_bin_kernel", 64, 32)
kdesc("gstp_main_kernel", 256, 64)
open(sys.argv[1], "w").write("\n".join(out) + "\n")
```

```python
import sys
NAME = "gather_scatter__tensor_product_equiv_equiformer__graph"
OPT = dict(a.split('=') for a in sys.argv[2:]) if len(sys.argv) > 2 else {}
def opt(k, d): return type(d)(OPT.get(k, d))

N = 10000; E = 320000
NB = 250; NPB = 40
G = 250; CH = 1280
WS_REC = 0
WS_TAB = 4 << 20
WS_WF = 5 << 20
U = 10
OOB = 0x7F000000
L_OFFS = 0; OFFS_STRIDE = 288
L_COEF = 12288; COEF_STRIDE = 512
L_FLAG = 32768
L_F = 33792
L_CNT = L_F
L_ST = L_F + 2048
L_F0 = L_F; L_F1 = L_F + 3 * 8192
LDS_MAIN = L_F + 122880

out = []
def e(s): out.append("    " + s)
def lab(s): out.append(s + ":")
def c(s): out.append("    ; " + s)

def header():
    ref = open("cdna_kernels/%s.s.ref" % NAME).read().split("\n")
    for l in ref:
        if l.startswith("; Override") : break
        out.append(l)
    out.append("; @launch kernel=gstp_bin_kernel grid=(%d,1,1) block=(384,1,1) lds=6144" % G)
    out.append("; @launch kernel=gstp_main_kernel grid=(%d,1,1) block=(512,1,1) lds=%d" % (NB, LDS_MAIN))
    out.append('.amdgcn_target "amdgcn-amd-amdhsa--gfx950"')
    out.append(".text")

def kstart(name):
    out.append(".globl %s" % name)
    out.append(".p2align 8")
    out.append(".type %s,@function" % name)
    lab(name)

def kdesc(name, vgpr, sgpr):
    out.append(".p2align 6")
    out.append(".amdhsa_kernel %s" % name)
    out.append("  .amdhsa_next_free_vgpr %d" % vgpr)
    out.append("  .amdhsa_next_free_sgpr %d" % sgpr)
    out.append("  .amdhsa_accum_offset %d" % ((vgpr + 3) // 4 * 4))
    out.append("  .amdhsa_group_segment_fixed_size 0")
    out.append("  .amdhsa_kernarg_size 96")
    out.append("  .amdhsa_user_sgpr_count 2")
    out.append("  .amdhsa_user_sgpr_kernarg_segment_ptr 1")
    out.append("  .amdhsa_system_sgpr_workgroup_id_x 1")
    out.append(".end_amdhsa_kernel")

DIAG = opt("diag", 0)
WS_DBG = 8 << 20
nstamp = [0]
def stamp():
    if not DIAG: return
    k = nstamp[0]; nstamp[0] += 1
    e("s_memrealtime s[%d:%d]" % (64 + 2 * k, 65 + 2 * k))
    e("s_waitcnt lgkmcnt(0)")
def dump_stamps(ws, swave, base, vt):
    if not DIAG: return
    stamp()
    e("s_mov_b64 exec, -1")
    e("v_mov_b32 v%d, 0" % vt)
    for k in range(nstamp[0]):
        e("v_writelane_b32 v%d, s%d, %d" % (vt, 64 + 2 * k, k))
    e("s_getreg_b32 s62, hwreg(HW_REG_XCC_ID)")
    e("v_writelane_b32 v%d, s62, 15" % vt)
    e("s_lshl_b32 s62, s2, 3")
    e("s_add_u32 s62, s62, %s" % swave)
    e("s_lshl_b32 s62, s62, 6")
    e("s_add_u32 s62, s62, %d" % (WS_DBG + base))
    e("v_mbcnt_lo_u32_b32 v%d, -1, 0" % (vt + 1))
    e("v_lshl_add_u32 v%d, v%d, 2, s62" % (vt + 1, vt + 1))
    e("s_mov_b64 exec, 0xffff")
    e("global_store_dword v%d, v%d, %s" % (vt + 1, vt, ws))
    nstamp[0] = 0

def wave_scan(v):
    for sh in (1, 2, 4, 8):
        e("s_nop 1")
        e("v_add_u32_dpp %s, %s, %s row_shr:%d row_mask:0xf bank_mask:0xf bound_ctrl:0" % (v, v, v, sh))
    e("s_nop 1")
    e("v_add_u32_dpp %s, %s, %s row_bcast:15 row_mask:0xa bank_mask:0xf" % (v, v, v))
    e("s_nop 1")
    e("v_add_u32_dpp %s, %s, %s row_bcast:31 row_mask:0xc bank_mask:0xf" % (v, v, v))

def k1():
    kstart("gstp_bin_kernel")
    e("s_cmp_ge_u32 s2, %d" % G)
    e("s_cbranch_scc1 L1_end")
    e("s_load_dwordx16 s[4:19], s[0:1], 0")
    e("s_load_dwordx2 s[20:21], s[0:1], 88")
    e("v_lshrrev_b32 v4, 6, v0")
    e("s_nop 0")
    e("v_readfirstlane_b32 s3, v4")
    e("s_cmp_eq_u32 s3, 5")
    e("s_cbranch_scc1 L1_help")
    stamp()
    e("s_mul_i32 s22, s2, %d" % (CH * 4))
    e("s_mul_i32 s23, s2, %d" % (CH * 6))
    e("s_mul_i32 s24, s2, %d" % (CH * 2))
    e("v_lshl_add_u32 v1, v0, 4, s22")
    e("v_mul_u32_u24 v2, 24, v0")
    e("v_add_u32 v2, s23, v2")
    e("v_lshl_add_u32 v3, v0, 3, s24")
    e("v_lshlrev_b32 v4, 2, v0")
    e("v_mov_b32 v5, 0")
    e("ds_write_b32 v4, v5")
    e("s_waitcnt lgkmcnt(0)")
    e("global_load_dwordx4 v[8:11], v1, s[12:13]")
    e("global_load_dwordx4 v[12:15], v1, s[10:11]")
    e("global_load_dwordx4 v[16:19], v2, s[6:7]")
    e("global_load_dwordx2 v[20:21], v2, s[6:7] offset:16")
    e("global_load_dwordx2 v[22:23], v3, s[8:9]")
    e("v_mov_b32 v5, 1")
    e("s_barrier")
    stamp()
    e("s_waitcnt vmcnt(4)")
    stamp()
    for k in range(4):
        e("v_mul_u32_u24 v%d, 0xcccd, v%d" % (24 + k, 8 + k))
        e("v_lshrrev_b32 v%d, 21, v%d" % (24 + k, 24 + k))
        e("v_mul_u32_u24 v6, 40, v%d" % (24 + k))
        e("v_sub_u32 v%d, v%d, v6" % (8 + k, 8 + k))
        e("v_lshlrev_b32 v%d, 2, v%d" % (24 + k, 24 + k))
        e("ds_add_rtn_u32 v%d, v%d, v5" % (28 + k, 24 + k))
    e("s_waitcnt vmcnt(3)")
    for k in range(4):
        e("v_mul_u32_u24 v6, 39, v%d" % (12 + k))
        e("v_lshrrev_b32 v6, 16, v6")
        e("v_lshl_add_u32 v6, v%d, 3, v6" % (8 + k))
        e("v_lshl_or_b32 v%d, v%d, 10, v6" % (34 + 4 * k, 12 + k))
    e("s_waitcnt vmcnt(0)")
    stamp()
    def unpack(dst, idx, base):
        r = base + idx // 2
        if idx % 2 == 0: e("v_lshlrev_b32 %s, 16, v%d" % (dst, r))
        else: e("v_and_b32 %s, 0xffff0000, v%d" % (dst, r))
    for k in range(4):
        unpack("v48", k, 22)
        for j in range(3):
            unpack("v%d" % (49 + j), 3 * k + j, 16)
        for j in range(3):
            e("v_mul_f32 v%d, v48, v%d" % (49 + j, 49 + j))
        e("v_cvt_pk_bf16_f32 v%d, v48, v49" % (32 + 4 * k))
        e("v_cvt_pk_bf16_f32 v%d, v50, v51" % (33 + 4 * k))
    e("s_waitcnt lgkmcnt(0)")
    e("s_barrier")
    stamp()
    e("v_and_b32 v4, 63, v0")
    e("v_lshlrev_b32 v4, 4, v4")
    e("ds_read_b128 v[52:55], v4")
    e("s_add_u32 s25, s3, 1")
    e("s_lshl_b32 s25, s25, 10")
    e("s_waitcnt lgkmcnt(0)")
    e("v_add_u32 v57, v52, v53")
    e("v_add_u32 v58, v57, v54")
    e("v_add_u32 v59, v58, v55")
    e("v_mov_b32 v60, v59")
    wave_scan("v60")
    e("v_sub_u32 v60, v60, v59")
    e("v_add_u32 v61, v60, v52")
    e("v_add_u32 v62, v60, v57")
    e("v_add_u32 v63, v60, v58")
    e("v_add_u32 v7, s25, v4")
    e("ds_write_b128 v7, v[60:63]")
    for k in range(4):
        e("v_add_u32 v%d, s25, v%d" % (24 + k, 24 + k))
    e("s_waitcnt lgkmcnt(0)")
    for k in range(4):
        e("ds_read_b32 v%d, v%d" % (24 + k, 24 + k))
    e("s_cmp_lg_u32 s3, 0")
    e("s_cbranch_scc1 L1_notab")
    for k in range(4):
        e("v_lshl_or_b32 v%d, v%d, 16, v%d" % (60 + k, 52 + k, 60 + k))
    e("s_lshl_b32 s26, s2, 10")
    e("s_add_u32 s26, s26, %d" % WS_TAB)
    e("v_add_u32 v7, s26, v4")
    e("global_store_dwordx4 v7, v[60:63], s[20:21]")
    lab("L1_notab")
    e("s_mul_i32 s26, s2, %d" % (CH * 12))
    e("s_add_u32 s26, s26, %d" % WS_REC)
    e("v_mov_b32 v6, s26")
    e("s_waitcnt lgkmcnt(0)")
    for k in range(4):
        e("v_add_u32 v%d, v%d, v%d" % (24 + k, 24 + k, 28 + k))
        e("v_mad_u32_u24 v%d, v%d, 12, v6" % (24 + k, 24 + k))
        e("global_store_dwordx3 v%d, v[%d:%d], s[20:21]" % (24 + k, 32 + 4 * k, 34 + 4 * k))
    stamp()
    for _ in range(opt("k1sleep", 0)): e("s_sleep 33")
    if DIAG: e("s_waitcnt vmcnt(0)")
    dump_stamps("s[20:21]", "s3", 0, 4)
    e("s_endpgm")
    lab("L1_help")
    e("v_and_b32 v1, 63, v0")
    e("s_waitcnt lgkmcnt(0)")
    e("s_cmp_ge_u32 s2, 160")
    e("s_cbranch_scc1 L1_now")
    e("s_mul_i32 s22, s2, 3277")
    e("s_lshr_b32 s22, s22, 16")
    e("s_mul_i32 s23, s22, 20")
    e("s_sub_u32 s23, s2, s23")
    e("s_cmp_lt_u32 s23, 8")
    e("s_cselect_b64 s[24:25], s[16:17], s[18:19]")
    e("s_cselect_b32 s26, 0, 8")
    e("s_sub_u32 s26, s23, s26")
    e("s_lshl_b32 s26, s26, 13")
    e("s_lshl_b32 s27, s22, 5")
    e("s_add_u32 s26, s26, s27")
    e("v_lshrrev_b32 v2, 4, v1")
    e("v_and_b32 v3, 15, v1")
    e("v_lshlrev_b32 v4, 11, v2")
    e("v_lshl_add_u32 v4, v3, 1, v4")
    e("v_add_u32 v4, s26, v4")
    e("s_lshl_b32 s27, s23, 6")
    e("v_lshl_add_u32 v5, v2, 4, s27")
    e("global_load_dwordx4 v[16:19], v5, s[14:15]")
    for i in range(8):
        e("global_load_ushort v%d, v4, s[24:25] offset:%d" % (8 + i, 256 * i))
    lab("L1_now")
    e("s_barrier")
    e("s_barrier")
    if opt("prefetch", 1):
        e("s_mul_i32 s28, s2, 40960")
        e("v_lshl_add_u32 v6, v1, 4, s28")
        for i in range(10):
            for j in range(4):
                e("global_load_dwordx4 v[40:43], v6, s[4:5] offset:%d" % (1024 * j))
            if i < 9: e("v_add_u32 v6, 4096, v6")
        nx = 40
    else:
        nx = 0
    e("s_cmp_ge_u32 s2, 160")
    e("s_cbranch_scc1 L1_end")
    e("s_waitcnt vmcnt(%d)" % nx)
    for i in range(8):
        e("v_lshlrev_b32 v%d, 16, v%d" % (8 + i, 8 + i))
        unpack("v20", i, 16)
        e("v_mul_f32 v%d, v20, v%d" % (8 + i, 8 + i))
    for i in range(4):
        e("v_cvt_pk_bf16_f32 v%d, v%d, v%d" % (24 + i, 8 + 2 * i, 9 + 2 * i))
    e("s_lshl_b32 s26, s2, 10")
    e("s_add_u32 s26, s26, %d" % WS_WF)
    e("v_lshl_add_u32 v7, v1, 4, s26")
    e("global_store_dwordx4 v7, v[24:27], s[20:21]")
    lab("L1_end")
    e("s_endpgm")

ACC = 0; LB = [160, 192]; BT = [224, 228]; AF = 232; CR = 236; OR_ = 240; AD = 242
SEL01 = 244; SEL23 = 245; LC = 246; VOA = 247; VCA = 248; RB = 249; REM = 250; PEND = 251; TID = 252
def rec(i): return 160 + 4 * i
def kad(i): return 200 + i
T0 = 210
MSK = 20
def msk(i): return "s[%d:%d]" % (MSK + 2 * i, MSK + 2 * i + 1)

def k2():
    kstart("gstp_main_kernel")
    e("s_cmp_ge_u32 s2, %d" % NB)
    e("s_cbranch_scc1 L2_end")
    e("s_load_dwordx2 s[8:9], s[0:1], 0")
    e("s_load_dwordx2 s[12:13], s[0:1], 72")
    e("s_load_dwordx2 s[14:15], s[0:1], 88")
    stamp()
    e("v_mov_b32 v%d, v0" % TID)
    e("v_lshrrev_b32 v%d, 6, v0" % T0)
    e("s_and_b32 s4, s2, 7")
    e("s_lshr_b32 s5, s2, 3")
    e("s_mul_i32 s16, s4, 31")
    e("s_min_u32 s4, s4, 2")
    e("s_add_u32 s16, s16, s4")
    e("s_add_u32 s16, s16, s5")
    e("v_readfirstlane_b32 s17, v%d" % T0)
    e("v_lshrrev_b32 v%d, 1, v0" % (T0 + 1))
    e("v_min_u32 v%d, %d, v%d" % (T0 + 1, G - 1, T0 + 1))
    e("s_lshl_b32 s4, s16, 2")
    e("s_add_u32 s4, s4, %d" % WS_TAB)
    e("v_lshl_add_u32 v%d, v%d, 10, s4" % (T0 + 2, T0 + 1))
    e("s_waitcnt lgkmcnt(0)")
    e("global_load_dword v%d, v%d, s[14:15]" % (T0 + 3, T0 + 2))
    e("s_mov_b32 s10, %d" % (N * 1024))
    e("s_mov_b32 s11, 0x20000")
    e("s_mov_b32 s18, 0x05040100")
    e("s_mov_b32 s19, 0x07060302")
    e("v_and_b32 v%d, 15, v0" % LC)
    e("v_lshlrev_b32 v%d, 4, v%d" % (LC, LC))
    Z = 0x0c0c
    C = [0x0100, 0x0302, 0x0504, 0x0706]
    rows = {0: (C[0], Z, Z, Z), 1: (Z, C[1], C[2], C[3]),
            4: (C[1], Z, Z, Z), 5: (Z, C[0], Z, Z), 6: (Z, Z, Z, C[2]), 7: (Z, Z, C[3], Z),
            8: (C[2], Z, Z, Z), 9: (Z, Z, C[0], Z), 10: (Z, C[3], Z, Z), 11: (Z, Z, Z, C[1]),
            12: (C[3], Z, Z, Z), 13: (Z, Z, Z, C[0]), 14: (Z, Z, C[1], Z), 15: (Z, C[2], Z, Z)}
    e("v_mov_b32 v%d, 0x0c0c0c0c" % SEL01)
    e("v_mov_b32 v%d, 0x0c0c0c0c" % SEL23)
    e("s_mov_b32 s6, 0x00010001")
    e("s_mov_b32 s7, 0x00010001")
    for m, q in rows.items():
        e("s_lshl_b64 exec, s[6:7], %d" % m)
        lo = q[0] | q[1] << 16; hi = q[2] | q[3] << 16
        if lo != 0x0c0c0c0c: e("v_mov_b32 v%d, 0x%08x" % (SEL01, lo))
        if hi != 0x0c0c0c0c: e("v_mov_b32 v%d, 0x%08x" % (SEL23, hi))
    e("s_mov_b64 exec, -1")
    for r in range(160):
        e("v_mov_b32 v%d, 0" % r)
    e("s_mul_i32 s42, s17, 1280")
    e("s_add_u32 s42, s42, %d" % L_ST)
    e("s_waitcnt vmcnt(0)")
    stamp()
    t = T0
    e("v_and_b32 v%d, 1, v%d" % (t + 4, TID))
    e("v_and_b32 v%d, 0xffff, v%d" % (t + 5, t + 3))
    e("v_lshrrev_b32 v%d, 16, v%d" % (REM, t + 3))
    e("v_cmp_gt_u32 vcc, %d, v%d" % (2 * G, TID))
    e("v_mul_u32_u24 v%d, %d, v%d" % (t + 6, CH, t + 1))
    e("v_cndmask_b32 v%d, 0, v%d, vcc" % (REM, REM))
    e("v_add3_u32 v%d, v%d, v%d, v%d" % (t + 6, t + 6, t + 5, t + 4))
    e("v_mul_u32_u24 v%d, 12, v%d" % (RB, t + 6))
    if WS_REC: e("v_add_u32 v%d, %d, v%d" % (RB, WS_REC, RB))
    e("v_sub_u32 v%d, v%d, v%d" % (REM, REM, t + 4))
    lab("L2_batch")
    e("v_add_u32 v%d, 1, v%d" % (t, REM))
    e("v_ashrrev_i32 v%d, 1, v%d" % (t, t))
    e("v_max_i32 v%d, 0, v%d" % (t, t))
    e("v_min_i32 v%d, %d, v%d" % (t, U, t))
    e("v_lshlrev_b32 v%d, v%d, 1" % (PEND, t) if False else "v_mov_b32 v%d, 1" % (t + 1))
    e("v_lshlrev_b32 v%d, v%d, v%d" % (PEND, t, t + 1))
    e("v_add_u32 v%d, -1, v%d" % (PEND, PEND))
    lab("L2_pass")
    for i in range(U):
        e("v_and_b32 v%d, %d, v%d" % (t + (i & 1), 1 << i, PEND))
        e("v_cmp_ne_u32 %s, 0, v%d" % (msk(i), t + (i & 1)))
    for i in range(U):
        e("s_mov_b64 exec, %s" % msk(i))
        e("global_load_dwordx3 v[%d:%d], v%d, s[14:15] offset:%d" % (rec(i), rec(i) + 2, RB, 24 * i))
    e("s_mov_b64 exec, -1")
    z = T0 + 2
    for k in range(4): e("v_mov_b32 v%d, 0" % (z + k))
    for k in range(4): e("v_mov_b32 v%d, 0x%x" % (z + 4 + k, OOB))
    e("v_lshlrev_b32 v%d, 4, v%d" % (t, TID))
    e("v_lshlrev_b32 v%d, 3, v%d" % (t + 1, TID))
    e("ds_write_b128 v%d, v[%d:%d] offset:%d" % (t, z + 4, z + 7, L_OFFS))
    e("ds_write_b64 v%d, v[%d:%d] offset:%d" % (t + 1, z + 4, z + 5, L_OFFS + 8192))
    e("ds_write_b128 v%d, v[%d:%d] offset:%d" % (t, z, z + 3, L_COEF))
    e("ds_write_b128 v%d, v[%d:%d] offset:%d" % (t, z, z + 3, L_COEF + 8192))
    e("ds_write_b64 v%d, v[%d:%d] offset:%d" % (t + 1, z, z + 1, L_COEF + 16384))
    e("v_lshlrev_b32 v%d, 2, v%d" % (t + 10, TID))
    e("ds_write_b32 v%d, v%d offset:%d" % (t + 10, z, L_CNT))
    e("s_mov_b64 exec, 1")
    e("ds_write_b64 v%d, v[%d:%d] offset:%d" % (z, z, z + 1, L_FLAG))
    e("s_mov_b64 exec, -1")
    one = T0 + 11
    e("v_mov_b32 v%d, 1" % one)
    e("s_waitcnt lgkmcnt(0)")
    e("s_barrier")
    for i in range(U):
        e("s_waitcnt vmcnt(%d)" % (U - 1 - i))
        e("s_mov_b64 exec, %s" % msk(i))
        e("v_and_b32 v%d, 0x3ff, v%d" % (kad(i), rec(i) + 2))
        e("v_lshlrev_b32 v%d, 2, v%d" % (kad(i), kad(i)))
        e("ds_add_rtn_u32 v%d, v%d, v%d offset:%d" % (rec(i) + 3, kad(i), one, L_CNT))
    e("s_mov_b64 exec, -1")
    e("s_waitcnt lgkmcnt(0)")
    e("s_barrier")
    stamp()
    cc = 212
    e("v_and_b32 v%d, 63, v%d" % (t, TID))
    e("v_lshlrev_b32 v%d, 5, v%d" % (t, t))
    e("v_cmp_gt_u32 vcc, %d, v%d" % (NPB * 32, t))
    e("s_and_b64 exec, exec, vcc")
    e("ds_read_b128 v[%d:%d], v%d offset:%d" % (cc, cc + 3, t, L_CNT))
    e("ds_read_b64 v[%d:%d], v%d offset:%d" % (cc + 4, cc + 5, t, L_CNT + 16))
    p = 220
    f = 228
    e("s_waitcnt lgkmcnt(0)")
    e("v_mov_b32 v%d, v%d" % (p + 1, cc))
    for k in range(2, 7):
        e("v_add_u32 v%d, v%d, v%d" % (p + k, p + k - 1, cc + k - 1))
    e("v_mov_b32 v%d, 0" % f)
    e("v_max_u32 v%d, 8, v%d" % (f + 1, cc))
    for k in range(2, 6):
        e("v_add_u32 v%d, v%d, v%d" % (f + k, f + k - 1, cc + k - 1))
        e("v_max_u32 v%d, %d, v%d" % (f + k, 8 * k, f + k))
    e("v_cmp_lt_u32 vcc, 48, v%d" % (p + 6))
    e("v_mov_b32 v%d, 48" % (p + 7))
    e("v_cndmask_b32 v%d, v%d, 64, vcc" % (p + 7, p + 7) if False else "v_mov_b32 v%d, 64" % p)
    e("v_cndmask_b32 v%d, v%d, v%d, vcc" % (p + 7, p + 7, p))
    e("v_sub_u32 v%d, v%d, v%d" % (p + 7, p + 7, p + 6))
    e("v_max_i32 v%d, 0, v%d" % (p + 7, p + 7))
    for k in range(1, 6):
        e("v_add_u32 v%d, v%d, v%d" % (p + k, p + k, p + 7))
        e("v_min_u32 v%d, v%d, v%d" % (f + k, f + k, p + k))
    e("v_add_u32 v%d, s42, v%d" % (t, t))
    e("ds_write_b128 v%d, v[%d:%d]" % (t, f, f + 3))
    e("ds_write_b64 v%d, v[%d:%d] offset:16" % (t, f + 4, f + 5))
    e("v_add_u32 v%d, v%d, v%d" % (p, f + 5, cc + 5))
    e("v_min_u32 v%d, 64, v%d" % (p, p))
    e("v_add_u32 v%d, 15, v%d" % (p, p))
    e("v_lshrrev_b32 v%d, 4, v%d" % (p, p))
    if opt("bar", 0):
        e("s_mov_b32 s40, 0")
        for k in range(4):
            e("v_cmp_lt_u32 vcc, %d, v%d" % (k, p))
            e("s_cmp_lg_u64 vcc, 0")
            e("s_addc_u32 s40, s40, 0")
        e("s_mov_b64 exec, -1")
    else:
        e("s_mov_b64 exec, -1")
        e("s_mul_i32 s4, s17, 5")
        e("s_mov_b32 s40, 0")
        for u in range(5):
            e("v_readlane_b32 s5, v%d, s4" % p)
            e("s_add_u32 s4, s4, 1")
            e("s_nop 0")
            e("s_max_u32 s40, s40, s5")
    e("s_waitcnt lgkmcnt(0)")
    st = 228
    for i in range(U):
        e("s_mov_b64 exec, %s" % msk(i))
        e("v_add_u32 v%d, s42, v%d" % (st + i, kad(i)))
        e("ds_read_b32 v%d, v%d" % (st + i, st + i))
    e("s_movk_i32 s4, %d" % OFFS_STRIDE)
    for i in range(U):
        sl = rec(i) + 3
        a = T0 + 4 * (i & 1)
        e("s_mov_b64 exec, %s" % msk(i))
        e("s_waitcnt lgkmcnt(%d)" % min(15, (U - 1 - i) + 2 * i) if False else "s_waitcnt lgkmcnt(0)" if i == 0 else "s_nop 0")
        e("v_add_u32 v%d, v%d, v%d" % (sl, sl, st + i))
        e("v_cmp_gt_u32 vcc, 64, v%d" % sl)
        e("s_and_b64 exec, exec, vcc")
        if opt("permslot", 1):
            e("v_and_b32 v%d, 3, v%d" % (a, sl))
            e("v_bfe_u32 v%d, v%d, 2, 1" % (a + 1, sl))
            e("v_lshl_or_b32 v%d, v%d, 1, v%d" % (a, a, a + 1))
            e("v_and_or_b32 v%d, v%d, 56, v%d" % (sl, sl, a))
        e("v_lshlrev_b32 v%d, 2, v%d" % (sl, sl))
        e("v_lshrrev_b32 v%d, 5, v%d" % (a, kad(i)))
        e("v_mad_u32_u24 v%d, v%d, s4, v%d" % (a + 1, a, sl))
        e("v_lshl_add_u32 v%d, v%d, 8, v%d" % (a + 2, a, sl))
        e("v_lshlrev_b32 v%d, 1, v%d" % (a + 2, a + 2))
        e("v_and_b32 v%d, 0xfffffc00, v%d" % (rec(i) + 2, rec(i) + 2))
        e("ds_write_b32 v%d, v%d offset:%d" % (a + 1, rec(i) + 2, L_OFFS))
        e("ds_write_b64 v%d, v[%d:%d] offset:%d" % (a + 2, rec(i), rec(i) + 1, L_COEF))
        e("v_and_b32 v%d, 0x%x, v%d" % (PEND, 0xffffffff ^ (1 << i), PEND))
    e("s_mov_b64 exec, -1")
    e("v_mov_b32 v%d, 0" % t)
    e("v_mov_b32 v%d, 1" % (t + 1))
    e("v_cmp_ne_u32 vcc, 0, v%d" % PEND)
    e("s_mov_b64 exec, vcc")
    e("ds_write_b32 v%d, v%d offset:%d" % (t, t + 1, L_FLAG))
    e("s_mov_b64 exec, -1")
    e("v_cmp_lt_i32 vcc, %d, v%d" % (2 * U, REM))
    e("s_mov_b64 exec, vcc")
    e("ds_write_b32 v%d, v%d offset:%d" % (t, t + 1, L_FLAG + 4))
    e("s_mov_b64 exec, -1")
    e("v_bfe_u32 v%d, v%d, 4, 2" % (VCA, TID))
    e("s_mul_i32 s4, s17, %d" % (5 * OFFS_STRIDE))
    e("s_mul_i32 s5, s17, %d" % (5 * COEF_STRIDE))
    e("v_lshl_add_u32 v%d, v%d, 3, s4" % (VOA, VCA))
    e("v_lshl_add_u32 v%d, v%d, 4, s5" % (VCA, VCA))
    e("s_waitcnt lgkmcnt(0)")
    e("s_barrier")
    stamp()
    e("ds_read_b64 v[%d:%d], v%d offset:%d" % (t + 2, t + 3, t, L_FLAG))
    def ooff(g): return L_OFFS + (g % 5) * OFFS_STRIDE + (g // 5) * 32
    def coff(g): return L_COEF + (g % 5) * COEF_STRIDE + (g // 5) * 64
    XM = opt("xmask", 0)
    def addrs(r0):
        e("v_add_u32 v%d, v%d, v%d" % (AD, r0, LC))
        e("v_add_u32 v%d, v%d, v%d" % (AD + 1, r0 + 1, LC))
        if XM:
            e("v_cmp_gt_u32 s[54:55], s10, v%d" % r0)
            e("v_cmp_gt_u32 s[56:57], s10, v%d" % (r0 + 1))
    def loads(buf):
        for i in range(8):
            if XM and i == 0: e("s_mov_b64 exec, s[54:55]")
            if XM and i == 4: e("s_mov_b64 exec, s[56:57]")
            e("buffer_load_dwordx4 v[%d:%d], v%d, s[8:11], 0 offen offset:%d" %
              (LB[buf] + 4 * i, LB[buf] + 4 * i + 3, AD + (i >> 2), 256 * (i & 3)))
        if XM: e("s_mov_b64 exec, -1")
    e("ds_read_b64 v[%d:%d], v%d offset:%d" % (OR_, OR_ + 1, VOA, ooff(0)))
    e("ds_read_b64 v[%d:%d], v%d offset:%d" % (BT[0], BT[0] + 1, VOA, ooff(1)))
    e("s_waitcnt lgkmcnt(0)")
    e("v_readfirstlane_b32 s44, v%d" % (t + 2))
    e("v_readfirstlane_b32 s45, v%d" % (t + 3))
    e("s_cmp_eq_u32 s40, 0")
    e("s_cbranch_scc1 L2_swept")
    if XM:
        for r in range(LB[0], LB[0] + 64): e("v_mov_b32 v%d, 0" % r)
    addrs(OR_)
    loads(0)
    addrs(BT[0])
    loads(1)
    e("ds_read_b64 v[%d:%d], v%d offset:%d" % (OR_, OR_ + 1, VOA, ooff(2)))
    e("ds_read_b128 v[%d:%d], v%d offset:%d" % (CR, CR + 3, VCA, coff(0)))
    out.append(".p2align 6")
    lab("L2_sweep")
    for g in range(10):
        u = g % 5; buf = g & 1; L = LB[buf]
        e("s_waitcnt lgkmcnt(0)")
        e("v_perm_b32 v%d, v%d, v%d, v%d" % (AF + 0, CR + 1, CR + 0, SEL01))
        e("v_perm_b32 v%d, v%d, v%d, v%d" % (AF + 1, CR + 1, CR + 0, SEL23))
        e("v_perm_b32 v%d, v%d, v%d, v%d" % (AF + 2, CR + 3, CR + 2, SEL01))
        e("v_perm_b32 v%d, v%d, v%d, v%d" % (AF + 3, CR + 3, CR + 2, SEL23))
        addrs(OR_)
        e("ds_read_b64 v[%d:%d], v%d offset:%d" % (OR_, OR_ + 1, VOA, ooff(g + 3)))
        e("ds_read_b128 v[%d:%d], v%d offset:%d" % (CR, CR + 3, VCA, coff(g + 1)))
        e("s_waitcnt vmcnt(8)")
        def P(j):
            d = j >> 1; s = "s19" if j & 1 else "s18"
            for tt in range(4):
                e("v_perm_b32 v%d, v%d, v%d, %s" % (BT[j & 1] + tt, L + 4 * (2 * tt + 1) + d, L + 4 * (2 * tt) + d, s))
        def M(j):
            a = ACC + 32 * u + 4 * j
            e("v_mfma_f32_16x16x32_bf16 v[%d:%d], v[%d:%d], v[%d:%d], v[%d:%d]" %
              (a, a + 3, AF, AF + 3, BT[j & 1], BT[j & 1] + 3, a, a + 3))
        X = opt("x", "")
        if "P" in X: P = lambda j: None
        if "M" in X: M = lambda j: None
        P(0); P(1); M(0)
        for j in range(2, 8):
            P(j); M(j - 1)
        if "L" not in X: loads(buf)
        M(7)
        bar = opt("bar", 0)
        if bar and (g + 1) % bar == 0: e("s_barrier")
    e("v_add_u32 v%d, 64, v%d" % (VOA, VOA))
    e("v_add_u32 v%d, 128, v%d" % (VCA, VCA))
    e("s_sub_u32 s40, s40, 1")
    e("s_cmp_lg_u32 s40, 0")
    e("s_cbranch_scc1 L2_sweep")
    lab("L2_swept")
    e("s_or_b32 s4, s44, s45")
    e("s_cmp_eq_u32 s4, 0")
    e("s_cbranch_scc1 L2_epi")
    e("s_waitcnt vmcnt(0) lgkmcnt(0)")
    e("s_barrier")
    e("s_cmp_lg_u32 s44, 0")
    e("s_cbranch_scc1 L2_pass")
    e("v_add_u32 v%d, %d, v%d" % (RB, 24 * U, RB))
    e("v_add_u32 v%d, %d, v%d" % (REM, -2 * U, REM))
    e("s_branch L2_batch")
    lab("L2_epi")
    stamp()
    WF = 160
    lane = 253
    e("s_waitcnt lgkmcnt(0)")
    e("v_and_b32 v%d, 63, v%d" % (lane, TID))
    e("v_lshlrev_b32 v%d, 4, v%d" % (254, lane))
    e("s_mul_i32 s4, s17, 20480")
    e("s_add_u32 s4, s4, %d" % (WS_WF + 4096))
    e("s_add_u32 s46, s14, s4")
    e("s_addc_u32 s47, s15, 0")
    for ks in range(20):
        if ks and ks % 8 == 0:
            e("s_add_u32 s46, s46, 8192")
            e("s_addc_u32 s47, s47, 0")
        e("global_load_dwordx4 v[%d:%d], v254, s[46:47] offset:%d" % (WF + 4 * ks, WF + 4 * ks + 3, (ks % 8) * 1024 - 4096))
    LA = 240; TS = 241; LBB = 242; SG = 243; SG2 = 244; ADR = 245; TMP = 246
    TA = [248, 164 if False else 248]
    e("v_lshrrev_b32 v%d, 4, v%d" % (TMP, lane))
    e("v_and_b32 v%d, 3, v%d" % (SG, lane))
    e("v_bfe_u32 v%d, v%d, 2, 2" % (ADR, lane))
    e("v_lshlrev_b32 v%d, 8, v%d" % (LA, SG))
    e("v_lshl_add_u32 v%d, v%d, 10, v%d" % (LA, ADR, LA))
    e("v_and_b32 v%d, 1, v%d" % (ADR, ADR))
    e("v_mul_u32_u24 v%d, 12, v%d" % (ADR, ADR))
    e("v_or_b32 v%d, v%d, v%d" % (SG, SG, ADR))
    e("v_lshlrev_b32 v%d, 4, v%d" % (SG, SG))
    e("v_mov_b32 v%d, v%d" % (SG2, SG))
    e("v_add_u32 v%d, %d, v%d" % (LBB, L_F0 + 16384, LA))
    e("v_mov_b32 v%d, 8192" % TS)
    e("v_mov_b32 v%d, v%d" % (TMP, LA))
    e("v_add_u32 v%d, %d, v%d" % (LA, L_F0, LA))
    for gp in range(1, 4):
        lo = 0xffff0000 if gp == 1 else 0
        hi = {1: 0, 2: 0x0000ffff, 3: 0xffff0000}[gp]
        e("s_mov_b32 exec_lo, 0x%x" % lo)
        e("s_mov_b32 exec_hi, 0x%x" % hi)
        e("v_add_u32 v%d, %d, v%d" % (LA, L_F1 + (gp - 1) * 24576, TMP))
        e("v_add_u32 v%d, %d, v%d" % (LBB, L_F1 + (7 if gp == 3 else 6) * 12288, TMP))
        e("v_mov_b32 v%d, 12288" % TS)
        if gp == 2: e("v_xor_b32 v%d, 128, v%d" % (SG2, SG2))
    e("s_mov_b64 exec, -1")
    e("s_mul_i32 s4, s17, 5")
    e("s_mov_b32 s48, 0xffff0000")
    e("s_mov_b32 s49, -1")
    TA0 = 248; TA1 = 252
    e("v_mov_b32 v%d, v%d" % (247, lane))
    lane = 247
    for u in range(5):
        A = ACC + 32 * u
        e("s_lshr_b32 s5, s4, 4")
        e("s_and_b32 s6, s4, 15")
        e("s_lshl_b32 s6, s6, 4")
        e("s_cmp_lt_u32 s4, 32")
        e("s_cselect_b64 s[50:51], -1, 0")
        e("v_mad_u32_u24 v%d, v%d, s5, v%d" % (ADR, TS, LA))
        e("v_cndmask_b32 v%d, v%d, v%d, s[50:51]" % (ADR, LBB, ADR))
        e("v_cndmask_b32 v%d, v%d, v%d, s[50:51]" % (TMP, SG2, SG))
        e("v_xor_b32 v%d, s6, v%d" % (TMP, TMP))
        e("v_add_u32 v%d, v%d, v%d" % (ADR, ADR, TMP))
        for dd in range(4):
            e("v_cvt_pk_bf16_f32 v%d, v%d, v%d" % (TA0 + dd, A + 8 * dd, A + 8 * dd + 4))
        e("ds_write_b128 v%d, v[%d:%d]" % (ADR, TA0, TA0 + 3))
        for dd in range(4):
            e("v_cvt_pk_bf16_f32 v%d, v%d, v%d" % (TA1 + dd, A + 8 * dd + 1, A + 8 * dd + 5))
        e("ds_write_b128 v%d, v[%d:%d] offset:4096" % (ADR, TA1, TA1 + 3))
        for j in range(8):
            e("v_sub_f32 v%d, v%d, v%d" % (A + 4 * j + 2, A + 4 * j + 2, A + 4 * j + 3))
        for dd in range(4):
            e("v_cvt_pk_bf16_f32 v%d, v%d, v%d" % (A + dd, A + 8 * dd + 2, A + 8 * dd + 6))
        e("s_mov_b64 exec, s[48:49]")
        e("ds_write_b128 v%d, v[%d:%d] offset:8192" % (ADR, A, A + 3))
        e("s_mov_b64 exec, -1")
        e("s_add_u32 s4, s4, 1")
    RA = [240, 241, 242, 243]
    e("s_waitcnt lgkmcnt(0)")
    e("v_lshrrev_b32 v%d, 4, v%d" % (TMP, lane))
    e("v_and_b32 v%d, 15, v%d" % (ADR, lane))
    e("v_xor_b32 v%d, v%d, v%d" % (RA[0], ADR, TMP))
    e("v_lshlrev_b32 v%d, 4, v%d" % (RA[0], RA[0]))
    e("v_lshl_add_u32 v%d, v%d, 8, v%d" % (RA[0], TMP, RA[0]))
    e("v_xor_b32 v%d, 0xc0, v%d" % (RA[1], RA[0]))
    e("v_add_u32 v%d, %d, v%d" % (RA[2], L_F + 65536, RA[0]))
    e("v_add_u32 v%d, %d, v%d" % (RA[3], L_F + 65536, RA[1]))
    e("v_add_u32 v%d, %d, v%d" % (RA[0], L_F, RA[0]))
    e("v_add_u32 v%d, %d, v%d" % (RA[1], L_F, RA[1]))
    VO = [248, 249, 250]; VOX = 251
    e("s_mul_i32 s4, s16, %d" % (NPB * 1024))
    e("s_lshl_b32 s5, s17, 5")
    e("s_add_u32 s4, s4, s5")
    e("v_lshlrev_b32 v%d, 10, v%d" % (VO[0], ADR))
    e("v_lshl_add_u32 v%d, v%d, 3, v%d" % (VO[0], TMP, VO[0]))
    e("v_add_u32 v%d, s4, v%d" % (VO[0], VO[0]))
    e("v_add_u32 v%d, 16384, v%d" % (VO[1], VO[0]))
    e("v_add_u32 v%d, 32768, v%d" % (VO[2], VO[0]))
    e("v_mov_b32 v%d, v%d" % (VOX, VO[2]))
    e("s_mov_b32 s52, 0xff00ff00")
    e("s_mov_b32 s53, 0xff00ff00")
    e("s_mov_b64 exec, s[52:53]")
    e("v_add_u32 v%d, %d, v%d" % (VOX, -8192 + 256, VOX))
    e("s_mov_b64 exec, -1")
    stamp()
    e("s_barrier")
    stamp()
    seq = []
    for ks in range(8):
        for tau in range(3): seq.append((ks, 4 * tau, tau * 8192 + ks * 1024, ks, ks == 0))
    for ks in range(12):
        for tl in range(8): seq.append((8 + ks, 12 + 4 * tl, 24576 + tl * 12288 + ks * 1024, ks, ks == 0))
    RING = 48; NR = 16; AHEAD = 12
    def rd(n):
        wk, acc, off, ks, first = seq[n]
        hi = off >= 65536
        r = RING + 4 * (n % NR)
        e("ds_read_b128 v[%d:%d], v%d offset:%d" % (r, r + 3, RA[(2 if hi else 0) + (ks & 1)], off - (65536 if hi else 0)))
    for n in range(AHEAD): rd(n)
    GT = 112
    lastw = -1
    gate_code = []
    for tau in range(3):
        for rr in range(4):
            g = GT + 4 * tau + rr; a = 4 * tau + rr
            gate_code.append("v_mul_f32 v%d, 0xbfb8aa3b, v%d" % (g, a))
    for k in range(12): gate_code.append("v_exp_f32 v%d, v%d" % (GT + k, GT + k))
    for k in range(12): gate_code.append("v_add_f32 v%d, 1.0, v%d" % (GT + k, GT + k))
    for k in range(12): gate_code.append("v_rcp_f32 v%d, v%d" % (GT + k, GT + k))
    for tau in range(3):
        gate_code.append("v_cvt_pk_bf16_f32 v%d, v%d, v%d" % (128 + 2 * tau, 4 * tau, 4 * tau + 1))
        gate_code.append("v_cvt_pk_bf16_f32 v%d, v%d, v%d" % (129 + 2 * tau, 4 * tau + 2, 4 * tau + 3))
    for rr in range(4): gate_code.append("v_mov_b32 v%d, v%d" % (124 + rr, GT + 8 + rr))
    for rr in range(4): gate_code.append("v_mov_b32_dpp v%d, v%d row_shr:8 row_mask:0xf bank_mask:0xc" % (124 + rr, GT + 8 + rr))
    for n in range(len(seq)):
        wk, acc, off, ks, first = seq[n]
        if wk != lastw:
            e("s_waitcnt vmcnt(%d)" % (19 - wk)); lastw = wk
        left = min(AHEAD, len(seq) - n) - 1
        e("s_waitcnt lgkmcnt(%d)" % left)
        r = RING + 4 * (n % NR)
        e("v_mfma_f32_16x16x32_bf16 v[%d:%d], v[%d:%d], v[%d:%d], %s" %
          (acc, acc + 3, WF + 4 * wk, WF + 4 * wk + 3, r, r + 3, "0" if first else "v[%d:%d]" % (acc, acc + 3)))
        if n + AHEAD < len(seq): rd(n + AHEAD)
        if n >= 24 + 10 and gate_code:
            e(gate_code.pop(0))
    assert not gate_code
    stamp()
    e("global_store_dwordx2 v%d, v[128:129], s[12:13]" % VO[0])
    e("global_store_dwordx2 v%d, v[130:131], s[12:13]" % VO[1])
    e("s_not_b64 exec, s[52:53]")
    e("global_store_dwordx2 v%d, v[132:133], s[12:13]" % VO[2])
    e("s_mov_b64 exec, -1")
    e("s_nop 4")
    for tl in range(8):
        a = 12 + 4 * tl
        if tl < 6: i = tl // 2; tau = tl % 2; g = GT + 4 * tau; vo = VO[tau]; off = 256 * (i + 1)
        elif tl == 6: g = 124; vo = VOX; off = 256
        else: g = GT + 8; vo = VO[2]; off = 768
        for rr in range(4):
            e("v_mul_f32 v%d, v%d, v%d" % (a + rr, a + rr, g + rr))
        e("v_cvt_pk_bf16_f32 v%d, v%d, v%d" % (a, a, a + 1))
        e("v_cvt_pk_bf16_f32 v%d, v%d, v%d" % (a + 1, a + 2, a + 3))
        if tl == 7: e("s_not_b64 exec, s[52:53]")
        e("global_store_dwordx2 v%d, v[%d:%d], s[12:13] offset:%d" % (vo, a, a + 1, off))
    if DIAG: e("s_waitcnt vmcnt(0)")
    dump_stamps("s[14:15]", "s17", 1 << 20, 140)
    lab("L2_end")
    e("s_endpgm")

header()
k1()
k2()
out.append('.section .rodata,"a"')
kdesc("gstp_bin_kernel", 64, 96 if DIAG else 32)
kdesc("gstp_main_kernel", 256, 96 if DIAG else 64)
open(sys.argv[1], "w").write("\n".join(out) + "\n")
```

```python
import sys
NAME = "gather_scatter__tensor_product_equiv_equiformer__graph"
OPT = dict(a.split('=') for a in sys.argv[2:]) if len(sys.argv) > 2 else {}
def opt(k, d): return type(d)(OPT.get(k, d))

N = 10000; E = 320000
NB = 250; NPB = 40
G = 250; CH = 1280
WS_REC = 0
WS_TAB = 4 << 20
WS_WF = 5 << 20
U = 10
OOB = 0x7F000000
NPH = opt("nph", 5)
PHMUL = {5: 0x8312, 6: 0x9d49, 7: 0xb780, 8: 0xd1b7}[NPH]
L_OFFS = 0; OFFS_STRIDE = 256
L_COEF = 10240; COEF_STRIDE = 640
L_FLAG = 36864
L_F = 37888
L_CNT = L_F
L_ST = L_F + 2048
L_F0 = L_F; L_F1 = L_F + 3 * 8192
LDS_MAIN = L_F + 122880

out = []
def e(s): out.append("    " + s)
def lab(s): out.append(s + ":")
def c(s): out.append("    ; " + s)

def header():
    ref = open("cdna_kernels/%s.s.ref" % NAME).read().split("\n")
    for l in ref:
        if l.startswith("; Override") : break
        out.append(l)
    out.append("; @launch kernel=gstp_bin_kernel grid=(%d,1,1) block=(384,1,1) lds=6144" % G)
    out.append("; @launch kernel=gstp_main_kernel grid=(%d,1,1) block=(512,1,1) lds=%d" % (NB, LDS_MAIN))
    out.append('.amdgcn_target "amdgcn-amd-amdhsa--gfx950"')
    out.append(".text")

def kstart(name):
    out.append(".globl %s" % name)
    out.append(".p2align 8")
    out.append(".type %s,@function" % name)
    lab(name)

def kdesc(name, vgpr, sgpr):
    out.append(".p2align 6")
    out.append(".amdhsa_kernel %s" % name)
    out.append("  .amdhsa_next_free_vgpr %d" % vgpr)
    out.append("  .amdhsa_next_free_sgpr %d" % sgpr)
    out.append("  .amdhsa_accum_offset %d" % ((vgpr + 3) // 4 * 4))
    out.append("  .amdhsa_group_segment_fixed_size 0")
    out.append("  .amdhsa_kernarg_size 96")
    out.append("  .amdhsa_user_sgpr_count 2")
    out.append("  .amdhsa_user_sgpr_kernarg_segment_ptr 1")
    out.append("  .amdhsa_system_sgpr_workgroup_id_x 1")
    out.append(".end_amdhsa_kernel")

DIAG = opt("diag", 0)
WS_DBG = 8 << 20
nstamp = [0]
def stamp():
    if not DIAG: return
    k = nstamp[0]; nstamp[0] += 1
    e("s_memrealtime s[%d:%d]" % (64 + 2 * k, 65 + 2 * k))
    if k == 0: e("s_memtime s[92:93]")
    e("s_waitcnt lgkmcnt(0)")
def dump_stamps(ws, swave, base, vt):
    if not DIAG: return
    e("s_memtime s[90:91]")
    stamp()
    e("s_mov_b64 exec, -1")
    e("v_mov_b32 v%d, 0" % vt)
    e("s_sub_u32 s90, s90, s92")
    e("v_writelane_b32 v%d, s90, 14" % vt)
    for k in range(nstamp[0]):
        e("v_writelane_b32 v%d, s%d, %d" % (vt, 64 + 2 * k, k))
    e("s_getreg_b32 s62, hwreg(HW_REG_XCC_ID)")
    e("v_writelane_b32 v%d, s62, 15" % vt)
    e("s_lshl_b32 s62, s2, 3")
    e("s_add_u32 s62, s62, %s" % swave)
    e("s_lshl_b32 s62, s62, 6")
    e("s_add_u32 s62, s62, %d" % (WS_DBG + base))
    e("v_mbcnt_lo_u32_b32 v%d, -1, 0" % (vt + 1))
    e("v_lshl_add_u32 v%d, v%d, 2, s62" % (vt + 1, vt + 1))
    e("s_mov_b64 exec, 0xffff")
    e("global_store_dword v%d, v%d, %s" % (vt + 1, vt, ws))
    nstamp[0] = 0

def wave_scan(v):
    for sh in (1, 2, 4, 8):
        e("s_nop 1")
        e("v_add_u32_dpp %s, %s, %s row_shr:%d row_mask:0xf bank_mask:0xf bound_ctrl:0" % (v, v, v, sh))
    e("s_nop 1")
    e("v_add_u32_dpp %s, %s, %s row_bcast:15 row_mask:0xa bank_mask:0xf" % (v, v, v))
    e("s_nop 1")
    e("v_add_u32_dpp %s, %s, %s row_bcast:31 row_mask:0xc bank_mask:0xf" % (v, v, v))

def k1():
    kstart("gstp_bin_kernel")
    e("s_cmp_ge_u32 s2, %d" % G)
    e("s_cbranch_scc1 L1_end")
    e("s_load_dwordx16 s[4:19], s[0:1], 0")
    e("s_load_dwordx2 s[20:21], s[0:1], 88")
    e("v_lshrrev_b32 v4, 6, v0")
    e("s_nop 0")
    e("v_readfirstlane_b32 s3, v4")
    e("s_cmp_eq_u32 s3, 5")
    e("s_cbranch_scc1 L1_help")
    stamp()
    if opt("dbgp", 0): e("s_memrealtime s[36:37]")
    e("s_mul_i32 s22, s2, %d" % (CH * 4))
    e("s_mul_i32 s23, s2, %d" % (CH * 6))
    e("s_mul_i32 s24, s2, %d" % (CH * 2))
    e("v_lshl_add_u32 v1, v0, 4, s22")
    e("v_mul_u32_u24 v2, 24, v0")
    e("v_add_u32 v2, s23, v2")
    e("v_lshl_add_u32 v3, v0, 3, s24")
    e("v_lshlrev_b32 v4, 2, v0")
    e("v_mov_b32 v5, 0")
    e("ds_write_b32 v4, v5")
    e("s_waitcnt lgkmcnt(0)")
    e("global_load_dwordx4 v[8:11], v1, s[12:13]")
    e("global_load_dwordx4 v[12:15], v1, s[10:11]")
    e("global_load_dwordx4 v[16:19], v2, s[6:7]")
    e("global_load_dwordx2 v[20:21], v2, s[6:7] offset:16")
    e("global_load_dwordx2 v[22:23], v3, s[8:9]")
    e("v_mov_b32 v5, 1")
    KP = opt("k1pf", 0)
    if KP:
        e("s_mul_i32 s28, s2, 40960")
        e("v_lshl_add_u32 v65, v0, 7, s28")
    e("s_barrier")
    if KP: e("global_load_dword v64, v65, s[4:5]")
    if KP == 2: e("global_load_dword v64, v65, s[4:5] offset:64")
    stamp()
    e("s_waitcnt vmcnt(%d)" % (4 + KP))
    stamp()
    for k in range(4):
        e("v_mul_u32_u24 v%d, 0xcccd, v%d" % (24 + k, 8 + k))
        e("v_lshrrev_b32 v%d, 21, v%d" % (24 + k, 24 + k))
        e("v_mul_u32_u24 v6, 40, v%d" % (24 + k))
        e("v_sub_u32 v%d, v%d, v6" % (8 + k, 8 + k))
        e("v_lshlrev_b32 v%d, 2, v%d" % (24 + k, 24 + k))
        e("ds_add_rtn_u32 v%d, v%d, v5" % (28 + k, 24 + k))
    e("s_waitcnt vmcnt(%d)" % (3 + KP))
    for k in range(4):
        e("v_mul_u32_u24 v6, 0x%x, v%d" % (PHMUL, 12 + k))
        if opt("shift", 1):
            e("v_mul_u32_u24 v7, 52, v%d" % (8 + k))
            e("v_lshrrev_b32 v7, 8, v7")
            e("v_mul_u32_u24 v7, 5, v7")
            e("v_sub_u32 v7, v%d, v7" % (8 + k))
            e("v_mul_u32_u24 v7, %d, v7" % ((1 << 26) // 5))
            e("v_sub_u32 v6, v6, v7")
            e("v_add_u32 v6, %d, v6" % (2 * ((1 << 26) // 5)))
            e("v_ashrrev_i32 v6, 26, v6")
            e("v_med3_i32 v6, v6, 0, %d" % (NPH - 1))
        else:
            e("v_lshrrev_b32 v6, 26, v6")
        e("v_lshl_add_u32 v6, v%d, 3, v6" % (8 + k))
        e("v_lshl_or_b32 v%d, v%d, 10, v6" % (34 + 4 * k, 12 + k))
    e("s_waitcnt vmcnt(%d)" % KP)
    if opt("dbgp", 0): e("s_memrealtime s[38:39]")
    stamp()
    def unpack(dst, idx, base):
        r = base + idx // 2
        if idx % 2 == 0: e("v_lshlrev_b32 %s, 16, v%d" % (dst, r))
        else: e("v_and_b32 %s, 0xffff0000, v%d" % (dst, r))
    for k in range(4):
        unpack("v48", k, 22)
        for j in range(3):
            unpack("v%d" % (49 + j), 3 * k + j, 16)
        for j in range(3):
            e("v_mul_f32 v%d, v48, v%d" % (49 + j, 49 + j))
        e("v_cvt_pk_bf16_f32 v%d, v48, v49" % (32 + 4 * k))
        e("v_cvt_pk_bf16_f32 v%d, v50, v51" % (33 + 4 * k))
    e("s_waitcnt lgkmcnt(0)")
    e("s_barrier")
    stamp()
    e("v_and_b32 v4, 63, v0")
    e("v_lshlrev_b32 v4, 4, v4")
    e("ds_read_b128 v[52:55], v4")
    e("s_add_u32 s25, s3, 1")
    e("s_lshl_b32 s25, s25, 10")
    e("s_waitcnt lgkmcnt(0)")
    e("v_add_u32 v57, v52, v53")
    e("v_add_u32 v58, v57, v54")
    e("v_add_u32 v59, v58, v55")
    e("v_mov_b32 v60, v59")
    wave_scan("v60")
    e("v_sub_u32 v60, v60, v59")
    e("v_add_u32 v61, v60, v52")
    e("v_add_u32 v62, v60, v57")
    e("v_add_u32 v63, v60, v58")
    e("v_add_u32 v7, s25, v4")
    e("ds_write_b128 v7, v[60:63]")
    for k in range(4):
        e("v_add_u32 v%d, s25, v%d" % (24 + k, 24 + k))
    e("s_waitcnt lgkmcnt(0)")
    for k in range(4):
        e("ds_read_b32 v%d, v%d" % (24 + k, 24 + k))
    e("s_cmp_lg_u32 s3, 0")
    e("s_cbranch_scc1 L1_notab")
    for k in range(4):
        e("v_lshl_or_b32 v%d, v%d, 16, v%d" % (60 + k, 52 + k, 60 + k))
    e("s_lshl_b32 s26, s2, 10")
    e("s_add_u32 s26, s26, %d" % WS_TAB)
    e("v_add_u32 v7, s26, v4")
    e("global_store_dwordx4 v7, v[60:63], s[20:21]")
    lab("L1_notab")
    e("s_mul_i32 s26, s2, %d" % (CH * 12))
    e("s_add_u32 s26, s26, %d" % WS_REC)
    e("v_mov_b32 v6, s26")
    e("s_waitcnt lgkmcnt(0)")
    for k in range(4):
        e("v_add_u32 v%d, v%d, v%d" % (24 + k, 24 + k, 28 + k))
        e("v_mad_u32_u24 v%d, v%d, 12, v6" % (24 + k, 24 + k))
        e("global_store_dwordx3 v%d, v[%d:%d], s[20:21]" % (24 + k, 32 + 4 * k, 34 + 4 * k))
    stamp()
    for _ in range(opt("k1sleep", 0)): e("s_sleep 33")
    if DIAG: e("s_waitcnt vmcnt(0)")
    if opt("dbgp", 0):
        e("s_waitcnt vmcnt(0)")
        e("s_memrealtime s[40:41]")
        e("s_load_dwordx2 s[42:43], s[0:1], 80")
        e("s_waitcnt lgkmcnt(0)")
        e("s_and_b32 s44, s2, 31")
        e("s_or_b32 s44, s44, s3")
        e("s_cmp_lg_u32 s44, 0")
        e("s_cbranch_scc1 L1_end")
        e("s_sub_u32 s40, s40, s36")
        e("s_sub_u32 s38, s38, s36")
        e("v_mov_b32 v4, s38")
        e("v_mov_b32 v5, s40")
        e("s_lshr_b32 s44, s2, 5")
        e("s_lshl_b32 s44, s44, 3")
        e("v_mov_b32 v6, s44")
        e("s_mov_b64 exec, 1")
        e("global_store_dwordx2 v6, v[4:5], s[42:43]")
    dump_stamps("s[20:21]", "s3", 0, 4)
    e("s_endpgm")
    lab("L1_help")
    e("v_and_b32 v1, 63, v0")
    e("s_waitcnt lgkmcnt(0)")
    e("s_cmp_ge_u32 s2, 160")
    e("s_cbranch_scc1 L1_now")
    e("s_mul_i32 s22, s2, 3277")
    e("s_lshr_b32 s22, s22, 16")
    e("s_mul_i32 s23, s22, 20")
    e("s_sub_u32 s23, s2, s23")
    e("s_cmp_lt_u32 s23, 8")
    e("s_cselect_b64 s[24:25], s[16:17], s[18:19]")
    e("s_cselect_b32 s26, 0, 8")
    e("s_sub_u32 s26, s23, s26")
    e("s_lshl_b32 s26, s26, 13")
    e("s_lshl_b32 s27, s22, 5")
    e("s_add_u32 s26, s26, s27")
    e("v_lshrrev_b32 v2, 4, v1")
    e("v_and_b32 v3, 15, v1")
    e("v_lshlrev_b32 v4, 11, v2")
    e("v_lshl_add_u32 v4, v3, 1, v4")
    e("v_add_u32 v4, s26, v4")
    e("s_lshl_b32 s27, s23, 6")
    e("v_lshl_add_u32 v5, v2, 4, s27")
    e("global_load_dwordx4 v[16:19], v5, s[14:15]")
    for i in range(8):
        e("global_load_ushort v%d, v4, s[24:25] offset:%d" % (8 + i, 256 * i))
    lab("L1_now")
    e("s_barrier")
    e("s_barrier")
    if opt("prefetch", 1):
        e("s_mul_i32 s28, s2, 40960")
        e("v_lshl_add_u32 v6, v1, 4, s28")
        for i in range(10):
            for j in range(4):
                e("global_load_dwordx4 v[40:43], v6, s[4:5] offset:%d" % (1024 * j))
            if i < 9: e("v_add_u32 v6, 4096, v6")
        nx = 40
    else:
        nx = 0
    e("s_cmp_ge_u32 s2, 160")
    e("s_cbranch_scc1 L1_end")
    e("s_waitcnt vmcnt(%d)" % nx)
    for i in range(8):
        e("v_lshlrev_b32 v%d, 16, v%d" % (8 + i, 8 + i))
        unpack("v20", i, 16)
        e("v_mul_f32 v%d, v20, v%d" % (8 + i, 8 + i))
    for i in range(4):
        e("v_cvt_pk_bf16_f32 v%d, v%d, v%d" % (24 + i, 8 + 2 * i, 9 + 2 * i))
    e("s_lshl_b32 s26, s2, 10")
    e("s_add_u32 s26, s26, %d" % WS_WF)
    e("v_lshl_add_u32 v7, v1, 4, s26")
    e("global_store_dwordx4 v7, v[24:27], s[20:21]")
    lab("L1_end")
    e("s_endpgm")

ACC = 0; LB = [160, 192]; BT = [224, 228]; AF = [232, 236]; VOFF = 240
LC = 245; VCA = 246; PSEL = 247; RB = 249; REM = 250; PEND = 251; TID = 252
SL = 54
SO = 20
SM = 28
def rec(i): return 160 + 4 * i
def kad(i): return 200 + i
T0 = 210
MSK = 20
def msk(i): return "s[%d:%d]" % (MSK + 2 * i, MSK + 2 * i + 1)

def k2():
    kstart("gstp_main_kernel")
    e("s_cmp_ge_u32 s2, %d" % NB)
    e("s_cbranch_scc1 L2_end")
    e("s_load_dwordx2 s[8:9], s[0:1], 0")
    e("s_load_dwordx2 s[12:13], s[0:1], 72")
    e("s_load_dwordx2 s[14:15], s[0:1], 88")
    stamp()
    e("v_mov_b32 v%d, v0" % TID)
    e("v_lshrrev_b32 v%d, 6, v0" % T0)
    e("s_and_b32 s4, s2, 7")
    e("s_lshr_b32 s5, s2, 3")
    e("s_mul_i32 s16, s4, 31")
    e("s_min_u32 s4, s4, 2")
    e("s_add_u32 s16, s16, s4")
    e("s_add_u32 s16, s16, s5")
    e("v_readfirstlane_b32 s17, v%d" % T0)
    e("v_lshrrev_b32 v%d, 1, v0" % (T0 + 1))
    e("v_min_u32 v%d, %d, v%d" % (T0 + 1, G - 1, T0 + 1))
    e("s_lshl_b32 s4, s16, 2")
    e("s_add_u32 s4, s4, %d" % WS_TAB)
    e("v_lshl_add_u32 v%d, v%d, 10, s4" % (T0 + 2, T0 + 1))
    e("s_waitcnt lgkmcnt(0)")
    e("global_load_dword v%d, v%d, s[14:15]" % (T0 + 3, T0 + 2))
    e("s_mov_b32 s10, %d" % (N * 1024))
    e("s_mov_b32 s11, 0x20000")
    if opt("prio", 0): e("s_setprio 3")
    e("s_mov_b32 s18, 0x05040100")
    e("s_mov_b32 s19, 0x07060302")
    e("v_and_b32 v%d, 63, v0" % LC)
    e("v_lshlrev_b32 v%d, 4, v%d" % (LC, LC))
    tab = {(0, 0): 0, (1, 1): 1, (1, 2): 2, (1, 3): 3,
           (4, 0): 1, (5, 1): 0, (6, 3): 2, (7, 2): 3,
           (8, 0): 2, (9, 2): 0, (10, 1): 3, (11, 3): 1,
           (12, 0): 3, (13, 3): 0, (14, 2): 1, (15, 1): 2}
    e("v_mov_b32 v%d, 64" % PSEL)
    for p_ in range(4):
        m_ = 0
        for (m, q), v in tab.items():
            if v == p_: m_ |= 1 << (16 * q + m)
        e("s_mov_b32 exec_lo, 0x%x" % (m_ & 0xffffffff))
        e("s_mov_b32 exec_hi, 0x%x" % (m_ >> 32))
        e("v_mov_b32 v%d, %d" % (PSEL, 16 * p_))
    e("s_mov_b64 exec, -1")
    for r in range(160):
        e("v_mov_b32 v%d, 0" % r)
    e("s_mul_i32 s42, s17, 1280")
    e("s_add_u32 s42, s42, %d" % L_ST)
    e("s_waitcnt vmcnt(0)")
    stamp()
    t = T0
    e("v_and_b32 v%d, 1, v%d" % (t + 4, TID))
    e("v_and_b32 v%d, 0xffff, v%d" % (t + 5, t + 3))
    e("v_lshrrev_b32 v%d, 16, v%d" % (REM, t + 3))
    e("v_cmp_gt_u32 vcc, %d, v%d" % (2 * G, TID))
    e("v_mul_u32_u24 v%d, %d, v%d" % (t + 6, CH, t + 1))
    e("v_cndmask_b32 v%d, 0, v%d, vcc" % (REM, REM))
    e("v_add3_u32 v%d, v%d, v%d, v%d" % (t + 6, t + 6, t + 5, t + 4))
    e("v_mul_u32_u24 v%d, 12, v%d" % (RB, t + 6))
    if WS_REC: e("v_add_u32 v%d, %d, v%d" % (RB, WS_REC, RB))
    e("v_sub_u32 v%d, v%d, v%d" % (REM, REM, t + 4))
    lab("L2_batch")
    e("v_add_u32 v%d, 1, v%d" % (t, REM))
    e("v_ashrrev_i32 v%d, 1, v%d" % (t, t))
    e("v_max_i32 v%d, 0, v%d" % (t, t))
    e("v_min_i32 v%d, %d, v%d" % (t, U, t))
    e("v_lshlrev_b32 v%d, v%d, 1" % (PEND, t) if False else "v_mov_b32 v%d, 1" % (t + 1))
    e("v_lshlrev_b32 v%d, v%d, v%d" % (PEND, t, t + 1))
    e("v_add_u32 v%d, -1, v%d" % (PEND, PEND))
    lab("L2_pass")
    for i in range(U):
        e("v_and_b32 v%d, %d, v%d" % (t + (i & 1), 1 << i, PEND))
        e("v_cmp_ne_u32 %s, 0, v%d" % (msk(i), t + (i & 1)))
    for i in range(U):
        e("s_mov_b64 exec, %s" % msk(i))
        e("global_load_dwordx3 v[%d:%d], v%d, s[14:15] offset:%d" % (rec(i), rec(i) + 2, RB, 24 * i))
    e("s_mov_b64 exec, -1")
    z = T0 + 2
    for k in range(4): e("v_mov_b32 v%d, 0" % (z + k))
    for k in range(4): e("v_mov_b32 v%d, 0x%x" % (z + 4 + k, OOB))
    e("v_lshlrev_b32 v%d, 4, v%d" % (t, TID))
    e("v_lshlrev_b32 v%d, 3, v%d" % (t + 1, TID))
    e("v_lshlrev_b32 v%d, 2, v%d" % (t + 10, TID))
    e("ds_write_b128 v%d, v[%d:%d] offset:%d" % (t, z + 4, z + 7, L_OFFS))
    e("ds_write_b32 v%d, v%d offset:%d" % (t + 10, z + 4, L_OFFS + 8192))
    for k in range(3):
        e("ds_write_b128 v%d, v[%d:%d] offset:%d" % (t, z, z + 3, L_COEF + 8192 * k))
    e("ds_write_b32 v%d, v%d offset:%d" % (t + 10, z, L_COEF + 24576))
    e("v_lshlrev_b32 v%d, 2, v%d" % (t + 10, TID))
    e("ds_write_b32 v%d, v%d offset:%d" % (t + 10, z, L_CNT))
    e("s_mov_b64 exec, 1")
    e("ds_write_b64 v%d, v[%d:%d] offset:%d" % (z, z, z + 1, L_FLAG))
    e("s_mov_b64 exec, -1")
    one = T0 + 11
    e("v_mov_b32 v%d, 1" % one)
    e("s_waitcnt lgkmcnt(0)")
    e("s_barrier")
    for i in range(U):
        e("s_waitcnt vmcnt(%d)" % (U - 1 - i))
        e("s_mov_b64 exec, %s" % msk(i))
        e("v_and_b32 v%d, 0x3ff, v%d" % (kad(i), rec(i) + 2))
        e("v_lshlrev_b32 v%d, 2, v%d" % (kad(i), kad(i)))
        e("ds_add_rtn_u32 v%d, v%d, v%d offset:%d" % (rec(i) + 3, kad(i), one, L_CNT))
    e("s_mov_b64 exec, -1")
    e("s_waitcnt lgkmcnt(0)")
    e("s_barrier")
    stamp()
    PF1 = opt("pf1", 0); PF2 = opt("pf2", 0)
    NPF = PF1 + PF2
    if NPF:
        e("s_lshr_b32 s4, s2, 3")
        e("s_lshl_b32 s4, s4, 3")
        e("s_add_u32 s4, s4, s17")
        e("s_lshl_b32 s4, s4, 10")
        for k in range(PF1):
            e("buffer_load_dwordx4 v[%d:%d], v%d, s[8:11], s4 offen" % (BT[0], BT[0] + 3, LC))
            e("s_add_u32 s4, s4, %d" % (256 * 1024))
        e("s_lshl_b32 s4, s2, 3")
        e("s_add_u32 s4, s4, s17")
        e("s_add_u32 s4, s4, %d" % (256 * PF1))
        e("s_lshl_b32 s4, s4, 10")
        for k in range(PF2):
            e("buffer_load_dwordx4 v[%d:%d], v%d, s[8:11], s4 offen" % (BT[0], BT[0] + 3, LC))
            e("s_add_u32 s4, s4, %d" % (2000 * 1024))
    cc = 212
    e("v_and_b32 v%d, 63, v%d" % (t, TID))
    e("v_lshlrev_b32 v%d, 5, v%d" % (t, t))
    e("v_cmp_gt_u32 vcc, %d, v%d" % (NPB * 32, t))
    e("s_and_b64 exec, exec, vcc")
    e("ds_read_b128 v[%d:%d], v%d offset:%d" % (cc, cc + 3, t, L_CNT))
    e("ds_read_b128 v[%d:%d], v%d offset:%d" % (cc + 4, cc + 7, t, L_CNT + 16))
    tot = 220; lim = 221; tmp = 222; en = 223
    f = 228
    e("s_waitcnt lgkmcnt(0)")
    e("v_add_u32 v%d, v%d, v%d" % (tot, cc, cc + 1))
    for k in range(2, NPH):
        e("v_add_u32 v%d, v%d, v%d" % (tot, tot, cc + k))
    e("v_add_u32 v%d, 7, v%d" % (lim, tot))
    e("v_and_b32 v%d, -8, v%d" % (lim, lim))
    e("v_max_u32 v%d, %d, v%d" % (lim, 8 * NPH, lim))
    e("v_sub_u32 v%d, v%d, v%d" % (lim, lim, tot))
    e("v_mov_b32 v%d, 0" % f)
    e("v_mov_b32 v%d, v%d" % (en, cc))
    for k in range(1, NPH):
        e("v_add_u32 v%d, v%d, v%d" % (lim, lim, cc + k - 1))
        e("v_and_b32 v%d, -8, v%d" % (tmp, lim))
        e("v_min_u32 v%d, %d, v%d" % (tmp, 8 * k, tmp))
        e("v_max_u32 v%d, v%d, v%d" % (f + k, tmp, en))
        e("v_add_u32 v%d, v%d, v%d" % (en, f + k, cc + k))
    e("v_add_u32 v%d, s42, v%d" % (t, t))
    e("ds_write_b128 v%d, v[%d:%d]" % (t, f, f + 3))
    e("ds_write_b128 v%d, v[%d:%d] offset:16" % (t, f + 4, f + 7))
    if opt("bar", 0):
        e("s_mov_b32 s41, 1")
        for k in range(1, 8):
            e("v_cmp_lt_u32 vcc, %d, v%d" % (8 * k, en))
            e("s_cmp_lg_u64 vcc, 0")
            e("s_addc_u32 s41, s41, 0")
    e("s_mov_b64 exec, -1")
    e("s_waitcnt lgkmcnt(0)")
    st = 228
    for i in range(U):
        e("s_mov_b64 exec, %s" % msk(i))
        e("v_add_u32 v%d, s42, v%d" % (st + i, kad(i)))
        e("ds_read_b32 v%d, v%d" % (st + i, st + i))
    e("s_movk_i32 s4, %d" % COEF_STRIDE)
    e("s_movk_i32 s5, 80")
    e("s_waitcnt lgkmcnt(0)")
    for i in range(U):
        sl = rec(i) + 3
        a = T0 + 4 * (i & 1)
        e("s_mov_b64 exec, %s" % msk(i))
        e("s_cbranch_execz L2_pl%d" % i)
        e("v_add_u32 v%d, v%d, v%d" % (sl, sl, st + i))
        e("v_cmp_gt_u32 vcc, 64, v%d" % sl)
        e("s_and_b64 exec, exec, vcc")
        e("v_lshrrev_b32 v%d, 5, v%d" % (a, kad(i)))
        e("v_lshrrev_b32 v%d, 3, v%d" % (a + 1, sl))
        e("v_and_b32 v%d, 7, v%d" % (a + 2, sl))
        e("v_lshlrev_b32 v%d, 1, v%d" % (a + 2, a + 2))
        e("v_mad_u32_u24 v%d, v%d, s5, v%d" % (a + 2, a + 1, a + 2))
        e("v_mad_u32_u24 v%d, v%d, s4, v%d" % (a + 2, a, a + 2))
        e("v_lshl_add_u32 v%d, v%d, 6, v%d" % (a, a, sl))
        e("v_lshlrev_b32 v%d, 2, v%d" % (a, a))
        e("v_and_b32 v%d, 0x%x, v%d" % (rec(i) + 2, 0xffc00 if opt("small", 0) else 0xfffffc00, rec(i) + 2))
        e("ds_write_b32 v%d, v%d offset:%d" % (a, rec(i) + 2, L_OFFS))
        e("ds_write_b16 v%d, v%d offset:%d" % (a + 2, rec(i), L_COEF))
        e("ds_write_b16_d16_hi v%d, v%d offset:%d" % (a + 2, rec(i), L_COEF + 16))
        e("ds_write_b16 v%d, v%d offset:%d" % (a + 2, rec(i) + 1, L_COEF + 32))
        e("ds_write_b16_d16_hi v%d, v%d offset:%d" % (a + 2, rec(i) + 1, L_COEF + 48))
        e("v_and_b32 v%d, 0x%x, v%d" % (PEND, 0xffffffff ^ (1 << i), PEND))
        lab("L2_pl%d" % i)
    e("s_mov_b64 exec, -1")
    e("v_mov_b32 v%d, 0" % t)
    e("v_mov_b32 v%d, 1" % (t + 1))
    e("v_cmp_ne_u32 vcc, 0, v%d" % PEND)
    e("s_mov_b64 exec, vcc")
    e("ds_write_b32 v%d, v%d offset:%d" % (t, t + 1, L_FLAG))
    e("s_mov_b64 exec, -1")
    e("v_cmp_lt_i32 vcc, %d, v%d" % (2 * U, REM))
    e("s_mov_b64 exec, vcc")
    e("ds_write_b32 v%d, v%d offset:%d" % (t, t + 1, L_FLAG + 4))
    e("s_mov_b64 exec, -1")
    e("s_mul_i32 s4, s17, %d" % (5 * OFFS_STRIDE))
    e("s_mul_i32 s5, s17, %d" % (5 * COEF_STRIDE))
    e("v_lshrrev_b32 v%d, 2, v%d" % (t + 4, LC))
    e("v_add_u32 v%d, s4, v%d" % (t + 4, t + 4))
    e("v_add_u32 v%d, s5, v%d" % (VCA, PSEL))
    for k in range(8): e("s_mov_b32 s%d, %d" % (SL + k, k))
    e("s_waitcnt lgkmcnt(0)")
    e("s_barrier")
    stamp()
    e("ds_read_b64 v[%d:%d], v%d offset:%d" % (t + 2, t + 3, t, L_FLAG))
    for u in range(5):
        e("ds_read_b32 v%d, v%d offset:%d" % (VOFF + u, t + 4, L_OFFS + u * OFFS_STRIDE))
    def coff(g): return L_COEF + (g % 5) * COEF_STRIDE + (g // 5) * 80
    e("ds_read_b128 v[%d:%d], v%d offset:%d" % (AF[0], AF[0] + 3, VCA, coff(0)))
    e("s_waitcnt lgkmcnt(0)")
    e("v_readfirstlane_b32 s44, v%d" % (t + 2))
    e("v_readfirstlane_b32 s45, v%d" % (t + 3))
    for u in range(5):
        e("v_cmp_gt_u32 s[%d:%d], s10, v%d" % (SM + 2 * u, SM + 2 * u + 1, VOFF + u))
    for r in range(LB[0], LB[0] + 64): e("v_mov_b32 v%d, 0" % r)
    e("s_or_b64 s[4:5], s[%d:%d], s[%d:%d]" % (SM, SM + 1, SM + 2, SM + 3))
    for u in range(2, 5):
        e("s_or_b64 s[4:5], s[4:5], s[%d:%d]" % (SM + 2 * u, SM + 2 * u + 1))
    if opt("bar", 0):
        e("s_mov_b32 s40, s41")
    else:
        e("s_cbranch_scc0 L2_swept")
        e("s_flbit_i32_b64 s40, s[4:5]")
        e("s_sub_u32 s40, 71, s40")
        e("s_lshr_b32 s40, s40, 3")
    if opt("prio", 0) == 2:
        e("s_cmp_lt_u32 s17, 4")
        e("s_cselect_b32 s41, 1, 0")
    NC = [38, 39]
    lid = [0]
    def readl(u):
        return ["v_readlane_b32 s%d, v%d, s%d" % (SO + k, VOFF + u, SL + k) for k in range(8)]
    def count(u, buf):
        m = SM + 2 * u
        e("s_and_b32 s%d, s%d, 0xff" % (NC[buf], m))
        e("s_bcnt1_i32_b32 s%d, s%d" % (NC[buf], NC[buf]))
        e("s_lshr_b64 s[%d:%d], s[%d:%d], 8" % (m, m + 1, m, m + 1))
    def ladder(buf, wait=True):
        n = lid[0]; lid[0] += 1
        for i in range(8):
            e("s_cmp_le_u32 s%d, %d" % (NC[buf], i))
            e("s_cbranch_scc1 L2_w%d_%d" % (n, i if wait else 8))
            e("buffer_load_dwordx4 v[%d:%d], v%d, s[8:11], s%d offen" %
              (LB[buf] + 4 * i, LB[buf] + 4 * i + 3, LC, SO + i))
        if wait:
            e("s_branch L2_w%d_8" % n)
            for i in range(8):
                lab("L2_w%d_%d" % (n, i))
                e("s_waitcnt vmcnt(%d)" % i)
        lab("L2_w%d_8" % n)
        if wait: e("s_waitcnt vmcnt(8)")
    for x in readl(0): e(x)
    count(0, 0)
    e("s_nop 1")
    ladder(0, False)
    for x in readl(1): e(x)
    count(1, 1)
    e("s_nop 1")
    ladder(1)
    X = opt("x", "")
    out.append(".p2align 6")
    lab("L2_sweep")
    for g in range(10):
        u = g % 5; buf = g & 1; L = LB[buf]; A = AF[buf]
        u2 = (g + 2) % 5
        if u2 == 0:
            for k in range(8): e("s_add_u32 s%d, s%d, 8" % (SL + k, SL + k))
        rl = readl(u2)
        e("s_waitcnt lgkmcnt(0)")
        e("ds_read_b128 v[%d:%d], v%d offset:%d" % (AF[buf ^ 1], AF[buf ^ 1] + 3, VCA, coff(g + 1)))
        for x in rl: e(x)
        e("s_cmp_eq_u32 s%d, 0" % NC[buf])
        e("s_cbranch_scc1 L2_skip%d" % g)
        def P(j):
            if "P" in X: return
            d = j >> 1; s = "s19" if j & 1 else "s18"
            for tt in range(4):
                e("v_perm_b32 v%d, v%d, v%d, %s" % (BT[j & 1] + tt, L + 4 * (2 * tt + 1) + d, L + 4 * (2 * tt) + d, s))
        def M(j):
            if "M" in X: return
            a = ACC + 32 * u + 4 * j
            e("v_mfma_f32_16x16x32_bf16 v[%d:%d], v[%d:%d], v[%d:%d], v[%d:%d]" %
              (a, a + 3, A, A + 3, BT[j & 1], BT[j & 1] + 3, a, a + 3))
        P(0); P(1); M(0)
        for j in range(2, 8):
            P(j); M(j - 1)
        e("s_nop 0")
        M(7)
        lab("L2_skip%d" % g)
        count(u2, buf)
        if not opt("barw", 0) and (opt("bar", 0) == 1 or (opt("bar", 0) == 5 and u2 == 0)): e("s_barrier")
        if g == 4:
            e("s_sub_u32 s40, s40, 1")
        if g == 9:
            e("v_add_u32 v%d, 160, v%d" % (VCA, VCA))
            e("s_sub_u32 s40, s40, 1")
        ladder(buf)
        if opt("barw", 0) and (g + 1) % opt("bar", 0) == 0: e("s_barrier")
        if g in (4, 9):
            if opt("prio", 0) == 1:
                e("s_cmp_le_u32 s40, %d" % (NPH - 2)); e("s_cbranch_scc0 L2_pr%d" % g); e("s_setprio 2")
                e("s_cmp_le_u32 s40, %d" % (NPH - 3)); e("s_cbranch_scc0 L2_pr%d" % g); e("s_setprio 1")
                e("s_cmp_le_u32 s40, %d" % (NPH - 4)); e("s_cbranch_scc0 L2_pr%d" % g); e("s_setprio 0")
                lab("L2_pr%d" % g)
            if opt("prio", 0) == 2:
                e("s_add_u32 s41, s41, 1")
                e("s_cmp_ge_u32 s41, 2"); e("s_cbranch_scc0 L2_pr%d" % g); e("s_setprio 2")
                e("s_cmp_ge_u32 s41, 4"); e("s_cbranch_scc0 L2_pr%d" % g); e("s_setprio 1")
                e("s_cmp_ge_u32 s41, 6"); e("s_cbranch_scc0 L2_pr%d" % g); e("s_setprio 0")
                lab("L2_pr%d" % g)
            e("s_cmp_lg_u32 s40, 0")
            e("s_cbranch_scc0 L2_swept" if g == 4 else "s_cbranch_scc1 L2_sweep")
    lab("L2_swept")
    e("s_or_b32 s4, s44, s45")
    e("s_cmp_eq_u32 s4, 0")
    e("s_cbranch_scc1 L2_epi")
    e("s_waitcnt vmcnt(0) lgkmcnt(0)")
    e("s_barrier")
    e("s_cmp_lg_u32 s44, 0")
    e("s_cbranch_scc1 L2_pass")
    e("v_add_u32 v%d, %d, v%d" % (RB, 24 * U, RB))
    e("v_add_u32 v%d, %d, v%d" % (REM, -2 * U, REM))
    e("s_branch L2_batch")
    lab("L2_epi")
    stamp()
    WF = 160
    lane = 253
    e("s_waitcnt lgkmcnt(0)")
    e("v_and_b32 v%d, 63, v%d" % (lane, TID))
    e("v_lshlrev_b32 v%d, 4, v%d" % (254, lane))
    e("s_mul_i32 s4, s17, 20480")
    e("s_add_u32 s4, s4, %d" % (WS_WF + 4096))
    e("s_add_u32 s46, s14, s4")
    e("s_addc_u32 s47, s15, 0")
    for ks in range(20):
        if ks and ks % 8 == 0:
            e("s_add_u32 s46, s46, 8192")
            e("s_addc_u32 s47, s47, 0")
        e("global_load_dwordx4 v[%d:%d], v254, s[46:47] offset:%d" % (WF + 4 * ks, WF + 4 * ks + 3, (ks % 8) * 1024 - 4096))
    LA = 240; TS = 241; LBB = 242; SG = 243; SG2 = 244; ADR = 245; TMP = 246
    TA = [248, 164 if False else 248]
    e("v_lshrrev_b32 v%d, 4, v%d" % (TMP, lane))
    e("v_and_b32 v%d, 3, v%d" % (SG, lane))
    e("v_bfe_u32 v%d, v%d, 2, 2" % (ADR, lane))
    e("v_lshlrev_b32 v%d, 8, v%d" % (LA, SG))
    e("v_lshl_add_u32 v%d, v%d, 10, v%d" % (LA, ADR, LA))
    e("v_and_b32 v%d, 1, v%d" % (ADR, ADR))
    e("v_mul_u32_u24 v%d, 12, v%d" % (ADR, ADR))
    e("v_or_b32 v%d, v%d, v%d" % (SG, SG, ADR))
    e("v_lshlrev_b32 v%d, 4, v%d" % (SG, SG))
    e("v_mov_b32 v%d, v%d" % (SG2, SG))
    e("v_add_u32 v%d, %d, v%d" % (LBB, L_F0 + 16384, LA))
    e("v_mov_b32 v%d, 8192" % TS)
    e("v_mov_b32 v%d, v%d" % (TMP, LA))
    e("v_add_u32 v%d, %d, v%d" % (LA, L_F0, LA))
    for gp in range(1, 4):
        lo = 0xffff0000 if gp == 1 else 0
        hi = {1: 0, 2: 0x0000ffff, 3: 0xffff0000}[gp]
        e("s_mov_b32 exec_lo, 0x%x" % lo)
        e("s_mov_b32 exec_hi, 0x%x" % hi)
        e("v_add_u32 v%d, %d, v%d" % (LA, L_F1 + (gp - 1) * 24576, TMP))
        e("v_add_u32 v%d, %d, v%d" % (LBB, L_F1 + (7 if gp == 3 else 6) * 12288, TMP))
        e("v_mov_b32 v%d, 12288" % TS)
        if gp == 2: e("v_xor_b32 v%d, 128, v%d" % (SG2, SG2))
    e("s_mov_b64 exec, -1")
    e("s_mul_i32 s4, s17, 5")
    e("s_mov_b32 s48, 0xffff0000")
    e("s_mov_b32 s49, -1")
    TA0 = 248; TA1 = 252
    e("v_mov_b32 v%d, v%d" % (247, lane))
    lane = 247
    for u in range(5):
        A = ACC + 32 * u
        e("s_lshr_b32 s5, s4, 4")
        e("s_and_b32 s6, s4, 15")
        e("s_lshl_b32 s6, s6, 4")
        e("s_cmp_lt_u32 s4, 32")
        e("s_cselect_b64 s[50:51], -1, 0")
        e("v_mad_u32_u24 v%d, v%d, s5, v%d" % (ADR, TS, LA))
        e("v_cndmask_b32 v%d, v%d, v%d, s[50:51]" % (ADR, LBB, ADR))
        e("v_cndmask_b32 v%d, v%d, v%d, s[50:51]" % (TMP, SG2, SG))
        e("v_xor_b32 v%d, s6, v%d" % (TMP, TMP))
        e("v_add_u32 v%d, v%d, v%d" % (ADR, ADR, TMP))
        for dd in range(4):
            e("v_cvt_pk_bf16_f32 v%d, v%d, v%d" % (TA0 + dd, A + 8 * dd, A + 8 * dd + 4))
        e("ds_write_b128 v%d, v[%d:%d]" % (ADR, TA0, TA0 + 3))
        for dd in range(4):
            e("v_cvt_pk_bf16_f32 v%d, v%d, v%d" % (TA1 + dd, A + 8 * dd + 1, A + 8 * dd + 5))
        e("ds_write_b128 v%d, v[%d:%d] offset:4096" % (ADR, TA1, TA1 + 3))
        for j in range(8):
            e("v_sub_f32 v%d, v%d, v%d" % (A + 4 * j + 2, A + 4 * j + 2, A + 4 * j + 3))
        for dd in range(4):
            e("v_cvt_pk_bf16_f32 v%d, v%d, v%d" % (A + dd, A + 8 * dd + 2, A + 8 * dd + 6))
        e("s_mov_b64 exec, s[48:49]")
        e("ds_write_b128 v%d, v[%d:%d] offset:8192" % (ADR, A, A + 3))
        e("s_mov_b64 exec, -1")
        e("s_add_u32 s4, s4, 1")
    RA = [240, 241, 242, 243]
    e("s_waitcnt lgkmcnt(0)")
    e("v_lshrrev_b32 v%d, 4, v%d" % (TMP, lane))
    e("v_and_b32 v%d, 15, v%d" % (ADR, lane))
    e("v_xor_b32 v%d, v%d, v%d" % (RA[0], ADR, TMP))
    e("v_lshlrev_b32 v%d, 4, v%d" % (RA[0], RA[0]))
    e("v_lshl_add_u32 v%d, v%d, 8, v%d" % (RA[0], TMP, RA[0]))
    e("v_xor_b32 v%d, 0xc0, v%d" % (RA[1], RA[0]))
    e("v_add_u32 v%d, %d, v%d" % (RA[2], L_F + 65536, RA[0]))
    e("v_add_u32 v%d, %d, v%d" % (RA[3], L_F + 65536, RA[1]))
    e("v_add_u32 v%d, %d, v%d" % (RA[0], L_F, RA[0]))
    e("v_add_u32 v%d, %d, v%d" % (RA[1], L_F, RA[1]))
    VO = [248, 249, 250]; VOX = 251
    e("s_mul_i32 s4, s16, %d" % (NPB * 1024))
    e("s_lshl_b32 s5, s17, 5")
    e("s_add_u32 s4, s4, s5")
    e("v_lshlrev_b32 v%d, 10, v%d" % (VO[0], ADR))
    e("v_lshl_add_u32 v%d, v%d, 3, v%d" % (VO[0], TMP, VO[0]))
    e("v_add_u32 v%d, s4, v%d" % (VO[0], VO[0]))
    e("v_add_u32 v%d, 16384, v%d" % (VO[1], VO[0]))
    e("v_add_u32 v%d, 32768, v%d" % (VO[2], VO[0]))
    e("v_mov_b32 v%d, v%d" % (VOX, VO[2]))
    e("s_mov_b32 s52, 0xff00ff00")
    e("s_mov_b32 s53, 0xff00ff00")
    e("s_mov_b64 exec, s[52:53]")
    e("v_add_u32 v%d, %d, v%d" % (VOX, -8192 + 256, VOX))
    e("s_mov_b64 exec, -1")
    stamp()
    e("s_barrier")
    stamp()
    seq = []
    for ks in range(8):
        for tau in range(3): seq.append((ks, 4 * tau, tau * 8192 + ks * 1024, ks, ks == 0))
    for ks in range(12):
        for tl in range(8): seq.append((8 + ks, 12 + 4 * tl, 24576 + tl * 12288 + ks * 1024, ks, ks == 0))
    RING = 48; NR = 16; AHEAD = 12
    def rd(n):
        wk, acc, off, ks, first = seq[n]
        hi = off >= 65536
        r = RING + 4 * (n % NR)
        e("ds_read_b128 v[%d:%d], v%d offset:%d" % (r, r + 3, RA[(2 if hi else 0) + (ks & 1)], off - (65536 if hi else 0)))
    for n in range(AHEAD): rd(n)
    GT = 112
    lastw = -1
    gate_code = []
    for tau in range(3):
        for rr in range(4):
            g = GT + 4 * tau + rr; a = 4 * tau + rr
            gate_code.append("v_mul_f32 v%d, 0xbfb8aa3b, v%d" % (g, a))
    for k in range(12): gate_code.append("v_exp_f32 v%d, v%d" % (GT + k, GT + k))
    for k in range(12): gate_code.append("v_add_f32 v%d, 1.0, v%d" % (GT + k, GT + k))
    for k in range(12): gate_code.append("v_rcp_f32 v%d, v%d" % (GT + k, GT + k))
    for tau in range(3):
        gate_code.append("v_cvt_pk_bf16_f32 v%d, v%d, v%d" % (128 + 2 * tau, 4 * tau, 4 * tau + 1))
        gate_code.append("v_cvt_pk_bf16_f32 v%d, v%d, v%d" % (129 + 2 * tau, 4 * tau + 2, 4 * tau + 3))
    for rr in range(4): gate_code.append("v_mov_b32 v%d, v%d" % (124 + rr, GT + 8 + rr))
    for rr in range(4): gate_code.append("v_mov_b32_dpp v%d, v%d row_shr:8 row_mask:0xf bank_mask:0xc" % (124 + rr, GT + 8 + rr))
    for n in range(len(seq)):
        wk, acc, off, ks, first = seq[n]
        if wk != lastw:
            e("s_waitcnt vmcnt(%d)" % (19 - wk)); lastw = wk
        left = min(AHEAD, len(seq) - n) - 1
        e("s_waitcnt lgkmcnt(%d)" % left)
        r = RING + 4 * (n % NR)
        e("v_mfma_f32_16x16x32_bf16 v[%d:%d], v[%d:%d], v[%d:%d], %s" %
          (acc, acc + 3, WF + 4 * wk, WF + 4 * wk + 3, r, r + 3, "0" if first else "v[%d:%d]" % (acc, acc + 3)))
        if n + AHEAD < len(seq): rd(n + AHEAD)
        if n >= 24 + 10 and gate_code:
            e(gate_code.pop(0))
    assert not gate_code
    stamp()
    e("global_store_dwordx2 v%d, v[128:129], s[12:13]" % VO[0])
    e("global_store_dwordx2 v%d, v[130:131], s[12:13]" % VO[1])
    e("s_not_b64 exec, s[52:53]")
    e("global_store_dwordx2 v%d, v[132:133], s[12:13]" % VO[2])
    e("s_mov_b64 exec, -1")
    e("s_nop 4")
    for tl in range(8):
        a = 12 + 4 * tl
        if tl < 6: i = tl // 2; tau = tl % 2; g = GT + 4 * tau; vo = VO[tau]; off = 256 * (i + 1)
        elif tl == 6: g = 124; vo = VOX; off = 256
        else: g = GT + 8; vo = VO[2]; off = 768
        for rr in range(4):
            e("v_mul_f32 v%d, v%d, v%d" % (a + rr, a + rr, g + rr))
        e("v_cvt_pk_bf16_f32 v%d, v%d, v%d" % (a, a, a + 1))
        e("v_cvt_pk_bf16_f32 v%d, v%d, v%d" % (a + 1, a + 2, a + 3))
        if tl == 7: e("s_not_b64 exec, s[52:53]")
        e("global_store_dwordx2 v%d, v[%d:%d], s[12:13] offset:%d" % (vo, a, a + 1, off))
    if DIAG: e("s_waitcnt vmcnt(0)")
    dump_stamps("s[14:15]", "s17", 1 << 20, 140)
    lab("L2_end")
    e("s_endpgm")

header()
k1()
k2()
out.append('.section .rodata,"a"')
kdesc("gstp_bin_kernel", 72, 96 if DIAG else 48)
kdesc("gstp_main_kernel", 256, 96 if DIAG else 64)
open(sys.argv[1], "w").write("\n".join(out) + "\n")
```

```python
import sys
NAME = "gather_scatter__tensor_product_equiv_equiformer__graph"
OPT = dict(a.split('=') for a in sys.argv[2:]) if len(sys.argv) > 2 else {}
def opt(k, d): return type(d)(OPT.get(k, d))

N = 10000; E = 320000
NB = 250; NPB = 40
G = 250; CH = 1280
WS_REC = 0
WS_TAB = 4 << 20
WS_WF = 5 << 20
U = 10
OOB = 0x7F000000
NPH = opt("nph", 5)
PHMUL = {5: 0x8312, 6: 0x9d49, 7: 0xb780, 8: 0xd1b7}[NPH]
L_OFFS = 0; OFFS_STRIDE = 256
L_COEF = 10240; COEF_STRIDE = 640
L_FLAG = 36864
L_F = 37888
L_CNT = L_F
L_ST = L_F + 2048
L_F0 = L_F; L_F1 = L_F + 3 * 8192
LDS_MAIN = L_F + 122880

out = []
def e(s): out.append("    " + s)
def lab(s): out.append(s + ":")
def c(s): out.append("    ; " + s)

def header():
    ref = open("cdna_kernels/%s.s.ref" % NAME).read().split("\n")
    for l in ref:
        if l.startswith("; Override") : break
        out.append(l)
    out.append("; @launch kernel=gstp_bin_kernel grid=(%d,1,1) block=(384,1,1) lds=6144" % G)
    out.append("; @launch kernel=gstp_main_kernel grid=(%d,1,1) block=(512,1,1) lds=%d" % (NB, LDS_MAIN))
    out.append('.amdgcn_target "amdgcn-amd-amdhsa--gfx950"')
    out.append(".text")

def kstart(name):
    out.append(".globl %s" % name)
    out.append(".p2align 8")
    out.append(".type %s,@function" % name)
    lab(name)

def kdesc(name, vgpr, sgpr):
    out.append(".p2align 6")
    out.append(".amdhsa_kernel %s" % name)
    out.append("  .amdhsa_next_free_vgpr %d" % vgpr)
    out.append("  .amdhsa_next_free_sgpr %d" % sgpr)
    out.append("  .amdhsa_accum_offset %d" % ((vgpr + 3) // 4 * 4))
    out.append("  .amdhsa_group_segment_fixed_size 0")
    out.append("  .amdhsa_kernarg_size 96")
    out.append("  .amdhsa_user_sgpr_count 2")
    out.append("  .amdhsa_user_sgpr_kernarg_segment_ptr 1")
    out.append("  .amdhsa_system_sgpr_workgroup_id_x 1")
    out.append(".end_amdhsa_kernel")

DIAG = opt("diag", 0)
WS_DBG = 8 << 20
nstamp = [0]
def stamp():
    if not DIAG: return
    k = nstamp[0]; nstamp[0] += 1
    e("s_memrealtime s[%d:%d]" % (64 + 2 * k, 65 + 2 * k))
    if k == 0: e("s_memtime s[92:93]")
    e("s_waitcnt lgkmcnt(0)")
def dump_stamps(ws, swave, base, vt):
    if not DIAG: return
    e("s_memtime s[90:91]")
    stamp()
    e("s_mov_b64 exec, -1")
    e("v_mov_b32 v%d, 0" % vt)
    e("s_sub_u32 s90, s90, s92")
    e("v_writelane_b32 v%d, s90, 14" % vt)
    for k in range(nstamp[0]):
        e("v_writelane_b32 v%d, s%d, %d" % (vt, 64 + 2 * k, k))
    e("s_getreg_b32 s62, hwreg(HW_REG_XCC_ID)")
    e("v_writelane_b32 v%d, s62, 15" % vt)
    e("s_lshl_b32 s62, s2, 3")
    e("s_add_u32 s62, s62, %s" % swave)
    e("s_lshl_b32 s62, s62, 6")
    e("s_add_u32 s62, s62, %d" % (WS_DBG + base))
    e("v_mbcnt_lo_u32_b32 v%d, -1, 0" % (vt + 1))
    e("v_lshl_add_u32 v%d, v%d, 2, s62" % (vt + 1, vt + 1))
    e("s_mov_b64 exec, 0xffff")
    e("global_store_dword v%d, v%d, %s" % (vt + 1, vt, ws))
    nstamp[0] = 0

def wave_scan(v):
    for sh in (1, 2, 4, 8):
        e("s_nop 1")
        e("v_add_u32_dpp %s, %s, %s row_shr:%d row_mask:0xf bank_mask:0xf bound_ctrl:0" % (v, v, v, sh))
    e("s_nop 1")
    e("v_add_u32_dpp %s, %s, %s row_bcast:15 row_mask:0xa bank_mask:0xf" % (v, v, v))
    e("s_nop 1")
    e("v_add_u32_dpp %s, %s, %s row_bcast:31 row_mask:0xc bank_mask:0xf" % (v, v, v))

def k1():
    kstart("gstp_bin_kernel")
    e("s_cmp_ge_u32 s2, %d" % G)
    e("s_cbranch_scc1 L1_end")
    e("s_load_dwordx16 s[4:19], s[0:1], 0")
    e("s_load_dwordx2 s[20:21], s[0:1], 88")
    e("v_lshrrev_b32 v4, 6, v0")
    e("s_nop 0")
    e("v_readfirstlane_b32 s3, v4")
    e("s_cmp_eq_u32 s3, 5")
    e("s_cbranch_scc1 L1_help")
    stamp()
    if opt("dbgp", 0): e("s_memrealtime s[36:37]")
    e("s_mul_i32 s22, s2, %d" % (CH * 4))
    e("s_mul_i32 s23, s2, %d" % (CH * 6))
    e("s_mul_i32 s24, s2, %d" % (CH * 2))
    e("v_lshl_add_u32 v1, v0, 4, s22")
    e("v_mul_u32_u24 v2, 24, v0")
    e("v_add_u32 v2, s23, v2")
    e("v_lshl_add_u32 v3, v0, 3, s24")
    e("v_lshlrev_b32 v4, 2, v0")
    e("v_mov_b32 v5, 0")
    e("ds_write_b32 v4, v5")
    e("s_waitcnt lgkmcnt(0)")
    e("global_load_dwordx4 v[8:11], v1, s[12:13]")
    e("global_load_dwordx4 v[12:15], v1, s[10:11]")
    e("global_load_dwordx4 v[16:19], v2, s[6:7]")
    e("global_load_dwordx2 v[20:21], v2, s[6:7] offset:16")
    e("global_load_dwordx2 v[22:23], v3, s[8:9]")
    e("v_mov_b32 v5, 1")
    KP = opt("k1pf", 0)
    if KP:
        e("s_mul_i32 s28, s2, 40960")
        e("v_lshl_add_u32 v65, v0, 7, s28")
    e("s_barrier")
    if KP: e("global_load_dword v64, v65, s[4:5]")
    if KP == 2: e("global_load_dword v64, v65, s[4:5] offset:64")
    stamp()
    e("s_waitcnt vmcnt(%d)" % (4 + KP))
    stamp()
    for k in range(4):
        e("v_mul_u32_u24 v%d, 0xcccd, v%d" % (24 + k, 8 + k))
        e("v_lshrrev_b32 v%d, 21, v%d" % (24 + k, 24 + k))
        e("v_mul_u32_u24 v6, 40, v%d" % (24 + k))
        e("v_sub_u32 v%d, v%d, v6" % (8 + k, 8 + k))
        e("v_lshlrev_b32 v%d, 2, v%d" % (24 + k, 24 + k))
        e("ds_add_rtn_u32 v%d, v%d, v5" % (28 + k, 24 + k))
    e("s_waitcnt vmcnt(%d)" % (3 + KP))
    for k in range(4):
        e("v_mul_u32_u24 v6, 0x%x, v%d" % (PHMUL, 12 + k))
        if opt("shift", 1):
            e("v_mul_u32_u24 v7, 52, v%d" % (8 + k))
            e("v_lshrrev_b32 v7, 8, v7")
            e("v_mul_u32_u24 v7, 5, v7")
            e("v_sub_u32 v7, v%d, v7" % (8 + k))
            e("v_mul_u32_u24 v7, %d, v7" % ((1 << 26) // 5))
            e("v_sub_u32 v6, v6, v7")
            e("v_add_u32 v6, %d, v6" % (2 * ((1 << 26) // 5)))
            e("v_ashrrev_i32 v6, 26, v6")
            e("v_med3_i32 v6, v6, 0, %d" % (NPH - 1))
        else:
            e("v_lshrrev_b32 v6, 26, v6")
        e("v_lshl_add_u32 v6, v%d, 3, v6" % (8 + k))
        e("v_lshl_or_b32 v%d, v%d, 10, v6" % (34 + 4 * k, 12 + k))
    e("s_waitcnt vmcnt(%d)" % KP)
    if opt("dbgp", 0): e("s_memrealtime s[38:39]")
    stamp()
    def unpack(dst, idx, base):
        r = base + idx // 2
        if idx % 2 == 0: e("v_lshlrev_b32 %s, 16, v%d" % (dst, r))
        else: e("v_and_b32 %s, 0xffff0000, v%d" % (dst, r))
    for k in range(4):
        unpack("v48", k, 22)
        for j in range(3):
            unpack("v%d" % (49 + j), 3 * k + j, 16)
        for j in range(3):
            e("v_mul_f32 v%d, v48, v%d" % (49 + j, 49 + j))
        e("v_cvt_pk_bf16_f32 v%d, v48, v49" % (32 + 4 * k))
        e("v_cvt_pk_bf16_f32 v%d, v50, v51" % (33 + 4 * k))
    e("s_waitcnt lgkmcnt(0)")
    e("s_barrier")
    stamp()
    e("v_and_b32 v4, 63, v0")
    e("v_lshlrev_b32 v4, 4, v4")
    e("ds_read_b128 v[52:55], v4")
    e("s_add_u32 s25, s3, 1")
    e("s_lshl_b32 s25, s25, 10")
    e("s_waitcnt lgkmcnt(0)")
    e("v_add_u32 v57, v52, v53")
    e("v_add_u32 v58, v57, v54")
    e("v_add_u32 v59, v58, v55")
    e("v_mov_b32 v60, v59")
    wave_scan("v60")
    e("v_sub_u32 v60, v60, v59")
    e("v_add_u32 v61, v60, v52")
    e("v_add_u32 v62, v60, v57")
    e("v_add_u32 v63, v60, v58")
    e("v_add_u32 v7, s25, v4")
    e("ds_write_b128 v7, v[60:63]")
    for k in range(4):
        e("v_add_u32 v%d, s25, v%d" % (24 + k, 24 + k))
    e("s_waitcnt lgkmcnt(0)")
    for k in range(4):
        e("ds_read_b32 v%d, v%d" % (24 + k, 24 + k))
    e("s_cmp_lg_u32 s3, 0")
    e("s_cbranch_scc1 L1_notab")
    for k in range(4):
        e("v_lshl_or_b32 v%d, v%d, 16, v%d" % (60 + k, 52 + k, 60 + k))
    e("s_lshl_b32 s26, s2, 10")
    e("s_add_u32 s26, s26, %d" % WS_TAB)
    e("v_add_u32 v7, s26, v4")
    e("global_store_dwordx4 v7, v[60:63], s[20:21]")
    lab("L1_notab")
    e("s_mul_i32 s26, s2, %d" % (CH * 12))
    e("s_add_u32 s26, s26, %d" % WS_REC)
    e("v_mov_b32 v6, s26")
    e("s_waitcnt lgkmcnt(0)")
    for k in range(4):
        e("v_add_u32 v%d, v%d, v%d" % (24 + k, 24 + k, 28 + k))
        e("v_mad_u32_u24 v%d, v%d, 12, v6" % (24 + k, 24 + k))
        e("global_store_dwordx3 v%d, v[%d:%d], s[20:21]" % (24 + k, 32 + 4 * k, 34 + 4 * k))
    stamp()
    for _ in range(opt("k1sleep", 0)): e("s_sleep 33")
    if DIAG: e("s_waitcnt vmcnt(0)")
    if opt("dbgp", 0):
        e("s_waitcnt vmcnt(0)")
        e("s_memrealtime s[40:41]")
        e("s_load_dwordx2 s[42:43], s[0:1], 80")
        e("s_waitcnt lgkmcnt(0)")
        e("s_and_b32 s44, s2, 31")
        e("s_or_b32 s44, s44, s3")
        e("s_cmp_lg_u32 s44, 0")
        e("s_cbranch_scc1 L1_end")
        e("s_sub_u32 s40, s40, s36")
        e("s_sub_u32 s38, s38, s36")
        e("v_mov_b32 v4, s38")
        e("v_mov_b32 v5, s40")
        e("s_lshr_b32 s44, s2, 5")
        e("s_lshl_b32 s44, s44, 3")
        e("v_mov_b32 v6, s44")
        e("s_mov_b64 exec, 1")
        e("global_store_dwordx2 v6, v[4:5], s[42:43]")
    dump_stamps("s[20:21]", "s3", 0, 4)
    e("s_endpgm")
    lab("L1_help")
    e("v_and_b32 v1, 63, v0")
    e("s_waitcnt lgkmcnt(0)")
    e("s_cmp_ge_u32 s2, 160")
    e("s_cbranch_scc1 L1_now")
    e("s_mul_i32 s22, s2, 3277")
    e("s_lshr_b32 s22, s22, 16")
    e("s_mul_i32 s23, s22, 20")
    e("s_sub_u32 s23, s2, s23")
    e("s_cmp_lt_u32 s23, 8")
    e("s_cselect_b64 s[24:25], s[16:17], s[18:19]")
    e("s_cselect_b32 s26, 0, 8")
    e("s_sub_u32 s26, s23, s26")
    e("s_lshl_b32 s26, s26, 13")
    e("s_lshl_b32 s27, s22, 5")
    e("s_add_u32 s26, s26, s27")
    e("v_lshrrev_b32 v2, 4, v1")
    e("v_and_b32 v3, 15, v1")
    e("v_lshlrev_b32 v4, 11, v2")
    e("v_lshl_add_u32 v4, v3, 1, v4")
    e("v_add_u32 v4, s26, v4")
    e("s_lshl_b32 s27, s23, 6")
    e("v_lshl_add_u32 v5, v2, 4, s27")
    e("global_load_dwordx4 v[16:19], v5, s[14:15]")
    for i in range(8):
        e("global_load_ushort v%d, v4, s[24:25] offset:%d" % (8 + i, 256 * i))
    lab("L1_now")
    e("s_barrier")
    e("s_barrier")
    if opt("prefetch", 1):
        e("s_mul_i32 s28, s2, 40960")
        e("v_lshl_add_u32 v6, v1, 4, s28")
        for i in range(10):
            for j in range(4):
                e("global_load_dwordx4 v[40:43], v6, s[4:5] offset:%d" % (1024 * j))
            if i < 9: e("v_add_u32 v6, 4096, v6")
        nx = 40
    else:
        nx = 0
    e("s_cmp_ge_u32 s2, 160")
    e("s_cbranch_scc1 L1_end")
    e("s_waitcnt vmcnt(%d)" % nx)
    for i in range(8):
        e("v_lshlrev_b32 v%d, 16, v%d" % (8 + i, 8 + i))
        unpack("v20", i, 16)
        e("v_mul_f32 v%d, v20, v%d" % (8 + i, 8 + i))
    for i in range(4):
        e("v_cvt_pk_bf16_f32 v%d, v%d, v%d" % (24 + i, 8 + 2 * i, 9 + 2 * i))
    e("s_lshl_b32 s26, s2, 10")
    e("s_add_u32 s26, s26, %d" % WS_WF)
    e("v_lshl_add_u32 v7, v1, 4, s26")
    e("global_store_dwordx4 v7, v[24:27], s[20:21]")
    lab("L1_end")
    e("s_endpgm")

ACC = 0; LB = [160, 192]; BT = [224, 228]; AF = [232, 236]; VOFF = 240
LC = 245; VCA = 246; PSEL = 247; RB = 249; REM = 250; PEND = 251; TID = 252
SL = 54
SO = 20
SM = 28
def rec(i): return 160 + 4 * i
def kad(i): return 200 + i
T0 = 210
MSK = 20
def msk(i): return "s[%d:%d]" % (MSK + 2 * i, MSK + 2 * i + 1)

def k2():
    kstart("gstp_main_kernel")
    e("s_cmp_ge_u32 s2, %d" % NB)
    e("s_cbranch_scc1 L2_end")
    e("s_load_dwordx2 s[8:9], s[0:1], 0")
    e("s_load_dwordx2 s[12:13], s[0:1], 72")
    e("s_load_dwordx2 s[14:15], s[0:1], 88")
    stamp()
    e("v_mov_b32 v%d, v0" % TID)
    e("v_lshrrev_b32 v%d, 6, v0" % T0)
    e("s_and_b32 s4, s2, 7")
    e("s_lshr_b32 s5, s2, 3")
    e("s_mul_i32 s16, s4, 31")
    e("s_min_u32 s4, s4, 2")
    e("s_add_u32 s16, s16, s4")
    e("s_add_u32 s16, s16, s5")
    e("v_readfirstlane_b32 s17, v%d" % T0)
    e("v_lshrrev_b32 v%d, 1, v0" % (T0 + 1))
    e("v_min_u32 v%d, %d, v%d" % (T0 + 1, G - 1, T0 + 1))
    e("s_lshl_b32 s4, s16, 2")
    e("s_add_u32 s4, s4, %d" % WS_TAB)
    e("v_lshl_add_u32 v%d, v%d, 10, s4" % (T0 + 2, T0 + 1))
    e("s_waitcnt lgkmcnt(0)")
    e("global_load_dword v%d, v%d, s[14:15]" % (T0 + 3, T0 + 2))
    e("s_mov_b32 s10, %d" % (N * 1024))
    e("s_mov_b32 s11, 0x20000")
    if opt("prio", 0): e("s_setprio 3")
    e("s_mov_b32 s18, 0x05040100")
    e("s_mov_b32 s19, 0x07060302")
    e("v_and_b32 v%d, 63, v0" % LC)
    e("v_lshlrev_b32 v%d, 4, v%d" % (LC, LC))
    tab = {(0, 0): 0, (1, 1): 1, (1, 2): 2, (1, 3): 3,
           (4, 0): 1, (5, 1): 0, (6, 3): 2, (7, 2): 3,
           (8, 0): 2, (9, 2): 0, (10, 1): 3, (11, 3): 1,
           (12, 0): 3, (13, 3): 0, (14, 2): 1, (15, 1): 2}
    e("v_mov_b32 v%d, 64" % PSEL)
    for p_ in range(4):
        m_ = 0
        for (m, q), v in tab.items():
            if v == p_: m_ |= 1 << (16 * q + m)
        e("s_mov_b32 exec_lo, 0x%x" % (m_ & 0xffffffff))
        e("s_mov_b32 exec_hi, 0x%x" % (m_ >> 32))
        e("v_mov_b32 v%d, %d" % (PSEL, 16 * p_))
    e("s_mov_b64 exec, -1")
    for r in range(160):
        e("v_mov_b32 v%d, 0" % r)
    e("s_mul_i32 s42, s17, 1280")
    e("s_add_u32 s42, s42, %d" % L_ST)
    e("s_waitcnt vmcnt(0)")
    stamp()
    t = T0
    e("v_and_b32 v%d, 1, v%d" % (t + 4, TID))
    e("v_and_b32 v%d, 0xffff, v%d" % (t + 5, t + 3))
    e("v_lshrrev_b32 v%d, 16, v%d" % (REM, t + 3))
    e("v_cmp_gt_u32 vcc, %d, v%d" % (2 * G, TID))
    e("v_mul_u32_u24 v%d, %d, v%d" % (t + 6, CH, t + 1))
    e("v_cndmask_b32 v%d, 0, v%d, vcc" % (REM, REM))
    e("v_add3_u32 v%d, v%d, v%d, v%d" % (t + 6, t + 6, t + 5, t + 4))
    e("v_mul_u32_u24 v%d, 12, v%d" % (RB, t + 6))
    if WS_REC: e("v_add_u32 v%d, %d, v%d" % (RB, WS_REC, RB))
    e("v_sub_u32 v%d, v%d, v%d" % (REM, REM, t + 4))
    lab("L2_batch")
    e("v_add_u32 v%d, 1, v%d" % (t, REM))
    e("v_ashrrev_i32 v%d, 1, v%d" % (t, t))
    e("v_max_i32 v%d, 0, v%d" % (t, t))
    e("v_min_i32 v%d, %d, v%d" % (t, U, t))
    e("v_lshlrev_b32 v%d, v%d, 1" % (PEND, t) if False else "v_mov_b32 v%d, 1" % (t + 1))
    e("v_lshlrev_b32 v%d, v%d, v%d" % (PEND, t, t + 1))
    e("v_add_u32 v%d, -1, v%d" % (PEND, PEND))
    lab("L2_pass")
    for i in range(U):
        e("v_and_b32 v%d, %d, v%d" % (t + (i & 1), 1 << i, PEND))
        e("v_cmp_ne_u32 %s, 0, v%d" % (msk(i), t + (i & 1)))
    for i in range(U):
        e("s_mov_b64 exec, %s" % msk(i))
        e("global_load_dwordx3 v[%d:%d], v%d, s[14:15] offset:%d" % (rec(i), rec(i) + 2, RB, 24 * i))
    e("s_mov_b64 exec, -1")
    z = T0 + 2
    for k in range(4): e("v_mov_b32 v%d, 0" % (z + k))
    for k in range(4): e("v_mov_b32 v%d, 0x%x" % (z + 4 + k, OOB))
    e("v_lshlrev_b32 v%d, 4, v%d" % (t, TID))
    e("v_lshlrev_b32 v%d, 3, v%d" % (t + 1, TID))
    e("v_lshlrev_b32 v%d, 2, v%d" % (t + 10, TID))
    e("ds_write_b128 v%d, v[%d:%d] offset:%d" % (t, z + 4, z + 7, L_OFFS))
    e("ds_write_b32 v%d, v%d offset:%d" % (t + 10, z + 4, L_OFFS + 8192))
    for k in range(3):
        e("ds_write_b128 v%d, v[%d:%d] offset:%d" % (t, z, z + 3, L_COEF + 8192 * k))
    e("ds_write_b32 v%d, v%d offset:%d" % (t + 10, z, L_COEF + 24576))
    e("v_lshlrev_b32 v%d, 2, v%d" % (t + 10, TID))
    e("ds_write_b32 v%d, v%d offset:%d" % (t + 10, z, L_CNT))
    e("s_mov_b64 exec, 1")
    e("ds_write_b64 v%d, v[%d:%d] offset:%d" % (z, z, z + 1, L_FLAG))
    e("s_mov_b64 exec, -1")
    one = T0 + 11
    e("v_mov_b32 v%d, 1" % one)
    e("s_waitcnt lgkmcnt(0)")
    e("s_barrier")
    for i in range(U):
        e("s_waitcnt vmcnt(%d)" % (U - 1 - i))
        e("s_mov_b64 exec, %s" % msk(i))
        e("v_and_b32 v%d, 0x3ff, v%d" % (kad(i), rec(i) + 2))
        e("v_lshlrev_b32 v%d, 2, v%d" % (kad(i), kad(i)))
        e("ds_add_rtn_u32 v%d, v%d, v%d offset:%d" % (rec(i) + 3, kad(i), one, L_CNT))
    e("s_mov_b64 exec, -1")
    e("s_waitcnt lgkmcnt(0)")
    e("s_barrier")
    stamp()
    PF1 = opt("pf1", 0); PF2 = opt("pf2", 0)
    NPF = PF1 + PF2
    if NPF:
        e("s_lshr_b32 s4, s2, 3")
        e("s_lshl_b32 s4, s4, 3")
        e("s_add_u32 s4, s4, s17")
        e("s_lshl_b32 s4, s4, 10")
        for k in range(PF1):
            e("buffer_load_dwordx4 v[%d:%d], v%d, s[8:11], s4 offen" % (BT[0], BT[0] + 3, LC))
            e("s_add_u32 s4, s4, %d" % (256 * 1024))
        e("s_lshl_b32 s4, s2, 3")
        e("s_add_u32 s4, s4, s17")
        e("s_add_u32 s4, s4, %d" % (256 * PF1))
        e("s_lshl_b32 s4, s4, 10")
        for k in range(PF2):
            e("buffer_load_dwordx4 v[%d:%d], v%d, s[8:11], s4 offen" % (BT[0], BT[0] + 3, LC))
            e("s_add_u32 s4, s4, %d" % (2000 * 1024))
    cc = 212
    e("v_and_b32 v%d, 63, v%d" % (t, TID))
    e("v_lshlrev_b32 v%d, 5, v%d" % (t, t))
    e("v_cmp_gt_u32 vcc, %d, v%d" % (NPB * 32, t))
    e("s_and_b64 exec, exec, vcc")
    e("ds_read_b128 v[%d:%d], v%d offset:%d" % (cc, cc + 3, t, L_CNT))
    e("ds_read_b128 v[%d:%d], v%d offset:%d" % (cc + 4, cc + 7, t, L_CNT + 16))
    tot = 220; lim = 221; tmp = 222; en = 223
    f = 228
    e("s_waitcnt lgkmcnt(0)")
    e("v_add_u32 v%d, v%d, v%d" % (tot, cc, cc + 1))
    for k in range(2, NPH):
        e("v_add_u32 v%d, v%d, v%d" % (tot, tot, cc + k))
    e("v_add_u32 v%d, 7, v%d" % (lim, tot))
    e("v_and_b32 v%d, -8, v%d" % (lim, lim))
    e("v_max_u32 v%d, %d, v%d" % (lim, 8 * NPH, lim))
    e("v_sub_u32 v%d, v%d, v%d" % (lim, lim, tot))
    e("v_mov_b32 v%d, 0" % f)
    e("v_mov_b32 v%d, v%d" % (en, cc))
    for k in range(1, NPH):
        e("v_add_u32 v%d, v%d, v%d" % (lim, lim, cc + k - 1))
        e("v_and_b32 v%d, -8, v%d" % (tmp, lim))
        e("v_min_u32 v%d, %d, v%d" % (tmp, 8 * k, tmp))
        e("v_max_u32 v%d, v%d, v%d" % (f + k, tmp, en))
        e("v_add_u32 v%d, v%d, v%d" % (en, f + k, cc + k))
    e("v_add_u32 v%d, s42, v%d" % (t, t))
    e("ds_write_b128 v%d, v[%d:%d]" % (t, f, f + 3))
    e("ds_write_b128 v%d, v[%d:%d] offset:16" % (t, f + 4, f + 7))
    if opt("bar", 0):
        e("s_mov_b32 s41, 1")
        for k in range(1, 8):
            e("v_cmp_lt_u32 vcc, %d, v%d" % (8 * k, en))
            e("s_cmp_lg_u64 vcc, 0")
            e("s_addc_u32 s41, s41, 0")
    e("s_mov_b64 exec, -1")
    e("s_waitcnt lgkmcnt(0)")
    st = 228
    for i in range(U):
        e("s_mov_b64 exec, %s" % msk(i))
        e("v_add_u32 v%d, s42, v%d" % (st + i, kad(i)))
        e("ds_read_b32 v%d, v%d" % (st + i, st + i))
    e("s_movk_i32 s4, %d" % COEF_STRIDE)
    e("s_movk_i32 s5, 80")
    e("s_waitcnt lgkmcnt(0)")
    for i in range(U):
        sl = rec(i) + 3
        a = T0 + 4 * (i & 1)
        e("s_mov_b64 exec, %s" % msk(i))
        e("s_cbranch_execz L2_pl%d" % i)
        e("v_add_u32 v%d, v%d, v%d" % (sl, sl, st + i))
        e("v_cmp_gt_u32 vcc, 64, v%d" % sl)
        e("s_and_b64 exec, exec, vcc")
        e("v_lshrrev_b32 v%d, 5, v%d" % (a, kad(i)))
        e("v_lshrrev_b32 v%d, 3, v%d" % (a + 1, sl))
        e("v_and_b32 v%d, 7, v%d" % (a + 2, sl))
        e("v_lshlrev_b32 v%d, 1, v%d" % (a + 2, a + 2))
        e("v_mad_u32_u24 v%d, v%d, s5, v%d" % (a + 2, a + 1, a + 2))
        e("v_mad_u32_u24 v%d, v%d, s4, v%d" % (a + 2, a, a + 2))
        e("v_lshl_add_u32 v%d, v%d, 6, v%d" % (a, a, sl))
        e("v_lshlrev_b32 v%d, 2, v%d" % (a, a))
        e("v_and_b32 v%d, 0x%x, v%d" % (rec(i) + 2, 0xffc00 if opt("small", 0) else 0xfffffc00, rec(i) + 2))
        e("ds_write_b32 v%d, v%d offset:%d" % (a, rec(i) + 2, L_OFFS))
        e("ds_write_b16 v%d, v%d offset:%d" % (a + 2, rec(i), L_COEF))
        e("ds_write_b16_d16_hi v%d, v%d offset:%d" % (a + 2, rec(i), L_COEF + 16))
        e("ds_write_b16 v%d, v%d offset:%d" % (a + 2, rec(i) + 1, L_COEF + 32))
        e("ds_write_b16_d16_hi v%d, v%d offset:%d" % (a + 2, rec(i) + 1, L_COEF + 48))
        e("v_and_b32 v%d, 0x%x, v%d" % (PEND, 0xffffffff ^ (1 << i), PEND))
        lab("L2_pl%d" % i)
    e("s_mov_b64 exec, -1")
    e("v_mov_b32 v%d, 0" % t)
    e("v_mov_b32 v%d, 1" % (t + 1))
    e("v_cmp_ne_u32 vcc, 0, v%d" % PEND)
    e("s_mov_b64 exec, vcc")
    e("ds_write_b32 v%d, v%d offset:%d" % (t, t + 1, L_FLAG))
    e("s_mov_b64 exec, -1")
    e("v_cmp_lt_i32 vcc, %d, v%d" % (2 * U, REM))
    e("s_mov_b64 exec, vcc")
    e("ds_write_b32 v%d, v%d offset:%d" % (t, t + 1, L_FLAG + 4))
    e("s_mov_b64 exec, -1")
    e("s_mul_i32 s4, s17, %d" % (5 * OFFS_STRIDE))
    e("s_mul_i32 s5, s17, %d" % (5 * COEF_STRIDE))
    e("v_lshrrev_b32 v%d, 2, v%d" % (t + 4, LC))
    e("v_add_u32 v%d, s4, v%d" % (t + 4, t + 4))
    e("v_add_u32 v%d, s5, v%d" % (VCA, PSEL))
    for k in range(8): e("s_mov_b32 s%d, %d" % (SL + k, k))
    e("s_waitcnt lgkmcnt(0)")
    e("s_barrier")
    stamp()
    e("ds_read_b64 v[%d:%d], v%d offset:%d" % (t + 2, t + 3, t, L_FLAG))
    for u in range(5):
        e("ds_read_b32 v%d, v%d offset:%d" % (VOFF + u, t + 4, L_OFFS + u * OFFS_STRIDE))
    def coff(g): return L_COEF + (g % 5) * COEF_STRIDE + (g // 5) * 80
    e("ds_read_b128 v[%d:%d], v%d offset:%d" % (AF[0], AF[0] + 3, VCA, coff(0)))
    e("s_waitcnt lgkmcnt(0)")
    e("v_readfirstlane_b32 s44, v%d" % (t + 2))
    e("v_readfirstlane_b32 s45, v%d" % (t + 3))
    for u in range(5):
        e("v_cmp_gt_u32 s[%d:%d], s10, v%d" % (SM + 2 * u, SM + 2 * u + 1, VOFF + u))
    for r in range(LB[0], LB[0] + 64): e("v_mov_b32 v%d, 0" % r)
    e("s_or_b64 s[4:5], s[%d:%d], s[%d:%d]" % (SM, SM + 1, SM + 2, SM + 3))
    for u in range(2, 5):
        e("s_or_b64 s[4:5], s[4:5], s[%d:%d]" % (SM + 2 * u, SM + 2 * u + 1))
    if opt("bar", 0):
        e("s_mov_b32 s40, s41")
    else:
        e("s_cbranch_scc0 L2_swept")
        e("s_flbit_i32_b64 s40, s[4:5]")
        e("s_sub_u32 s40, 71, s40")
        e("s_lshr_b32 s40, s40, 3")
    if opt("prio", 0) == 2:
        e("s_cmp_lt_u32 s17, 4")
        e("s_cselect_b32 s41, 1, 0")
    NC = [38, 39]
    lid = [0]
    def readl(u):
        return ["v_readlane_b32 s%d, v%d, s%d" % (SO + k, VOFF + u, SL + k) for k in range(8)]
    def count(u, buf):
        m = SM + 2 * u
        e("s_and_b32 s%d, s%d, 0xff" % (NC[buf], m))
        e("s_bcnt1_i32_b32 s%d, s%d" % (NC[buf], NC[buf]))
        e("s_lshr_b64 s[%d:%d], s[%d:%d], 8" % (m, m + 1, m, m + 1))
    def ladder(buf, wait=True):
        n = lid[0]; lid[0] += 1
        for i in range(8):
            e("s_cmp_le_u32 s%d, %d" % (NC[buf], i))
            e("s_cbranch_scc1 L2_w%d_%d" % (n, i if wait else 8))
            e("buffer_load_dwordx4 v[%d:%d], v%d, s[8:11], s%d offen" %
              (LB[buf] + 4 * i, LB[buf] + 4 * i + 3, LC, SO + i))
        if wait:
            e("s_branch L2_w%d_8" % n)
            for i in range(8):
                lab("L2_w%d_%d" % (n, i))
                e("s_waitcnt vmcnt(%d)" % i)
        lab("L2_w%d_8" % n)
        if wait: e("s_waitcnt vmcnt(8)")
    for x in readl(0): e(x)
    count(0, 0)
    e("s_nop 1")
    ladder(0, False)
    for x in readl(1): e(x)
    count(1, 1)
    e("s_nop 1")
    ladder(1)
    X = opt("x", "")
    out.append(".p2align 6")
    lab("L2_sweep")
    for g in range(10):
        u = g % 5; buf = g & 1; L = LB[buf]; A = AF[buf]
        u2 = (g + 2) % 5
        if u2 == 0:
            for k in range(8): e("s_add_u32 s%d, s%d, 8" % (SL + k, SL + k))
        rl = readl(u2)
        e("s_waitcnt lgkmcnt(0)")
        e("ds_read_b128 v[%d:%d], v%d offset:%d" % (AF[buf ^ 1], AF[buf ^ 1] + 3, VCA, coff(g + 1)))
        for x in rl: e(x)
        e("s_cmp_eq_u32 s%d, 0" % NC[buf])
        e("s_cbranch_scc1 L2_skip%d" % g)
        def P(j):
            if "P" in X: return
            d = j >> 1; s = "s19" if j & 1 else "s18"
            for tt in range(4):
                e("v_perm_b32 v%d, v%d, v%d, %s" % (BT[j & 1] + tt, L + 4 * (2 * tt + 1) + d, L + 4 * (2 * tt) + d, s))
        def M(j):
            if "M" in X: return
            a = ACC + 32 * u + 4 * j
            e("v_mfma_f32_16x16x32_bf16 v[%d:%d], v[%d:%d], v[%d:%d], v[%d:%d]" %
              (a, a + 3, A, A + 3, BT[j & 1], BT[j & 1] + 3, a, a + 3))
        P(0); P(1); M(0)
        for j in range(2, 8):
            P(j); M(j - 1)
        e("s_nop 0")
        M(7)
        lab("L2_skip%d" % g)
        count(u2, buf)
        if not opt("barw", 0) and (opt("bar", 0) == 1 or (opt("bar", 0) == 5 and u2 == 0)): e("s_barrier")
        if g == 4:
            e("s_sub_u32 s40, s40, 1")
        if g == 9:
            e("v_add_u32 v%d, 160, v%d" % (VCA, VCA))
            e("s_sub_u32 s40, s40, 1")
        ladder(buf)
        if opt("barw", 0) and (g + 1) % opt("bar", 0) == 0: e("s_barrier")
        if g in (4, 9):
            if opt("prio", 0) == 1:
                e("s_cmp_le_u32 s40, %d" % (NPH - 2)); e("s_cbranch_scc0 L2_pr%d" % g); e("s_setprio 2")
                e("s_cmp_le_u32 s40, %d" % (NPH - 3)); e("s_cbranch_scc0 L2_pr%d" % g); e("s_setprio 1")
                e("s_cmp_le_u32 s40, %d" % (NPH - 4)); e("s_cbranch_scc0 L2_pr%d" % g); e("s_setprio 0")
                lab("L2_pr%d" % g)
            if opt("prio", 0) == 2:
                e("s_add_u32 s41, s41, 1")
                e("s_cmp_ge_u32 s41, 2"); e("s_cbranch_scc0 L2_pr%d" % g); e("s_setprio 2")
                e("s_cmp_ge_u32 s41, 4"); e("s_cbranch_scc0 L2_pr%d" % g); e("s_setprio 1")
                e("s_cmp_ge_u32 s41, 6"); e("s_cbranch_scc0 L2_pr%d" % g); e("s_setprio 0")
                lab("L2_pr%d" % g)
            e("s_cmp_lg_u32 s40, 0")
            e("s_cbranch_scc0 L2_swept" if g == 4 else "s_cbranch_scc1 L2_sweep")
    lab("L2_swept")
    e("s_or_b32 s4, s44, s45")
    e("s_cmp_eq_u32 s4, 0")
    e("s_cbranch_scc1 L2_epi")
    e("s_waitcnt vmcnt(0) lgkmcnt(0)")
    e("s_barrier")
    e("s_cmp_lg_u32 s44, 0")
    e("s_cbranch_scc1 L2_pass")
    e("v_add_u32 v%d, %d, v%d" % (RB, 24 * U, RB))
    e("v_add_u32 v%d, %d, v%d" % (REM, -2 * U, REM))
    e("s_branch L2_batch")
    lab("L2_epi")
    stamp()
    WF = 160
    lane = 253
    e("s_waitcnt lgkmcnt(0)")
    e("v_and_b32 v%d, 63, v%d" % (lane, TID))
    e("v_lshlrev_b32 v%d, 4, v%d" % (254, lane))
    e("s_mul_i32 s4, s17, 20480")
    e("s_add_u32 s4, s4, %d" % (WS_WF + 4096))
    e("s_add_u32 s46, s14, s4")
    e("s_addc_u32 s47, s15, 0")
    for ks in range(20):
        if ks and ks % 8 == 0:
            e("s_add_u32 s46, s46, 8192")
            e("s_addc_u32 s47, s47, 0")
        e("global_load_dwordx4 v[%d:%d], v254, s[46:47] offset:%d" % (WF + 4 * ks, WF + 4 * ks + 3, (ks % 8) * 1024 - 4096))
    LA = 240; TS = 241; LBB = 242; SG = 243; SG2 = 244; ADR = 245; TMP = 246
    TA = [248, 164 if False else 248]
    e("v_lshrrev_b32 v%d, 4, v%d" % (TMP, lane))
    e("v_and_b32 v%d, 3, v%d" % (SG, lane))
    e("v_bfe_u32 v%d, v%d, 2, 2" % (ADR, lane))
    e("v_lshlrev_b32 v%d, 8, v%d" % (LA, SG))
    e("v_lshl_add_u32 v%d, v%d, 10, v%d" % (LA, ADR, LA))
    e("v_and_b32 v%d, 1, v%d" % (ADR, ADR))
    e("v_mul_u32_u24 v%d, 12, v%d" % (ADR, ADR))
    e("v_or_b32 v%d, v%d, v%d" % (SG, SG, ADR))
    e("v_lshlrev_b32 v%d, 4, v%d" % (SG, SG))
    e("v_mov_b32 v%d, v%d" % (SG2, SG))
    e("v_add_u32 v%d, %d, v%d" % (LBB, L_F0 + 16384, LA))
    e("v_mov_b32 v%d, 8192" % TS)
    e("v_mov_b32 v%d, v%d" % (TMP, LA))
    e("v_add_u32 v%d, %d, v%d" % (LA, L_F0, LA))
    for gp in range(1, 4):
        lo = 0xffff0000 if gp == 1 else 0
        hi = {1: 0, 2: 0x0000ffff, 3: 0xffff0000}[gp]
        e("s_mov_b32 exec_lo, 0x%x" % lo)
        e("s_mov_b32 exec_hi, 0x%x" % hi)
        e("v_add_u32 v%d, %d, v%d" % (LA, L_F1 + (gp - 1) * 24576, TMP))
        e("v_add_u32 v%d, %d, v%d" % (LBB, L_F1 + (7 if gp == 3 else 6) * 12288, TMP))
        e("v_mov_b32 v%d, 12288" % TS)
        if gp == 2: e("v_xor_b32 v%d, 128, v%d" % (SG2, SG2))
    e("s_mov_b64 exec, -1")
    e("s_mul_i32 s4, s17, 5")
    e("s_mov_b32 s48, 0xffff0000")
    e("s_mov_b32 s49, -1")
    TA0 = 248; TA1 = 252
    e("v_mov_b32 v%d, v%d" % (247, lane))
    lane = 247
    for u in range(5):
        A = ACC + 32 * u
        e("s_lshr_b32 s5, s4, 4")
        e("s_and_b32 s6, s4, 15")
        e("s_lshl_b32 s6, s6, 4")
        e("s_cmp_lt_u32 s4, 32")
        e("s_cselect_b64 s[50:51], -1, 0")
        e("v_mad_u32_u24 v%d, v%d, s5, v%d" % (ADR, TS, LA))
        e("v_cndmask_b32 v%d, v%d, v%d, s[50:51]" % (ADR, LBB, ADR))
        e("v_cndmask_b32 v%d, v%d, v%d, s[50:51]" % (TMP, SG2, SG))
        e("v_xor_b32 v%d, s6, v%d" % (TMP, TMP))
        e("v_add_u32 v%d, v%d, v%d" % (ADR, ADR, TMP))
        for dd in range(4):
            e("v_cvt_pk_bf16_f32 v%d, v%d, v%d" % (TA0 + dd, A + 8 * dd, A + 8 * dd + 4))
        e("ds_write_b128 v%d, v[%d:%d]" % (ADR, TA0, TA0 + 3))
        for dd in range(4):
            e("v_cvt_pk_bf16_f32 v%d, v%d, v%d" % (TA1 + dd, A + 8 * dd + 1, A + 8 * dd + 5))
        e("ds_write_b128 v%d, v[%d:%d] offset:4096" % (ADR, TA1, TA1 + 3))
        for j in range(8):
            e("v_sub_f32 v%d, v%d, v%d" % (A + 4 * j + 2, A + 4 * j + 2, A + 4 * j + 3))
        for dd in range(4):
            e("v_cvt_pk_bf16_f32 v%d, v%d, v%d" % (A + dd, A + 8 * dd + 2, A + 8 * dd + 6))
        e("s_mov_b64 exec, s[48:49]")
        e("ds_write_b128 v%d, v[%d:%d] offset:8192" % (ADR, A, A + 3))
        e("s_mov_b64 exec, -1")
        e("s_add_u32 s4, s4, 1")
    RA = [240, 241, 242, 243]
    e("s_waitcnt lgkmcnt(0)")
    e("v_lshrrev_b32 v%d, 4, v%d" % (TMP, lane))
    e("v_and_b32 v%d, 15, v%d" % (ADR, lane))
    e("v_xor_b32 v%d, v%d, v%d" % (RA[0], ADR, TMP))
    e("v_lshlrev_b32 v%d, 4, v%d" % (RA[0], RA[0]))
    e("v_lshl_add_u32 v%d, v%d, 8, v%d" % (RA[0], TMP, RA[0]))
    e("v_xor_b32 v%d, 0xc0, v%d" % (RA[1], RA[0]))
    e("v_add_u32 v%d, %d, v%d" % (RA[2], L_F + 65536, RA[0]))
    e("v_add_u32 v%d, %d, v%d" % (RA[3], L_F + 65536, RA[1]))
    e("v_add_u32 v%d, %d, v%d" % (RA[0], L_F, RA[0]))
    e("v_add_u32 v%d, %d, v%d" % (RA[1], L_F, RA[1]))
    VO = [248, 249, 250]; VOX = 251
    e("s_mul_i32 s4, s16, %d" % (NPB * 1024))
    e("s_lshl_b32 s5, s17, 5")
    e("s_add_u32 s4, s4, s5")
    e("v_lshlrev_b32 v%d, 10, v%d" % (VO[0], ADR))
    e("v_lshl_add_u32 v%d, v%d, 3, v%d" % (VO[0], TMP, VO[0]))
    e("v_add_u32 v%d, s4, v%d" % (VO[0], VO[0]))
    e("v_add_u32 v%d, 16384, v%d" % (VO[1], VO[0]))
    e("v_add_u32 v%d, 32768, v%d" % (VO[2], VO[0]))
    e("v_mov_b32 v%d, v%d" % (VOX, VO[2]))
    e("s_mov_b32 s52, 0xff00ff00")
    e("s_mov_b32 s53, 0xff00ff00")
    e("s_mov_b64 exec, s[52:53]")
    e("v_add_u32 v%d, %d, v%d" % (VOX, -8192 + 256, VOX))
    e("s_mov_b64 exec, -1")
    stamp()
    e("s_barrier")
    stamp()
    seq = []
    for ks in range(8):
        for tau in range(3): seq.append((ks, 4 * tau, tau * 8192 + ks * 1024, ks, ks == 0))
    for ks in range(12):
        for tl in range(8): seq.append((8 + ks, 12 + 4 * tl, 24576 + tl * 12288 + ks * 1024, ks, ks == 0))
    RING = 48; NR = 16; AHEAD = 12
    def rd(n):
        wk, acc, off, ks, first = seq[n]
        hi = off >= 65536
        r = RING + 4 * (n % NR)
        e("ds_read_b128 v[%d:%d], v%d offset:%d" % (r, r + 3, RA[(2 if hi else 0) + (ks & 1)], off - (65536 if hi else 0)))
    for n in range(AHEAD): rd(n)
    GT = 112
    lastw = -1
    gate_code = []
    for tau in range(3):
        for rr in range(4):
            g = GT + 4 * tau + rr; a = 4 * tau + rr
            gate_code.append("v_mul_f32 v%d, 0xbfb8aa3b, v%d" % (g, a))
    for k in range(12): gate_code.append("v_exp_f32 v%d, v%d" % (GT + k, GT + k))
    for k in range(12): gate_code.append("v_add_f32 v%d, 1.0, v%d" % (GT + k, GT + k))
    for k in range(12): gate_code.append("v_rcp_f32 v%d, v%d" % (GT + k, GT + k))
    for tau in range(3):
        gate_code.append("v_cvt_pk_bf16_f32 v%d, v%d, v%d" % (128 + 2 * tau, 4 * tau, 4 * tau + 1))
        gate_code.append("v_cvt_pk_bf16_f32 v%d, v%d, v%d" % (129 + 2 * tau, 4 * tau + 2, 4 * tau + 3))
    for rr in range(4): gate_code.append("v_mov_b32 v%d, v%d" % (124 + rr, GT + 8 + rr))
    for rr in range(4): gate_code.append("v_mov_b32_dpp v%d, v%d row_shr:8 row_mask:0xf bank_mask:0xc" % (124 + rr, GT + 8 + rr))
    for n in range(len(seq)):
        wk, acc, off, ks, first = seq[n]
        if wk != lastw:
            e("s_waitcnt vmcnt(%d)" % (19 - wk)); lastw = wk
        left = min(AHEAD, len(seq) - n) - 1
        e("s_waitcnt lgkmcnt(%d)" % left)
        r = RING + 4 * (n % NR)
        e("v_mfma_f32_16x16x32_bf16 v[%d:%d], v[%d:%d], v[%d:%d], %s" %
          (acc, acc + 3, WF + 4 * wk, WF + 4 * wk + 3, r, r + 3, "0" if first else "v[%d:%d]" % (acc, acc + 3)))
        if n + AHEAD < len(seq): rd(n + AHEAD)
        if n >= 24 + 10 and gate_code:
            e(gate_code.pop(0))
    assert not gate_code
    stamp()
    e("global_store_dwordx2 v%d, v[128:129], s[12:13]" % VO[0])
    e("global_store_dwordx2 v%d, v[130:131], s[12:13]" % VO[1])
    e("s_not_b64 exec, s[52:53]")
    e("global_store_dwordx2 v%d, v[132:133], s[12:13]" % VO[2])
    e("s_mov_b64 exec, -1")
    e("s_nop 4")
    for tl in range(8):
        a = 12 + 4 * tl
        if tl < 6: i = tl // 2; tau = tl % 2; g = GT + 4 * tau; vo = VO[tau]; off = 256 * (i + 1)
        elif tl == 6: g = 124; vo = VOX; off = 256
        else: g = GT + 8; vo = VO[2]; off = 768
        for rr in range(4):
            e("v_mul_f32 v%d, v%d, v%d" % (a + rr, a + rr, g + rr))
        e("v_cvt_pk_bf16_f32 v%d, v%d, v%d" % (a, a, a + 1))
        e("v_cvt_pk_bf16_f32 v%d, v%d, v%d" % (a + 1, a + 2, a + 3))
        if tl == 7: e("s_not_b64 exec, s[52:53]")
        e("global_store_dwordx2 v%d, v[%d:%d], s[12:13] offset:%d" % (vo, a, a + 1, off))
    if DIAG: e("s_waitcnt vmcnt(0)")
    dump_stamps("s[14:15]", "s17", 1 << 20, 140)
    if opt("dbg2", 0):
        e("s_cmp_lg_u32 s2, %d" % (opt("dbg2", 0) - 1))
        e("s_cbranch_scc1 L2_end")
        e("s_cmp_lg_u32 s17, 0")
        e("s_cbranch_scc1 L2_end")
        e("s_load_dwordx2 s[42:43], s[0:1], 80")
        e("s_mov_b64 exec, -1")
        e("v_mbcnt_lo_u32_b32 v141, -1, 0")
        e("v_lshlrev_b32 v141, 2, v141")
        e("v_add_u32 v142, %d, v141" % (WS_DBG + (opt("dbg2", 0) - 1) * 512))
        e("global_load_dword v143, v142, s[14:15]")
        e("s_waitcnt vmcnt(0) lgkmcnt(0)")
        e("v_readfirstlane_b32 s44, v143")
        for k in range(9): e("v_writelane_b32 v143, s%d, %d" % (64 + 2 * k, 7 + k))
        e("s_nop 1")
        e("v_subrev_u32 v143, s44, v143")
        e("v_writelane_b32 v143, s90, 0")
        e("s_mov_b64 exec, 0xffff")
        e("global_store_dword v141, v143, s[42:43]")
    lab("L2_end")
    e("s_endpgm")

header()
k1()
k2()
out.append('.section .rodata,"a"')
kdesc("gstp_bin_kernel", 72, 96 if DIAG else 48)
kdesc("gstp_main_kernel", 256, 96 if DIAG else 64)
open(sys.argv[1], "w").write("\n".join(out) + "\n")
```

```python
import sys
NAME = "gather_scatter__tensor_product_equiv_equiformer__graph"
OPT = dict(a.split('=') for a in sys.argv[2:]) if len(sys.argv) > 2 else {}
def opt(k, d): return type(d)(OPT.get(k, d))

N = 10000; E = 320000
NB = 250; NPB = 40
G = 250; CH = 1280
WS_REC = 0
WS_TAB = 4 << 20
WS_WF = 5 << 20
U = 10
OOB = 0x7F000000
NPH = opt("nph", 5)
PHMUL = {5: 0x8312, 6: 0x9d49, 7: 0xb780, 8: 0xd1b7}[NPH]
L_OFFS = 0; OFFS_STRIDE = 256
L_COEF = 10240; COEF_STRIDE = 640
L_FLAG = 36864
L_F = 37888
L_CNT = L_F
L_ST = L_F + 2048
L_F0 = L_F; L_F1 = L_F + 3 * 8192
LDS_MAIN = L_F + 122880

out = []
def e(s): out.append("    " + s)
def lab(s): out.append(s + ":")
def c(s): out.append("    ; " + s)

def header():
    ref = open("cdna_kernels/%s.s.ref" % NAME).read().split("\n")
    for l in ref:
        if l.startswith("; Override") : break
        out.append(l)
    out.append("; @launch kernel=gstp_bin_kernel grid=(%d,1,1) block=(384,1,1) lds=6144" % G)
    out.append("; @launch kernel=gstp_main_kernel grid=(%d,1,1) block=(512,1,1) lds=%d" % (NB, LDS_MAIN))
    out.append('.amdgcn_target "amdgcn-amd-amdhsa--gfx950"')
    out.append(".text")

def kstart(name):
    out.append(".globl %s" % name)
    out.append(".p2align 8")
    out.append(".type %s,@function" % name)
    lab(name)

def kdesc(name, vgpr, sgpr):
    out.append(".p2align 6")
    out.append(".amdhsa_kernel %s" % name)
    out.append("  .amdhsa_next_free_vgpr %d" % vgpr)
    out.append("  .amdhsa_next_free_sgpr %d" % sgpr)
    out.append("  .amdhsa_accum_offset %d" % ((vgpr + 3) // 4 * 4))
    out.append("  .amdhsa_group_segment_fixed_size 0")
    out.append("  .amdhsa_kernarg_size 96")
    out.append("  .amdhsa_user_sgpr_count 2")
    out.append("  .amdhsa_user_sgpr_kernarg_segment_ptr 1")
    out.append("  .amdhsa_system_sgpr_workgroup_id_x 1")
    out.append(".end_amdhsa_kernel")

DIAG = opt("diag", 0)
WS_DBG = 8 << 20
nstamp = [0]
def stamp():
    if not DIAG: return
    k = nstamp[0]; nstamp[0] += 1
    e("s_memrealtime s[%d:%d]" % (64 + 2 * k, 65 + 2 * k))
    if k == 0: e("s_memtime s[92:93]")
    e("s_waitcnt lgkmcnt(0)")
def dump_stamps(ws, swave, base, vt):
    if not DIAG: return
    e("s_memtime s[90:91]")
    stamp()
    e("s_mov_b64 exec, -1")
    e("v_mov_b32 v%d, 0" % vt)
    e("s_sub_u32 s90, s90, s92")
    e("v_writelane_b32 v%d, s90, 14" % vt)
    for k in range(nstamp[0]):
        e("v_writelane_b32 v%d, s%d, %d" % (vt, 64 + 2 * k, k))
    e("s_getreg_b32 s62, hwreg(HW_REG_XCC_ID)")
    e("v_writelane_b32 v%d, s62, 15" % vt)
    e("s_lshl_b32 s62, s2, 3")
    e("s_add_u32 s62, s62, %s" % swave)
    e("s_lshl_b32 s62, s62, 6")
    e("s_add_u32 s62, s62, %d" % (WS_DBG + base))
    e("v_mbcnt_lo_u32_b32 v%d, -1, 0" % (vt + 1))
    e("v_lshl_add_u32 v%d, v%d, 2, s62" % (vt + 1, vt + 1))
    e("s_mov_b64 exec, 0xffff")
    e("global_store_dword v%d, v%d, %s" % (vt + 1, vt, ws))
    nstamp[0] = 0

def wave_scan(v):
    for sh in (1, 2, 4, 8):
        e("s_nop 1")
        e("v_add_u32_dpp %s, %s, %s row_shr:%d row_mask:0xf bank_mask:0xf bound_ctrl:0" % (v, v, v, sh))
    e("s_nop 1")
    e("v_add_u32_dpp %s, %s, %s row_bcast:15 row_mask:0xa bank_mask:0xf" % (v, v, v))
    e("s_nop 1")
    e("v_add_u32_dpp %s, %s, %s row_bcast:31 row_mask:0xc bank_mask:0xf" % (v, v, v))

def k1():
    kstart("gstp_bin_kernel")
    e("s_cmp_ge_u32 s2, %d" % G)
    e("s_cbranch_scc1 L1_end")
    e("s_load_dwordx16 s[4:19], s[0:1], 0")
    e("s_load_dwordx2 s[20:21], s[0:1], 88")
    e("v_lshrrev_b32 v4, 6, v0")
    e("s_nop 0")
    e("v_readfirstlane_b32 s3, v4")
    e("s_cmp_eq_u32 s3, 5")
    e("s_cbranch_scc1 L1_help")
    stamp()
    if opt("dbgp", 0): e("s_memrealtime s[36:37]")
    e("s_mul_i32 s22, s2, %d" % (CH * 4))
    e("s_mul_i32 s23, s2, %d" % (CH * 6))
    e("s_mul_i32 s24, s2, %d" % (CH * 2))
    e("v_lshl_add_u32 v1, v0, 4, s22")
    e("v_mul_u32_u24 v2, 24, v0")
    e("v_add_u32 v2, s23, v2")
    e("v_lshl_add_u32 v3, v0, 3, s24")
    e("v_lshlrev_b32 v4, 2, v0")
    e("v_mov_b32 v5, 0")
    e("ds_write_b32 v4, v5")
    e("s_waitcnt lgkmcnt(0)")
    e("global_load_dwordx4 v[8:11], v1, s[12:13]")
    e("global_load_dwordx4 v[12:15], v1, s[10:11]")
    e("global_load_dwordx4 v[16:19], v2, s[6:7]")
    e("global_load_dwordx2 v[20:21], v2, s[6:7] offset:16")
    e("global_load_dwordx2 v[22:23], v3, s[8:9]")
    e("v_mov_b32 v5, 1")
    KP = opt("k1pf", 0)
    if KP:
        e("s_mul_i32 s28, s2, 40960")
        e("v_lshl_add_u32 v65, v0, 7, s28")
    e("s_barrier")
    if KP: e("global_load_dword v64, v65, s[4:5]")
    if KP == 2: e("global_load_dword v64, v65, s[4:5] offset:64")
    stamp()
    e("s_waitcnt vmcnt(%d)" % (4 + KP))
    stamp()
    for k in range(4):
        e("v_mul_u32_u24 v%d, 0xcccd, v%d" % (24 + k, 8 + k))
        e("v_lshrrev_b32 v%d, 21, v%d" % (24 + k, 24 + k))
        e("v_mul_u32_u24 v6, 40, v%d" % (24 + k))
        e("v_sub_u32 v%d, v%d, v6" % (8 + k, 8 + k))
        e("v_lshlrev_b32 v%d, 2, v%d" % (24 + k, 24 + k))
        e("ds_add_rtn_u32 v%d, v%d, v5" % (28 + k, 24 + k))
    e("s_waitcnt vmcnt(%d)" % (3 + KP))
    for k in range(4):
        e("v_mul_u32_u24 v6, 0x%x, v%d" % (PHMUL, 12 + k))
        if opt("shift", 1):
            e("v_mul_u32_u24 v7, 52, v%d" % (8 + k))
            e("v_lshrrev_b32 v7, 8, v7")
            e("v_mul_u32_u24 v7, 5, v7")
            e("v_sub_u32 v7, v%d, v7" % (8 + k))
            e("v_mul_u32_u24 v7, %d, v7" % ((1 << 26) // 5))
            e("v_sub_u32 v6, v6, v7")
            e("v_add_u32 v6, %d, v6" % (2 * ((1 << 26) // 5)))
            e("v_ashrrev_i32 v6, 26, v6")
            e("v_med3_i32 v6, v6, 0, %d" % (NPH - 1))
        else:
            e("v_lshrrev_b32 v6, 26, v6")
        e("v_lshl_add_u32 v6, v%d, 3, v6" % (8 + k))
        e("v_lshl_or_b32 v%d, v%d, 10, v6" % (34 + 4 * k, 12 + k))
    e("s_waitcnt vmcnt(%d)" % KP)
    if opt("dbgp", 0): e("s_memrealtime s[38:39]")
    stamp()
    def unpack(dst, idx, base):
        r = base + idx // 2
        if idx % 2 == 0: e("v_lshlrev_b32 %s, 16, v%d" % (dst, r))
        else: e("v_and_b32 %s, 0xffff0000, v%d" % (dst, r))
    for k in range(4):
        unpack("v48", k, 22)
        for j in range(3):
            unpack("v%d" % (49 + j), 3 * k + j, 16)
        for j in range(3):
            e("v_mul_f32 v%d, v48, v%d" % (49 + j, 49 + j))
        e("v_cvt_pk_bf16_f32 v%d, v48, v49" % (32 + 4 * k))
        e("v_cvt_pk_bf16_f32 v%d, v50, v51" % (33 + 4 * k))
    e("s_waitcnt lgkmcnt(0)")
    e("s_barrier")
    stamp()
    e("v_and_b32 v4, 63, v0")
    e("v_lshlrev_b32 v4, 4, v4")
    e("ds_read_b128 v[52:55], v4")
    e("s_add_u32 s25, s3, 1")
    e("s_lshl_b32 s25, s25, 10")
    e("s_waitcnt lgkmcnt(0)")
    e("v_add_u32 v57, v52, v53")
    e("v_add_u32 v58, v57, v54")
    e("v_add_u32 v59, v58, v55")
    e("v_mov_b32 v60, v59")
    wave_scan("v60")
    e("v_sub_u32 v60, v60, v59")
    e("v_add_u32 v61, v60, v52")
    e("v_add_u32 v62, v60, v57")
    e("v_add_u32 v63, v60, v58")
    e("v_add_u32 v7, s25, v4")
    e("ds_write_b128 v7, v[60:63]")
    for k in range(4):
        e("v_add_u32 v%d, s25, v%d" % (24 + k, 24 + k))
    e("s_waitcnt lgkmcnt(0)")
    for k in range(4):
        e("ds_read_b32 v%d, v%d" % (24 + k, 24 + k))
    e("s_cmp_lg_u32 s3, 0")
    e("s_cbranch_scc1 L1_notab")
    for k in range(4):
        e("v_lshl_or_b32 v%d, v%d, 16, v%d" % (60 + k, 52 + k, 60 + k))
    e("s_lshl_b32 s26, s2, 10")
    e("s_add_u32 s26, s26, %d" % WS_TAB)
    e("v_add_u32 v7, s26, v4")
    e("global_store_dwordx4 v7, v[60:63], s[20:21]")
    lab("L1_notab")
    e("s_mul_i32 s26, s2, %d" % (CH * 12))
    e("s_add_u32 s26, s26, %d" % WS_REC)
    e("v_mov_b32 v6, s26")
    e("s_waitcnt lgkmcnt(0)")
    for k in range(4):
        e("v_add_u32 v%d, v%d, v%d" % (24 + k, 24 + k, 28 + k))
        e("v_mad_u32_u24 v%d, v%d, 12, v6" % (24 + k, 24 + k))
        e("global_store_dwordx3 v%d, v[%d:%d], s[20:21]" % (24 + k, 32 + 4 * k, 34 + 4 * k))
    stamp()
    for _ in range(opt("k1sleep", 0)): e("s_sleep 33")
    if DIAG: e("s_waitcnt vmcnt(0)")
    if opt("dbgp", 0):
        e("s_waitcnt vmcnt(0)")
        e("s_memrealtime s[40:41]")
        e("s_load_dwordx2 s[42:43], s[0:1], 80")
        e("s_waitcnt lgkmcnt(0)")
        e("s_and_b32 s44, s2, 31")
        e("s_or_b32 s44, s44, s3")
        e("s_cmp_lg_u32 s44, 0")
        e("s_cbranch_scc1 L1_end")
        e("s_sub_u32 s40, s40, s36")
        e("s_sub_u32 s38, s38, s36")
        e("v_mov_b32 v4, s38")
        e("v_mov_b32 v5, s40")
        e("s_lshr_b32 s44, s2, 5")
        e("s_lshl_b32 s44, s44, 3")
        e("v_mov_b32 v6, s44")
        e("s_mov_b64 exec, 1")
        e("global_store_dwordx2 v6, v[4:5], s[42:43]")
    dump_stamps("s[20:21]", "s3", 0, 4)
    e("s_endpgm")
    lab("L1_help")
    e("v_and_b32 v1, 63, v0")
    e("s_waitcnt lgkmcnt(0)")
    e("s_cmp_ge_u32 s2, 160")
    e("s_cbranch_scc1 L1_now")
    e("s_mul_i32 s22, s2, 3277")
    e("s_lshr_b32 s22, s22, 16")
    e("s_mul_i32 s23, s22, 20")
    e("s_sub_u32 s23, s2, s23")
    e("s_cmp_lt_u32 s23, 8")
    e("s_cselect_b64 s[24:25], s[16:17], s[18:19]")
    e("s_cselect_b32 s26, 0, 8")
    e("s_sub_u32 s26, s23, s26")
    e("s_lshl_b32 s26, s26, 13")
    e("s_lshl_b32 s27, s22, 5")
    e("s_add_u32 s26, s26, s27")
    e("v_lshrrev_b32 v2, 4, v1")
    e("v_and_b32 v3, 15, v1")
    e("v_lshlrev_b32 v4, 11, v2")
    e("v_lshl_add_u32 v4, v3, 1, v4")
    e("v_add_u32 v4, s26, v4")
    e("s_lshl_b32 s27, s23, 6")
    e("v_lshl_add_u32 v5, v2, 4, s27")
    e("global_load_dwordx4 v[16:19], v5, s[14:15]")
    for i in range(8):
        e("global_load_ushort v%d, v4, s[24:25] offset:%d" % (8 + i, 256 * i))
    e("s_branch L1_now2")
    lab("L1_now")
    if opt("cpf", 0):
        e("s_getpc_b64 s[24:25]")
        lab("L1_pc")
        e("s_add_u32 s24, s24, gstp_main_kernel-L1_pc")
        e("s_addc_u32 s25, s25, 0")
        e("v_lshlrev_b32 v2, 7, v1")
        e("v_mov_b32 v3, s25")
        e("v_add_co_u32 v2, vcc, s24, v2")
        e("s_nop 1")
        e("v_addc_co_u32 v3, vcc, 0, v3, vcc")
        for k in range(opt("cpf", 0)):
            e("global_load_dword v8, v[2:3], off")
            e("v_add_co_u32 v2, vcc, 8192, v2")
            e("s_nop 1")
            e("v_addc_co_u32 v3, vcc, 0, v3, vcc")
    lab("L1_now2")
    e("s_barrier")
    e("s_barrier")
    if opt("prefetch", 1):
        e("s_mul_i32 s28, s2, 40960")
        e("v_lshl_add_u32 v6, v1, 4, s28")
        for i in range(10):
            for j in range(4):
                e("global_load_dwordx4 v[40:43], v6, s[4:5] offset:%d" % (1024 * j))
            if i < 9: e("v_add_u32 v6, 4096, v6")
        nx = 40
    else:
        nx = 0
    e("s_cmp_ge_u32 s2, 160")
    e("s_cbranch_scc1 L1_end")
    e("s_waitcnt vmcnt(%d)" % nx)
    for i in range(8):
        e("v_lshlrev_b32 v%d, 16, v%d" % (8 + i, 8 + i))
        unpack("v20", i, 16)
        e("v_mul_f32 v%d, v20, v%d" % (8 + i, 8 + i))
    for i in range(4):
        e("v_cvt_pk_bf16_f32 v%d, v%d, v%d" % (24 + i, 8 + 2 * i, 9 + 2 * i))
    e("s_lshl_b32 s26, s2, 10")
    e("s_add_u32 s26, s26, %d" % WS_WF)
    e("v_lshl_add_u32 v7, v1, 4, s26")
    e("global_store_dwordx4 v7, v[24:27], s[20:21]")
    lab("L1_end")
    e("s_endpgm")

ACC = 0; LB = [160, 192]; BT = [224, 228]; AF = [232, 236]; VOFF = 240
LC = 245; VCA = 246; PSEL = 247; RB = 249; REM = 250; PEND = 251; TID = 252
SL = 54
SO = 20
SM = 28
def rec(i): return 160 + 4 * i
def kad(i): return 200 + i
T0 = 210
MSK = 20
def msk(i): return "s[%d:%d]" % (MSK + 2 * i, MSK + 2 * i + 1)

def k2():
    kstart("gstp_main_kernel")
    e("s_cmp_ge_u32 s2, %d" % NB)
    e("s_cbranch_scc1 L2_end")
    e("s_load_dwordx2 s[8:9], s[0:1], 0")
    e("s_load_dwordx2 s[12:13], s[0:1], 72")
    e("s_load_dwordx2 s[14:15], s[0:1], 88")
    stamp()
    e("v_mov_b32 v%d, v0" % TID)
    e("v_lshrrev_b32 v%d, 6, v0" % T0)
    e("s_and_b32 s4, s2, 7")
    e("s_lshr_b32 s5, s2, 3")
    e("s_mul_i32 s16, s4, 31")
    e("s_min_u32 s4, s4, 2")
    e("s_add_u32 s16, s16, s4")
    e("s_add_u32 s16, s16, s5")
    e("v_readfirstlane_b32 s17, v%d" % T0)
    e("v_lshrrev_b32 v%d, 1, v0" % (T0 + 1))
    e("v_min_u32 v%d, %d, v%d" % (T0 + 1, G - 1, T0 + 1))
    e("s_lshl_b32 s4, s16, 2")
    e("s_add_u32 s4, s4, %d" % WS_TAB)
    e("v_lshl_add_u32 v%d, v%d, 10, s4" % (T0 + 2, T0 + 1))
    e("s_waitcnt lgkmcnt(0)")
    e("global_load_dword v%d, v%d, s[14:15]" % (T0 + 3, T0 + 2))
    e("s_mov_b32 s10, %d" % (N * 1024))
    e("s_mov_b32 s11, 0x20000")
    if opt("prio", 0): e("s_setprio 3")
    e("s_mov_b32 s18, 0x05040100")
    e("s_mov_b32 s19, 0x07060302")
    e("v_and_b32 v%d, 63, v0" % LC)
    e("v_lshlrev_b32 v%d, 4, v%d" % (LC, LC))
    tab = {(0, 0): 0, (1, 1): 1, (1, 2): 2, (1, 3): 3,
           (4, 0): 1, (5, 1): 0, (6, 3): 2, (7, 2): 3,
           (8, 0): 2, (9, 2): 0, (10, 1): 3, (11, 3): 1,
           (12, 0): 3, (13, 3): 0, (14, 2): 1, (15, 1): 2}
    e("v_mov_b32 v%d, 64" % PSEL)
    for p_ in range(4):
        m_ = 0
        for (m, q), v in tab.items():
            if v == p_: m_ |= 1 << (16 * q + m)
        e("s_mov_b32 exec_lo, 0x%x" % (m_ & 0xffffffff))
        e("s_mov_b32 exec_hi, 0x%x" % (m_ >> 32))
        e("v_mov_b32 v%d, %d" % (PSEL, 16 * p_))
    e("s_mov_b64 exec, -1")
    for r in range(160):
        e("v_mov_b32 v%d, 0" % r)
    e("s_mul_i32 s42, s17, 1280")
    e("s_add_u32 s42, s42, %d" % L_ST)
    e("s_waitcnt vmcnt(0)")
    stamp()
    t = T0
    e("v_and_b32 v%d, 1, v%d" % (t + 4, TID))
    e("v_and_b32 v%d, 0xffff, v%d" % (t + 5, t + 3))
    e("v_lshrrev_b32 v%d, 16, v%d" % (REM, t + 3))
    e("v_cmp_gt_u32 vcc, %d, v%d" % (2 * G, TID))
    e("v_mul_u32_u24 v%d, %d, v%d" % (t + 6, CH, t + 1))
    e("v_cndmask_b32 v%d, 0, v%d, vcc" % (REM, REM))
    e("v_add3_u32 v%d, v%d, v%d, v%d" % (t + 6, t + 6, t + 5, t + 4))
    e("v_mul_u32_u24 v%d, 12, v%d" % (RB, t + 6))
    if WS_REC: e("v_add_u32 v%d, %d, v%d" % (RB, WS_REC, RB))
    e("v_sub_u32 v%d, v%d, v%d" % (REM, REM, t + 4))
    lab("L2_batch")
    e("v_add_u32 v%d, 1, v%d" % (t, REM))
    e("v_ashrrev_i32 v%d, 1, v%d" % (t, t))
    e("v_max_i32 v%d, 0, v%d" % (t, t))
    e("v_min_i32 v%d, %d, v%d" % (t, U, t))
    e("v_lshlrev_b32 v%d, v%d, 1" % (PEND, t) if False else "v_mov_b32 v%d, 1" % (t + 1))
    e("v_lshlrev_b32 v%d, v%d, v%d" % (PEND, t, t + 1))
    e("v_add_u32 v%d, -1, v%d" % (PEND, PEND))
    lab("L2_pass")
    for i in range(U):
        e("v_and_b32 v%d, %d, v%d" % (t + (i & 1), 1 << i, PEND))
        e("v_cmp_ne_u32 %s, 0, v%d" % (msk(i), t + (i & 1)))
    for i in range(U):
        e("s_mov_b64 exec, %s" % msk(i))
        e("global_load_dwordx3 v[%d:%d], v%d, s[14:15] offset:%d" % (rec(i), rec(i) + 2, RB, 24 * i))
    e("s_mov_b64 exec, -1")
    z = T0 + 2
    for k in range(4): e("v_mov_b32 v%d, 0" % (z + k))
    for k in range(4): e("v_mov_b32 v%d, 0x%x" % (z + 4 + k, OOB))
    e("v_lshlrev_b32 v%d, 4, v%d" % (t, TID))
    e("v_lshlrev_b32 v%d, 3, v%d" % (t + 1, TID))
    e("v_lshlrev_b32 v%d, 2, v%d" % (t + 10, TID))
    e("ds_write_b128 v%d, v[%d:%d] offset:%d" % (t, z + 4, z + 7, L_OFFS))
    e("ds_write_b32 v%d, v%d offset:%d" % (t + 10, z + 4, L_OFFS + 8192))
    for k in range(3):
        e("ds_write_b128 v%d, v[%d:%d] offset:%d" % (t, z, z + 3, L_COEF + 8192 * k))
    e("ds_write_b32 v%d, v%d offset:%d" % (t + 10, z, L_COEF + 24576))
    e("v_lshlrev_b32 v%d, 2, v%d" % (t + 10, TID))
    e("ds_write_b32 v%d, v%d offset:%d" % (t + 10, z, L_CNT))
    e("s_mov_b64 exec, 1")
    e("ds_write_b64 v%d, v[%d:%d] offset:%d" % (z, z, z + 1, L_FLAG))
    e("s_mov_b64 exec, -1")
    one = T0 + 11
    e("v_mov_b32 v%d, 1" % one)
    e("s_waitcnt lgkmcnt(0)")
    e("s_barrier")
    for i in range(U):
        e("s_waitcnt vmcnt(%d)" % (U - 1 - i))
        e("s_mov_b64 exec, %s" % msk(i))
        e("v_and_b32 v%d, 0x3ff, v%d" % (kad(i), rec(i) + 2))
        e("v_lshlrev_b32 v%d, 2, v%d" % (kad(i), kad(i)))
        e("ds_add_rtn_u32 v%d, v%d, v%d offset:%d" % (rec(i) + 3, kad(i), one, L_CNT))
    e("s_mov_b64 exec, -1")
    e("s_waitcnt lgkmcnt(0)")
    e("s_barrier")
    stamp()
    PF1 = opt("pf1", 0); PF2 = opt("pf2", 0)
    NPF = PF1 + PF2
    if NPF:
        e("s_lshr_b32 s4, s2, 3")
        e("s_lshl_b32 s4, s4, 3")
        e("s_add_u32 s4, s4, s17")
        e("s_lshl_b32 s4, s4, 10")
        for k in range(PF1):
            e("buffer_load_dwordx4 v[%d:%d], v%d, s[8:11], s4 offen" % (BT[0], BT[0] + 3, LC))
            e("s_add_u32 s4, s4, %d" % (256 * 1024))
        e("s_lshl_b32 s4, s2, 3")
        e("s_add_u32 s4, s4, s17")
        e("s_add_u32 s4, s4, %d" % (256 * PF1))
        e("s_lshl_b32 s4, s4, 10")
        for k in range(PF2):
            e("buffer_load_dwordx4 v[%d:%d], v%d, s[8:11], s4 offen" % (BT[0], BT[0] + 3, LC))
            e("s_add_u32 s4, s4, %d" % (2000 * 1024))
    cc = 212
    e("v_and_b32 v%d, 63, v%d" % (t, TID))
    e("v_lshlrev_b32 v%d, 5, v%d" % (t, t))
    e("v_cmp_gt_u32 vcc, %d, v%d" % (NPB * 32, t))
    e("s_and_b64 exec, exec, vcc")
    e("ds_read_b128 v[%d:%d], v%d offset:%d" % (cc, cc + 3, t, L_CNT))
    e("ds_read_b128 v[%d:%d], v%d offset:%d" % (cc + 4, cc + 7, t, L_CNT + 16))
    tot = 220; lim = 221; tmp = 222; en = 223
    f = 228
    e("s_waitcnt lgkmcnt(0)")
    e("v_add_u32 v%d, v%d, v%d" % (tot, cc, cc + 1))
    for k in range(2, NPH):
        e("v_add_u32 v%d, v%d, v%d" % (tot, tot, cc + k))
    e("v_add_u32 v%d, 7, v%d" % (lim, tot))
    e("v_and_b32 v%d, -8, v%d" % (lim, lim))
    e("v_max_u32 v%d, %d, v%d" % (lim, 8 * NPH, lim))
    e("v_sub_u32 v%d, v%d, v%d" % (lim, lim, tot))
    e("v_mov_b32 v%d, 0" % f)
    e("v_mov_b32 v%d, v%d" % (en, cc))
    for k in range(1, NPH):
        e("v_add_u32 v%d, v%d, v%d" % (lim, lim, cc + k - 1))
        e("v_and_b32 v%d, -8, v%d" % (tmp, lim))
        e("v_min_u32 v%d, %d, v%d" % (tmp, 8 * k, tmp))
        e("v_max_u32 v%d, v%d, v%d" % (f + k, tmp, en))
        e("v_add_u32 v%d, v%d, v%d" % (en, f + k, cc + k))
    e("v_add_u32 v%d, s42, v%d" % (t, t))
    e("ds_write_b128 v%d, v[%d:%d]" % (t, f, f + 3))
    e("ds_write_b128 v%d, v[%d:%d] offset:16" % (t, f + 4, f + 7))
    if opt("bar", 0):
        e("s_mov_b32 s41, 1")
        for k in range(1, 8):
            e("v_cmp_lt_u32 vcc, %d, v%d" % (8 * k, en))
            e("s_cmp_lg_u64 vcc, 0")
            e("s_addc_u32 s41, s41, 0")
    e("s_mov_b64 exec, -1")
    e("s_waitcnt lgkmcnt(0)")
    st = 228
    for i in range(U):
        e("s_mov_b64 exec, %s" % msk(i))
        e("v_add_u32 v%d, s42, v%d" % (st + i, kad(i)))
        e("ds_read_b32 v%d, v%d" % (st + i, st + i))
    e("s_movk_i32 s4, %d" % COEF_STRIDE)
    e("s_movk_i32 s5, 80")
    e("s_waitcnt lgkmcnt(0)")
    for i in range(U):
        sl = rec(i) + 3
        a = T0 + 4 * (i & 1)
        e("s_mov_b64 exec, %s" % msk(i))
        e("s_cbranch_execz L2_pl%d" % i)
        e("v_add_u32 v%d, v%d, v%d" % (sl, sl, st + i))
        e("v_cmp_gt_u32 vcc, 64, v%d" % sl)
        e("s_and_b64 exec, exec, vcc")
        e("v_lshrrev_b32 v%d, 5, v%d" % (a, kad(i)))
        e("v_lshrrev_b32 v%d, 3, v%d" % (a + 1, sl))
        e("v_and_b32 v%d, 7, v%d" % (a + 2, sl))
        e("v_lshlrev_b32 v%d, 1, v%d" % (a + 2, a + 2))
        e("v_mad_u32_u24 v%d, v%d, s5, v%d" % (a + 2, a + 1, a + 2))
        e("v_mad_u32_u24 v%d, v%d, s4, v%d" % (a + 2, a, a + 2))
        e("v_lshl_add_u32 v%d, v%d, 6, v%d" % (a, a, sl))
        e("v_lshlrev_b32 v%d, 2, v%d" % (a, a))
        e("v_and_b32 v%d, 0x%x, v%d" % (rec(i) + 2, 0xffc00 if opt("small", 0) else 0xfffffc00, rec(i) + 2))
        e("ds_write_b32 v%d, v%d offset:%d" % (a, rec(i) + 2, L_OFFS))
        e("ds_write_b16 v%d, v%d offset:%d" % (a + 2, rec(i), L_COEF))
        e("ds_write_b16_d16_hi v%d, v%d offset:%d" % (a + 2, rec(i), L_COEF + 16))
        e("ds_write_b16 v%d, v%d offset:%d" % (a + 2, rec(i) + 1, L_COEF + 32))
        e("ds_write_b16_d16_hi v%d, v%d offset:%d" % (a + 2, rec(i) + 1, L_COEF + 48))
        e("v_and_b32 v%d, 0x%x, v%d" % (PEND, 0xffffffff ^ (1 << i), PEND))
        lab("L2_pl%d" % i)
    e("s_mov_b64 exec, -1")
    e("v_mov_b32 v%d, 0" % t)
    e("v_mov_b32 v%d, 1" % (t + 1))
    e("v_cmp_ne_u32 vcc, 0, v%d" % PEND)
    e("s_mov_b64 exec, vcc")
    e("ds_write_b32 v%d, v%d offset:%d" % (t, t + 1, L_FLAG))
    e("s_mov_b64 exec, -1")
    e("v_cmp_lt_i32 vcc, %d, v%d" % (2 * U, REM))
    e("s_mov_b64 exec, vcc")
    e("ds_write_b32 v%d, v%d offset:%d" % (t, t + 1, L_FLAG + 4))
    e("s_mov_b64 exec, -1")
    e("s_mul_i32 s4, s17, %d" % (5 * OFFS_STRIDE))
    e("s_mul_i32 s5, s17, %d" % (5 * COEF_STRIDE))
    e("v_lshrrev_b32 v%d, 2, v%d" % (t + 4, LC))
    e("v_add_u32 v%d, s4, v%d" % (t + 4, t + 4))
    e("v_add_u32 v%d, s5, v%d" % (VCA, PSEL))
    for k in range(8): e("s_mov_b32 s%d, %d" % (SL + k, k))
    e("s_waitcnt lgkmcnt(0)")
    e("s_barrier")
    stamp()
    e("ds_read_b64 v[%d:%d], v%d offset:%d" % (t + 2, t + 3, t, L_FLAG))
    for u in range(5):
        e("ds_read_b32 v%d, v%d offset:%d" % (VOFF + u, t + 4, L_OFFS + u * OFFS_STRIDE))
    def coff(g): return L_COEF + (g % 5) * COEF_STRIDE + (g // 5) * 80
    e("ds_read_b128 v[%d:%d], v%d offset:%d" % (AF[0], AF[0] + 3, VCA, coff(0)))
    e("s_waitcnt lgkmcnt(0)")
    e("v_readfirstlane_b32 s44, v%d" % (t + 2))
    e("v_readfirstlane_b32 s45, v%d" % (t + 3))
    for u in range(5):
        e("v_cmp_gt_u32 s[%d:%d], s10, v%d" % (SM + 2 * u, SM + 2 * u + 1, VOFF + u))
    for r in range(LB[0], LB[0] + 64): e("v_mov_b32 v%d, 0" % r)
    e("s_or_b64 s[4:5], s[%d:%d], s[%d:%d]" % (SM, SM + 1, SM + 2, SM + 3))
    for u in range(2, 5):
        e("s_or_b64 s[4:5], s[4:5], s[%d:%d]" % (SM + 2 * u, SM + 2 * u + 1))
    if opt("bar", 0):
        e("s_mov_b32 s40, s41")
    else:
        e("s_cbranch_scc0 L2_swept")
        e("s_flbit_i32_b64 s40, s[4:5]")
        e("s_sub_u32 s40, 71, s40")
        e("s_lshr_b32 s40, s40, 3")
    if opt("prio", 0) == 2:
        e("s_cmp_lt_u32 s17, 4")
        e("s_cselect_b32 s41, 1, 0")
    NC = [38, 39]
    lid = [0]
    def readl(u):
        return ["v_readlane_b32 s%d, v%d, s%d" % (SO + k, VOFF + u, SL + k) for k in range(8)]
    def count(u, buf):
        m = SM + 2 * u
        e("s_and_b32 s%d, s%d, 0xff" % (NC[buf], m))
        e("s_bcnt1_i32_b32 s%d, s%d" % (NC[buf], NC[buf]))
        e("s_lshr_b64 s[%d:%d], s[%d:%d], 8" % (m, m + 1, m, m + 1))
    def ladder(buf, wait=True):
        n = lid[0]; lid[0] += 1
        for i in range(8):
            e("s_cmp_le_u32 s%d, %d" % (NC[buf], i))
            e("s_cbranch_scc1 L2_w%d_%d" % (n, i if wait else 8))
            e("buffer_load_dwordx4 v[%d:%d], v%d, s[8:11], s%d offen" %
              (LB[buf] + 4 * i, LB[buf] + 4 * i + 3, LC, SO + i))
        if wait:
            e("s_branch L2_w%d_8" % n)
            for i in range(8):
                lab("L2_w%d_%d" % (n, i))
                e("s_waitcnt vmcnt(%d)" % i)
        lab("L2_w%d_8" % n)
        if wait: e("s_waitcnt vmcnt(8)")
    for x in readl(0): e(x)
    count(0, 0)
    e("s_nop 1")
    ladder(0, False)
    for x in readl(1): e(x)
    count(1, 1)
    e("s_nop 1")
    ladder(1)
    X = opt("x", "")
    out.append(".p2align 6")
    lab("L2_sweep")
    for g in range(10):
        u = g % 5; buf = g & 1; L = LB[buf]; A = AF[buf]
        u2 = (g + 2) % 5
        if u2 == 0:
            for k in range(8): e("s_add_u32 s%d, s%d, 8" % (SL + k, SL + k))
        rl = readl(u2)
        e("s_waitcnt lgkmcnt(0)")
        e("ds_read_b128 v[%d:%d], v%d offset:%d" % (AF[buf ^ 1], AF[buf ^ 1] + 3, VCA, coff(g + 1)))
        for x in rl: e(x)
        e("s_cmp_eq_u32 s%d, 0" % NC[buf])
        e("s_cbranch_scc1 L2_skip%d" % g)
        def P(j):
            if "P" in X: return
            d = j >> 1; s = "s19" if j & 1 else "s18"
            for tt in range(4):
                e("v_perm_b32 v%d, v%d, v%d, %s" % (BT[j & 1] + tt, L + 4 * (2 * tt + 1) + d, L + 4 * (2 * tt) + d, s))
        def M(j):
            if "M" in X: return
            a = ACC + 32 * u + 4 * j
            e("v_mfma_f32_16x16x32_bf16 v[%d:%d], v[%d:%d], v[%d:%d], v[%d:%d]" %
              (a, a + 3, A, A + 3, BT[j & 1], BT[j & 1] + 3, a, a + 3))
        P(0); P(1); M(0)
        for j in range(2, 8):
            P(j); M(j - 1)
        e("s_nop 0")
        M(7)
        lab("L2_skip%d" % g)
        count(u2, buf)
        if not opt("barw", 0) and (opt("bar", 0) == 1 or (opt("bar", 0) == 5 and u2 == 0)): e("s_barrier")
        if g == 4:
            e("s_sub_u32 s40, s40, 1")
        if g == 9:
            e("v_add_u32 v%d, 160, v%d" % (VCA, VCA))
            e("s_sub_u32 s40, s40, 1")
        ladder(buf)
        if opt("barw", 0) and (g + 1) % opt("bar", 0) == 0: e("s_barrier")
        if g in (4, 9):
            if opt("prio", 0) == 1:
                e("s_cmp_le_u32 s40, %d" % (NPH - 2)); e("s_cbranch_scc0 L2_pr%d" % g); e("s_setprio 2")
                e("s_cmp_le_u32 s40, %d" % (NPH - 3)); e("s_cbranch_scc0 L2_pr%d" % g); e("s_setprio 1")
                e("s_cmp_le_u32 s40, %d" % (NPH - 4)); e("s_cbranch_scc0 L2_pr%d" % g); e("s_setprio 0")
                lab("L2_pr%d" % g)
            if opt("prio", 0) == 2:
                e("s_add_u32 s41, s41, 1")
                e("s_cmp_ge_u32 s41, 2"); e("s_cbranch_scc0 L2_pr%d" % g); e("s_setprio 2")
                e("s_cmp_ge_u32 s41, 4"); e("s_cbranch_scc0 L2_pr%d" % g); e("s_setprio 1")
                e("s_cmp_ge_u32 s41, 6"); e("s_cbranch_scc0 L2_pr%d" % g); e("s_setprio 0")
                lab("L2_pr%d" % g)
            e("s_cmp_lg_u32 s40, 0")
            e("s_cbranch_scc0 L2_swept" if g == 4 else "s_cbranch_scc1 L2_sweep")
    lab("L2_swept")
    e("s_or_b32 s4, s44, s45")
    e("s_cmp_eq_u32 s4, 0")
    e("s_cbranch_scc1 L2_epi")
    e("s_waitcnt vmcnt(0) lgkmcnt(0)")
    e("s_barrier")
    e("s_cmp_lg_u32 s44, 0")
    e("s_cbranch_scc1 L2_pass")
    e("v_add_u32 v%d, %d, v%d" % (RB, 24 * U, RB))
    e("v_add_u32 v%d, %d, v%d" % (REM, -2 * U, REM))
    e("s_branch L2_batch")
    lab("L2_epi")
    stamp()
    WF = 160
    lane = 253
    e("s_waitcnt lgkmcnt(0)")
    e("v_and_b32 v%d, 63, v%d" % (lane, TID))
    e("v_lshlrev_b32 v%d, 4, v%d" % (254, lane))
    e("s_mul_i32 s4, s17, 20480")
    e("s_add_u32 s4, s4, %d" % (WS_WF + 4096))
    e("s_add_u32 s46, s14, s4")
    e("s_addc_u32 s47, s15, 0")
    for ks in range(20):
        if ks and ks % 8 == 0:
            e("s_add_u32 s46, s46, 8192")
            e("s_addc_u32 s47, s47, 0")
        e("global_load_dwordx4 v[%d:%d], v254, s[46:47] offset:%d" % (WF + 4 * ks, WF + 4 * ks + 3, (ks % 8) * 1024 - 4096))
    LA = 240; TS = 241; LBB = 242; SG = 243; SG2 = 244; ADR = 245; TMP = 246
    TA = [248, 164 if False else 248]
    e("v_lshrrev_b32 v%d, 4, v%d" % (TMP, lane))
    e("v_and_b32 v%d, 3, v%d" % (SG, lane))
    e("v_bfe_u32 v%d, v%d, 2, 2" % (ADR, lane))
    e("v_lshlrev_b32 v%d, 8, v%d" % (LA, SG))
    e("v_lshl_add_u32 v%d, v%d, 10, v%d" % (LA, ADR, LA))
    e("v_and_b32 v%d, 1, v%d" % (ADR, ADR))
    e("v_mul_u32_u24 v%d, 12, v%d" % (ADR, ADR))
    e("v_or_b32 v%d, v%d, v%d" % (SG, SG, ADR))
    e("v_lshlrev_b32 v%d, 4, v%d" % (SG, SG))
    e("v_mov_b32 v%d, v%d" % (SG2, SG))
    e("v_add_u32 v%d, %d, v%d" % (LBB, L_F0 + 16384, LA))
    e("v_mov_b32 v%d, 8192" % TS)
    e("v_mov_b32 v%d, v%d" % (TMP, LA))
    e("v_add_u32 v%d, %d, v%d" % (LA, L_F0, LA))
    for gp in range(1, 4):
        lo = 0xffff0000 if gp == 1 else 0
        hi = {1: 0, 2: 0x0000ffff, 3: 0xffff0000}[gp]
        e("s_mov_b32 exec_lo, 0x%x" % lo)
        e("s_mov_b32 exec_hi, 0x%x" % hi)
        e("v_add_u32 v%d, %d, v%d" % (LA, L_F1 + (gp - 1) * 24576, TMP))
        e("v_add_u32 v%d, %d, v%d" % (LBB, L_F1 + (7 if gp == 3 else 6) * 12288, TMP))
        e("v_mov_b32 v%d, 12288" % TS)
        if gp == 2: e("v_xor_b32 v%d, 128, v%d" % (SG2, SG2))
    e("s_mov_b64 exec, -1")
    e("s_mul_i32 s4, s17, 5")
    e("s_mov_b32 s48, 0xffff0000")
    e("s_mov_b32 s49, -1")
    TA0 = 248; TA1 = 252
    e("v_mov_b32 v%d, v%d" % (247, lane))
    lane = 247
    for u in range(5):
        A = ACC + 32 * u
        e("s_lshr_b32 s5, s4, 4")
        e("s_and_b32 s6, s4, 15")
        e("s_lshl_b32 s6, s6, 4")
        e("s_cmp_lt_u32 s4, 32")
        e("s_cselect_b64 s[50:51], -1, 0")
        e("v_mad_u32_u24 v%d, v%d, s5, v%d" % (ADR, TS, LA))
        e("v_cndmask_b32 v%d, v%d, v%d, s[50:51]" % (ADR, LBB, ADR))
        e("v_cndmask_b32 v%d, v%d, v%d, s[50:51]" % (TMP, SG2, SG))
        e("v_xor_b32 v%d, s6, v%d" % (TMP, TMP))
        e("v_add_u32 v%d, v%d, v%d" % (ADR, ADR, TMP))
        for dd in range(4):
            e("v_cvt_pk_bf16_f32 v%d, v%d, v%d" % (TA0 + dd, A + 8 * dd, A + 8 * dd + 4))
        e("ds_write_b128 v%d, v[%d:%d]" % (ADR, TA0, TA0 + 3))
        for dd in range(4):
            e("v_cvt_pk_bf16_f32 v%d, v%d, v%d" % (TA1 + dd, A + 8 * dd + 1, A + 8 * dd + 5))
        e("ds_write_b128 v%d, v[%d:%d] offset:4096" % (ADR, TA1, TA1 + 3))
        for j in range(8):
            e("v_sub_f32 v%d, v%d, v%d" % (A + 4 * j + 2, A + 4 * j + 2, A + 4 * j + 3))
        for dd in range(4):
            e("v_cvt_pk_bf16_f32 v%d, v%d, v%d" % (A + dd, A + 8 * dd + 2, A + 8 * dd + 6))
        e("s_mov_b64 exec, s[48:49]")
        e("ds_write_b128 v%d, v[%d:%d] offset:8192" % (ADR, A, A + 3))
        e("s_mov_b64 exec, -1")
        e("s_add_u32 s4, s4, 1")
    RA = [240, 241, 242, 243]
    e("s_waitcnt lgkmcnt(0)")
    e("v_lshrrev_b32 v%d, 4, v%d" % (TMP, lane))
    e("v_and_b32 v%d, 15, v%d" % (ADR, lane))
    e("v_xor_b32 v%d, v%d, v%d" % (RA[0], ADR, TMP))
    e("v_lshlrev_b32 v%d, 4, v%d" % (RA[0], RA[0]))
    e("v_lshl_add_u32 v%d, v%d, 8, v%d" % (RA[0], TMP, RA[0]))
    e("v_xor_b32 v%d, 0xc0, v%d" % (RA[1], RA[0]))
    e("v_add_u32 v%d, %d, v%d" % (RA[2], L_F + 65536, RA[0]))
    e("v_add_u32 v%d, %d, v%d" % (RA[3], L_F + 65536, RA[1]))
    e("v_add_u32 v%d, %d, v%d" % (RA[0], L_F, RA[0]))
    e("v_add_u32 v%d, %d, v%d" % (RA[1], L_F, RA[1]))
    VO = [248, 249, 250]; VOX = 251
    e("s_mul_i32 s4, s16, %d" % (NPB * 1024))
    e("s_lshl_b32 s5, s17, 5")
    e("s_add_u32 s4, s4, s5")
    e("v_lshlrev_b32 v%d, 10, v%d" % (VO[0], ADR))
    e("v_lshl_add_u32 v%d, v%d, 3, v%d" % (VO[0], TMP, VO[0]))
    e("v_add_u32 v%d, s4, v%d" % (VO[0], VO[0]))
    e("v_add_u32 v%d, 16384, v%d" % (VO[1], VO[0]))
    e("v_add_u32 v%d, 32768, v%d" % (VO[2], VO[0]))
    e("v_mov_b32 v%d, v%d" % (VOX, VO[2]))
    e("s_mov_b32 s52, 0xff00ff00")
    e("s_mov_b32 s53, 0xff00ff00")
    e("s_mov_b64 exec, s[52:53]")
    e("v_add_u32 v%d, %d, v%d" % (VOX, -8192 + 256, VOX))
    e("s_mov_b64 exec, -1")
    stamp()
    e("s_barrier")
    stamp()
    seq = []
    for ks in range(8):
        for tau in range(3): seq.append((ks, 4 * tau, tau * 8192 + ks * 1024, ks, ks == 0))
    for ks in range(12):
        for tl in range(8): seq.append((8 + ks, 12 + 4 * tl, 24576 + tl * 12288 + ks * 1024, ks, ks == 0))
    RING = 48; NR = 16; AHEAD = 12
    def rd(n):
        wk, acc, off, ks, first = seq[n]
        hi = off >= 65536
        r = RING + 4 * (n % NR)
        e("ds_read_b128 v[%d:%d], v%d offset:%d" % (r, r + 3, RA[(2 if hi else 0) + (ks & 1)], off - (65536 if hi else 0)))
    for n in range(AHEAD): rd(n)
    GT = 112
    lastw = -1
    gate_code = []
    for tau in range(3):
        for rr in range(4):
            g = GT + 4 * tau + rr; a = 4 * tau + rr
            gate_code.append("v_mul_f32 v%d, 0xbfb8aa3b, v%d" % (g, a))
    for k in range(12): gate_code.append("v_exp_f32 v%d, v%d" % (GT + k, GT + k))
    for k in range(12): gate_code.append("v_add_f32 v%d, 1.0, v%d" % (GT + k, GT + k))
    for k in range(12): gate_code.append("v_rcp_f32 v%d, v%d" % (GT + k, GT + k))
    for tau in range(3):
        gate_code.append("v_cvt_pk_bf16_f32 v%d, v%d, v%d" % (128 + 2 * tau, 4 * tau, 4 * tau + 1))
        gate_code.append("v_cvt_pk_bf16_f32 v%d, v%d, v%d" % (129 + 2 * tau, 4 * tau + 2, 4 * tau + 3))
    for rr in range(4): gate_code.append("v_mov_b32 v%d, v%d" % (124 + rr, GT + 8 + rr))
    for rr in range(4): gate_code.append("v_mov_b32_dpp v%d, v%d row_shr:8 row_mask:0xf bank_mask:0xc" % (124 + rr, GT + 8 + rr))
    for n in range(len(seq)):
        wk, acc, off, ks, first = seq[n]
        if wk != lastw:
            e("s_waitcnt vmcnt(%d)" % (19 - wk)); lastw = wk
        left = min(AHEAD, len(seq) - n) - 1
        e("s_waitcnt lgkmcnt(%d)" % left)
        r = RING + 4 * (n % NR)
        e("v_mfma_f32_16x16x32_bf16 v[%d:%d], v[%d:%d], v[%d:%d], %s" %
          (acc, acc + 3, WF + 4 * wk, WF + 4 * wk + 3, r, r + 3, "0" if first else "v[%d:%d]" % (acc, acc + 3)))
        if n + AHEAD < len(seq): rd(n + AHEAD)
        if n >= 24 + 10 and gate_code:
            e(gate_code.pop(0))
    assert not gate_code
    stamp()
    e("global_store_dwordx2 v%d, v[128:129], s[12:13]" % VO[0])
    e("global_store_dwordx2 v%d, v[130:131], s[12:13]" % VO[1])
    e("s_not_b64 exec, s[52:53]")
    e("global_store_dwordx2 v%d, v[132:133], s[12:13]" % VO[2])
    e("s_mov_b64 exec, -1")
    e("s_nop 4")
    for tl in range(8):
        a = 12 + 4 * tl
        if tl < 6: i = tl // 2; tau = tl % 2; g = GT + 4 * tau; vo = VO[tau]; off = 256 * (i + 1)
        elif tl == 6: g = 124; vo = VOX; off = 256
        else: g = GT + 8; vo = VO[2]; off = 768
        for rr in range(4):
            e("v_mul_f32 v%d, v%d, v%d" % (a + rr, a + rr, g + rr))
        e("v_cvt_pk_bf16_f32 v%d, v%d, v%d" % (a, a, a + 1))
        e("v_cvt_pk_bf16_f32 v%d, v%d, v%d" % (a + 1, a + 2, a + 3))
        if tl == 7: e("s_not_b64 exec, s[52:53]")
        e("global_store_dwordx2 v%d, v[%d:%d], s[12:13] offset:%d" % (vo, a, a + 1, off))
    if DIAG: e("s_waitcnt vmcnt(0)")
    dump_stamps("s[14:15]", "s17", 1 << 20, 140)
    if opt("dbg2", 0):
        e("s_cmp_lg_u32 s2, %d" % (opt("dbg2", 0) - 1))
        e("s_cbranch_scc1 L2_end")
        e("s_cmp_lg_u32 s17, 0")
        e("s_cbranch_scc1 L2_end")
        e("s_load_dwordx2 s[42:43], s[0:1], 80")
        e("s_mov_b64 exec, -1")
        e("v_mbcnt_lo_u32_b32 v141, -1, 0")
        e("v_lshlrev_b32 v141, 2, v141")
        e("v_add_u32 v142, %d, v141" % (WS_DBG + (opt("dbg2", 0) - 1) * 512))
        e("global_load_dword v143, v142, s[14:15]")
        e("s_waitcnt vmcnt(0) lgkmcnt(0)")
        e("v_readfirstlane_b32 s44, v143")
        for k in range(9): e("v_writelane_b32 v143, s%d, %d" % (64 + 2 * k, 7 + k))
        e("s_nop 1")
        e("v_subrev_u32 v143, s44, v143")
        e("v_writelane_b32 v143, s90, 0")
        e("s_mov_b64 exec, 0xffff")
        e("global_store_dword v141, v143, s[42:43]")
    lab("L2_end")
    e("s_endpgm")
    out.append(".p2align 13")
    e("s_endpgm")

header()
k1()
k2()
out.append('.section .rodata,"a"')
kdesc("gstp_bin_kernel", 72, 96 if DIAG else 48)
kdesc("gstp_main_kernel", 256, 96 if DIAG else 64)
open(sys.argv[1], "w").write("\n".join(out) + "\n")
```

```python
import sys
NAME = "gather_scatter__tensor_product_equiv_equiformer__graph"
OPT = dict(a.split('=') for a in sys.argv[2:]) if len(sys.argv) > 2 else {}
def opt(k, d): return type(d)(OPT.get(k, d))

N = 10000; E = 320000
NB = 250; NPB = 40
G = 250; CH = 1280
WS_REC = 0
WS_TAB = 4 << 20
WS_WF = 5 << 20
U = 10
OOB = 0x7F000000
NPH = opt("nph", 5)
PHMUL = {5: 0x8312, 6: 0x9d49, 7: 0xb780, 8: 0xd1b7}[NPH]
L_OFFS = 0; OFFS_STRIDE = 256
L_COEF = 10240; COEF_STRIDE = 640
L_FLAG = 36864
L_F = 37888
L_CNT = L_F
L_ST = L_F + 2048
L_F0 = L_F; L_F1 = L_F + 3 * 8192
LDS_MAIN = L_F + 122880

out = []
def e(s): out.append("    " + s)
def lab(s): out.append(s + ":")
def c(s): out.append("    ; " + s)

def header():
    ref = open("cdna_kernels/%s.s.ref" % NAME).read().split("\n")
    for l in ref:
        if l.startswith("; Override") : break
        out.append(l)
    out.append("; @launch kernel=gstp_bin_kernel grid=(%d,1,1) block=(384,1,1) lds=6144" % G)
    for _ in range(opt("nop", 0)):
        out.append("; @launch kernel=gstp_nop_kernel grid=(250,1,1) block=(64,1,1) lds=0")
    out.append("; @launch kernel=gstp_main_kernel grid=(%d,1,1) block=(512,1,1) lds=%d" % (NB, LDS_MAIN))
    out.append('.amdgcn_target "amdgcn-amd-amdhsa--gfx950"')
    out.append(".text")

def kstart(name):
    out.append(".globl %s" % name)
    out.append(".p2align 8")
    out.append(".type %s,@function" % name)
    lab(name)

def kdesc(name, vgpr, sgpr):
    out.append(".p2align 6")
    out.append(".amdhsa_kernel %s" % name)
    out.append("  .amdhsa_next_free_vgpr %d" % vgpr)
    out.append("  .amdhsa_next_free_sgpr %d" % sgpr)
    out.append("  .amdhsa_accum_offset %d" % ((vgpr + 3) // 4 * 4))
    out.append("  .amdhsa_group_segment_fixed_size 0")
    out.append("  .amdhsa_kernarg_size 96")
    out.append("  .amdhsa_user_sgpr_count 2")
    out.append("  .amdhsa_user_sgpr_kernarg_segment_ptr 1")
    out.append("  .amdhsa_system_sgpr_workgroup_id_x 1")
    out.append(".end_amdhsa_kernel")

DIAG = opt("diag", 0)
WS_DBG = 8 << 20
nstamp = [0]
def stamp():
    if not DIAG: return
    k = nstamp[0]; nstamp[0] += 1
    e("s_memrealtime s[%d:%d]" % (64 + 2 * k, 65 + 2 * k))
    if k == 0: e("s_memtime s[92:93]")
    e("s_waitcnt lgkmcnt(0)")
def dump_stamps(ws, swave, base, vt):
    if not DIAG: return
    e("s_memtime s[90:91]")
    stamp()
    e("s_mov_b64 exec, -1")
    e("v_mov_b32 v%d, 0" % vt)
    e("s_sub_u32 s90, s90, s92")
    e("v_writelane_b32 v%d, s90, 14" % vt)
    for k in range(nstamp[0]):
        e("v_writelane_b32 v%d, s%d, %d" % (vt, 64 + 2 * k, k))
    e("s_getreg_b32 s62, hwreg(HW_REG_XCC_ID)")
    e("v_writelane_b32 v%d, s62, 15" % vt)
    e("s_lshl_b32 s62, s2, 3")
    e("s_add_u32 s62, s62, %s" % swave)
    e("s_lshl_b32 s62, s62, 6")
    e("s_add_u32 s62, s62, %d" % (WS_DBG + base))
    e("v_mbcnt_lo_u32_b32 v%d, -1, 0" % (vt + 1))
    e("v_lshl_add_u32 v%d, v%d, 2, s62" % (vt + 1, vt + 1))
    e("s_mov_b64 exec, 0xffff")
    e("global_store_dword v%d, v%d, %s" % (vt + 1, vt, ws))
    nstamp[0] = 0

def wave_scan(v):
    for sh in (1, 2, 4, 8):
        e("s_nop 1")
        e("v_add_u32_dpp %s, %s, %s row_shr:%d row_mask:0xf bank_mask:0xf bound_ctrl:0" % (v, v, v, sh))
    e("s_nop 1")
    e("v_add_u32_dpp %s, %s, %s row_bcast:15 row_mask:0xa bank_mask:0xf" % (v, v, v))
    e("s_nop 1")
    e("v_add_u32_dpp %s, %s, %s row_bcast:31 row_mask:0xc bank_mask:0xf" % (v, v, v))

def k1():
    kstart("gstp_bin_kernel")
    e("s_cmp_ge_u32 s2, %d" % G)
    e("s_cbranch_scc1 L1_end")
    e("s_load_dwordx16 s[4:19], s[0:1], 0")
    e("s_load_dwordx2 s[20:21], s[0:1], 88")
    e("v_lshrrev_b32 v4, 6, v0")
    e("s_nop 0")
    e("v_readfirstlane_b32 s3, v4")
    e("s_cmp_eq_u32 s3, 5")
    e("s_cbranch_scc1 L1_help")
    stamp()
    if opt("dbgp", 0): e("s_memrealtime s[36:37]")
    e("s_mul_i32 s22, s2, %d" % (CH * 4))
    e("s_mul_i32 s23, s2, %d" % (CH * 6))
    e("s_mul_i32 s24, s2, %d" % (CH * 2))
    e("v_lshl_add_u32 v1, v0, 4, s22")
    e("v_mul_u32_u24 v2, 24, v0")
    e("v_add_u32 v2, s23, v2")
    e("v_lshl_add_u32 v3, v0, 3, s24")
    e("v_lshlrev_b32 v4, 2, v0")
    e("v_mov_b32 v5, 0")
    e("ds_write_b32 v4, v5")
    e("s_waitcnt lgkmcnt(0)")
    e("global_load_dwordx4 v[8:11], v1, s[12:13]")
    e("global_load_dwordx4 v[12:15], v1, s[10:11]")
    e("global_load_dwordx4 v[16:19], v2, s[6:7]")
    e("global_load_dwordx2 v[20:21], v2, s[6:7] offset:16")
    e("global_load_dwordx2 v[22:23], v3, s[8:9]")
    e("v_mov_b32 v5, 1")
    KP = opt("k1pf", 0)
    if KP:
        e("s_mul_i32 s28, s2, 40960")
        e("v_lshl_add_u32 v65, v0, 7, s28")
    e("s_barrier")
    if KP: e("global_load_dword v64, v65, s[4:5]")
    if KP == 2: e("global_load_dword v64, v65, s[4:5] offset:64")
    stamp()
    e("s_waitcnt vmcnt(%d)" % (4 + KP))
    stamp()
    for k in range(4):
        e("v_mul_u32_u24 v%d, 0xcccd, v%d" % (24 + k, 8 + k))
        e("v_lshrrev_b32 v%d, 21, v%d" % (24 + k, 24 + k))
        e("v_mul_u32_u24 v6, 40, v%d" % (24 + k))
        e("v_sub_u32 v%d, v%d, v6" % (8 + k, 8 + k))
        e("v_lshlrev_b32 v%d, 2, v%d" % (24 + k, 24 + k))
        e("ds_add_rtn_u32 v%d, v%d, v5" % (28 + k, 24 + k))
    e("s_waitcnt vmcnt(%d)" % (3 + KP))
    for k in range(4):
        e("v_mul_u32_u24 v6, 0x%x, v%d" % (PHMUL, 12 + k))
        if opt("shift", 1):
            e("v_mul_u32_u24 v7, 52, v%d" % (8 + k))
            e("v_lshrrev_b32 v7, 8, v7")
            e("v_mul_u32_u24 v7, 5, v7")
            e("v_sub_u32 v7, v%d, v7" % (8 + k))
            e("v_mul_u32_u24 v7, %d, v7" % ((1 << 26) // 5))
            e("v_sub_u32 v6, v6, v7")
            e("v_add_u32 v6, %d, v6" % (2 * ((1 << 26) // 5)))
            e("v_ashrrev_i32 v6, 26, v6")
            e("v_med3_i32 v6, v6, 0, %d" % (NPH - 1))
        else:
            e("v_lshrrev_b32 v6, 26, v6")
        e("v_lshl_add_u32 v6, v%d, 3, v6" % (8 + k))
        e("v_lshl_or_b32 v%d, v%d, 10, v6" % (34 + 4 * k, 12 + k))
    e("s_waitcnt vmcnt(%d)" % KP)
    if opt("dbgp", 0): e("s_memrealtime s[38:39]")
    stamp()
    def unpack(dst, idx, base):
        r = base + idx // 2
        if idx % 2 == 0: e("v_lshlrev_b32 %s, 16, v%d" % (dst, r))
        else: e("v_and_b32 %s, 0xffff0000, v%d" % (dst, r))
    for k in range(4):
        unpack("v48", k, 22)
        for j in range(3):
            unpack("v%d" % (49 + j), 3 * k + j, 16)
        for j in range(3):
            e("v_mul_f32 v%d, v48, v%d" % (49 + j, 49 + j))
        e("v_cvt_pk_bf16_f32 v%d, v48, v49" % (32 + 4 * k))
        e("v_cvt_pk_bf16_f32 v%d, v50, v51" % (33 + 4 * k))
    e("s_waitcnt lgkmcnt(0)")
    e("s_barrier")
    stamp()
    e("v_and_b32 v4, 63, v0")
    e("v_lshlrev_b32 v4, 4, v4")
    e("ds_read_b128 v[52:55], v4")
    e("s_add_u32 s25, s3, 1")
    e("s_lshl_b32 s25, s25, 10")
    e("s_waitcnt lgkmcnt(0)")
    e("v_add_u32 v57, v52, v53")
    e("v_add_u32 v58, v57, v54")
    e("v_add_u32 v59, v58, v55")
    e("v_mov_b32 v60, v59")
    wave_scan("v60")
    e("v_sub_u32 v60, v60, v59")
    e("v_add_u32 v61, v60, v52")
    e("v_add_u32 v62, v60, v57")
    e("v_add_u32 v63, v60, v58")
    e("v_add_u32 v7, s25, v4")
    e("ds_write_b128 v7, v[60:63]")
    for k in range(4):
        e("v_add_u32 v%d, s25, v%d" % (24 + k, 24 + k))
    e("s_waitcnt lgkmcnt(0)")
    for k in range(4):
        e("ds_read_b32 v%d, v%d" % (24 + k, 24 + k))
    e("s_cmp_lg_u32 s3, 0")
    e("s_cbranch_scc1 L1_notab")
    for k in range(4):
        e("v_lshl_or_b32 v%d, v%d, 16, v%d" % (60 + k, 52 + k, 60 + k))
    e("s_lshl_b32 s26, s2, 10")
    e("s_add_u32 s26, s26, %d" % WS_TAB)
    e("v_add_u32 v7, s26, v4")
    e("global_store_dwordx4 v7, v[60:63], s[20:21]")
    lab("L1_notab")
    e("s_mul_i32 s26, s2, %d" % (CH * 12))
    e("s_add_u32 s26, s26, %d" % WS_REC)
    e("v_mov_b32 v6, s26")
    e("s_waitcnt lgkmcnt(0)")
    for k in range(4):
        e("v_add_u32 v%d, v%d, v%d" % (24 + k, 24 + k, 28 + k))
        e("v_mad_u32_u24 v%d, v%d, 12, v6" % (24 + k, 24 + k))
        e("global_store_dwordx3 v%d, v[%d:%d], s[20:21]" % (24 + k, 32 + 4 * k, 34 + 4 * k))
    stamp()
    for _ in range(opt("k1sleep", 0)): e("s_sleep 33")
    if DIAG: e("s_waitcnt vmcnt(0)")
    if opt("dbgp", 0):
        e("s_waitcnt vmcnt(0)")
        e("s_memrealtime s[40:41]")
        e("s_load_dwordx2 s[42:43], s[0:1], 80")
        e("s_waitcnt lgkmcnt(0)")
        e("s_and_b32 s44, s2, 31")
        e("s_or_b32 s44, s44, s3")
        e("s_cmp_lg_u32 s44, 0")
        e("s_cbranch_scc1 L1_end")
        e("s_sub_u32 s40, s40, s36")
        e("s_sub_u32 s38, s38, s36")
        e("v_mov_b32 v4, s38")
        e("v_mov_b32 v5, s40")
        e("s_lshr_b32 s44, s2, 5")
        e("s_lshl_b32 s44, s44, 3")
        e("v_mov_b32 v6, s44")
        e("s_mov_b64 exec, 1")
        e("global_store_dwordx2 v6, v[4:5], s[42:43]")
    dump_stamps("s[20:21]", "s3", 0, 4)
    e("s_endpgm")
    lab("L1_help")
    e("v_and_b32 v1, 63, v0")
    e("s_waitcnt lgkmcnt(0)")
    e("s_cmp_ge_u32 s2, 160")
    e("s_cbranch_scc1 L1_now")
    e("s_mul_i32 s22, s2, 3277")
    e("s_lshr_b32 s22, s22, 16")
    e("s_mul_i32 s23, s22, 20")
    e("s_sub_u32 s23, s2, s23")
    e("s_cmp_lt_u32 s23, 8")
    e("s_cselect_b64 s[24:25], s[16:17], s[18:19]")
    e("s_cselect_b32 s26, 0, 8")
    e("s_sub_u32 s26, s23, s26")
    e("s_lshl_b32 s26, s26, 13")
    e("s_lshl_b32 s27, s22, 5")
    e("s_add_u32 s26, s26, s27")
    e("v_lshrrev_b32 v2, 4, v1")
    e("v_and_b32 v3, 15, v1")
    e("v_lshlrev_b32 v4, 11, v2")
    e("v_lshl_add_u32 v4, v3, 1, v4")
    e("v_add_u32 v4, s26, v4")
    e("s_lshl_b32 s27, s23, 6")
    e("v_lshl_add_u32 v5, v2, 4, s27")
    e("global_load_dwordx4 v[16:19], v5, s[14:15]")
    for i in range(8):
        e("global_load_ushort v%d, v4, s[24:25] offset:%d" % (8 + i, 256 * i))
    e("s_branch L1_now2")
    lab("L1_now")
    if opt("cpf", 0):
        e("s_getpc_b64 s[24:25]")
        lab("L1_pc")
        e("s_add_u32 s24, s24, gstp_main_kernel-L1_pc")
        e("s_addc_u32 s25, s25, 0")
        e("v_lshlrev_b32 v2, 7, v1")
        e("v_mov_b32 v3, s25")
        e("v_add_co_u32 v2, vcc, s24, v2")
        e("s_nop 1")
        e("v_addc_co_u32 v3, vcc, 0, v3, vcc")
        for k in range(opt("cpf", 0)):
            e("global_load_dword v8, v[2:3], off")
            e("v_add_co_u32 v2, vcc, 8192, v2")
            e("s_nop 1")
            e("v_addc_co_u32 v3, vcc, 0, v3, vcc")
    lab("L1_now2")
    e("s_barrier")
    e("s_barrier")
    if opt("prefetch", 1):
        e("s_mul_i32 s28, s2, 40960")
        e("v_lshl_add_u32 v6, v1, 4, s28")
        for i in range(10):
            for j in range(4):
                e("global_load_dwordx4 v[40:43], v6, s[4:5] offset:%d" % (1024 * j))
            if i < 9: e("v_add_u32 v6, 4096, v6")
        nx = 40
    else:
        nx = 0
    e("s_cmp_ge_u32 s2, 160")
    e("s_cbranch_scc1 L1_end")
    e("s_waitcnt vmcnt(%d)" % nx)
    for i in range(8):
        e("v_lshlrev_b32 v%d, 16, v%d" % (8 + i, 8 + i))
        unpack("v20", i, 16)
        e("v_mul_f32 v%d, v20, v%d" % (8 + i, 8 + i))
    for i in range(4):
        e("v_cvt_pk_bf16_f32 v%d, v%d, v%d" % (24 + i, 8 + 2 * i, 9 + 2 * i))
    e("s_lshl_b32 s26, s2, 10")
    e("s_add_u32 s26, s26, %d" % WS_WF)
    e("v_lshl_add_u32 v7, v1, 4, s26")
    e("global_store_dwordx4 v7, v[24:27], s[20:21]")
    lab("L1_end")
    e("s_endpgm")

ACC = 0; LB = [160, 192]; BT = [224, 228]; AF = [232, 236]; VOFF = 240
LC = 245; VCA = 246; PSEL = 247; RB = 249; REM = 250; PEND = 251; TID = 252
SL = 54
SO = 20
SM = 28
def rec(i): return 160 + 4 * i
def kad(i): return 200 + i
T0 = 210
MSK = 20
def msk(i): return "s[%d:%d]" % (MSK + 2 * i, MSK + 2 * i + 1)

def k2():
    kstart("gstp_main_kernel")
    e("s_cmp_ge_u32 s2, %d" % NB)
    e("s_cbranch_scc1 L2_end")
    e("s_load_dwordx2 s[8:9], s[0:1], 0")
    e("s_load_dwordx2 s[12:13], s[0:1], 72")
    e("s_load_dwordx2 s[14:15], s[0:1], 88")
    stamp()
    e("v_mov_b32 v%d, v0" % TID)
    e("v_lshrrev_b32 v%d, 6, v0" % T0)
    e("s_and_b32 s4, s2, 7")
    e("s_lshr_b32 s5, s2, 3")
    e("s_mul_i32 s16, s4, 31")
    e("s_min_u32 s4, s4, 2")
    e("s_add_u32 s16, s16, s4")
    e("s_add_u32 s16, s16, s5")
    e("v_readfirstlane_b32 s17, v%d" % T0)
    e("v_lshrrev_b32 v%d, 1, v0" % (T0 + 1))
    e("v_min_u32 v%d, %d, v%d" % (T0 + 1, G - 1, T0 + 1))
    e("s_lshl_b32 s4, s16, 2")
    e("s_add_u32 s4, s4, %d" % WS_TAB)
    e("v_lshl_add_u32 v%d, v%d, 10, s4" % (T0 + 2, T0 + 1))
    e("s_waitcnt lgkmcnt(0)")
    e("global_load_dword v%d, v%d, s[14:15]" % (T0 + 3, T0 + 2))
    e("s_mov_b32 s10, %d" % (N * 1024))
    e("s_mov_b32 s11, 0x20000")
    if opt("prio", 0): e("s_setprio 3")
    e("s_mov_b32 s18, 0x05040100")
    e("s_mov_b32 s19, 0x07060302")
    e("v_and_b32 v%d, 63, v0" % LC)
    e("v_lshlrev_b32 v%d, 4, v%d" % (LC, LC))
    tab = {(0, 0): 0, (1, 1): 1, (1, 2): 2, (1, 3): 3,
           (4, 0): 1, (5, 1): 0, (6, 3): 2, (7, 2): 3,
           (8, 0): 2, (9, 2): 0, (10, 1): 3, (11, 3): 1,
           (12, 0): 3, (13, 3): 0, (14, 2): 1, (15, 1): 2}
    e("v_mov_b32 v%d, 64" % PSEL)
    for p_ in range(4):
        m_ = 0
        for (m, q), v in tab.items():
            if v == p_: m_ |= 1 << (16 * q + m)
        e("s_mov_b32 exec_lo, 0x%x" % (m_ & 0xffffffff))
        e("s_mov_b32 exec_hi, 0x%x" % (m_ >> 32))
        e("v_mov_b32 v%d, %d" % (PSEL, 16 * p_))
    e("s_mov_b64 exec, -1")
    for r in range(160):
        e("v_mov_b32 v%d, 0" % r)
    e("s_mul_i32 s42, s17, 1280")
    e("s_add_u32 s42, s42, %d" % L_ST)
    e("s_waitcnt vmcnt(0)")
    stamp()
    t = T0
    e("v_and_b32 v%d, 1, v%d" % (t + 4, TID))
    e("v_and_b32 v%d, 0xffff, v%d" % (t + 5, t + 3))
    e("v_lshrrev_b32 v%d, 16, v%d" % (REM, t + 3))
    e("v_cmp_gt_u32 vcc, %d, v%d" % (2 * G, TID))
    e("v_mul_u32_u24 v%d, %d, v%d" % (t + 6, CH, t + 1))
    e("v_cndmask_b32 v%d, 0, v%d, vcc" % (REM, REM))
    e("v_add3_u32 v%d, v%d, v%d, v%d" % (t + 6, t + 6, t + 5, t + 4))
    e("v_mul_u32_u24 v%d, 12, v%d" % (RB, t + 6))
    if WS_REC: e("v_add_u32 v%d, %d, v%d" % (RB, WS_REC, RB))
    e("v_sub_u32 v%d, v%d, v%d" % (REM, REM, t + 4))
    lab("L2_batch")
    e("v_add_u32 v%d, 1, v%d" % (t, REM))
    e("v_ashrrev_i32 v%d, 1, v%d" % (t, t))
    e("v_max_i32 v%d, 0, v%d" % (t, t))
    e("v_min_i32 v%d, %d, v%d" % (t, U, t))
    e("v_lshlrev_b32 v%d, v%d, 1" % (PEND, t) if False else "v_mov_b32 v%d, 1" % (t + 1))
    e("v_lshlrev_b32 v%d, v%d, v%d" % (PEND, t, t + 1))
    e("v_add_u32 v%d, -1, v%d" % (PEND, PEND))
    lab("L2_pass")
    for i in range(U):
        e("v_and_b32 v%d, %d, v%d" % (t + (i & 1), 1 << i, PEND))
        e("v_cmp_ne_u32 %s, 0, v%d" % (msk(i), t + (i & 1)))
    for i in range(U):
        e("s_mov_b64 exec, %s" % msk(i))
        e("global_load_dwordx3 v[%d:%d], v%d, s[14:15] offset:%d" % (rec(i), rec(i) + 2, RB, 24 * i))
    e("s_mov_b64 exec, -1")
    z = T0 + 2
    for k in range(4): e("v_mov_b32 v%d, 0" % (z + k))
    for k in range(4): e("v_mov_b32 v%d, 0x%x" % (z + 4 + k, OOB))
    e("v_lshlrev_b32 v%d, 4, v%d" % (t, TID))
    e("v_lshlrev_b32 v%d, 3, v%d" % (t + 1, TID))
    e("v_lshlrev_b32 v%d, 2, v%d" % (t + 10, TID))
    e("ds_write_b128 v%d, v[%d:%d] offset:%d" % (t, z + 4, z + 7, L_OFFS))
    e("ds_write_b32 v%d, v%d offset:%d" % (t + 10, z + 4, L_OFFS + 8192))
    for k in range(3):
        e("ds_write_b128 v%d, v[%d:%d] offset:%d" % (t, z, z + 3, L_COEF + 8192 * k))
    e("ds_write_b32 v%d, v%d offset:%d" % (t + 10, z, L_COEF + 24576))
    e("v_lshlrev_b32 v%d, 2, v%d" % (t + 10, TID))
    e("ds_write_b32 v%d, v%d offset:%d" % (t + 10, z, L_CNT))
    e("s_mov_b64 exec, 1")
    e("ds_write_b64 v%d, v[%d:%d] offset:%d" % (z, z, z + 1, L_FLAG))
    e("s_mov_b64 exec, -1")
    one = T0 + 11
    e("v_mov_b32 v%d, 1" % one)
    e("s_waitcnt lgkmcnt(0)")
    e("s_barrier")
    for i in range(U):
        e("s_waitcnt vmcnt(%d)" % (U - 1 - i))
        e("s_mov_b64 exec, %s" % msk(i))
        e("v_and_b32 v%d, 0x3ff, v%d" % (kad(i), rec(i) + 2))
        e("v_lshlrev_b32 v%d, 2, v%d" % (kad(i), kad(i)))
        e("ds_add_rtn_u32 v%d, v%d, v%d offset:%d" % (rec(i) + 3, kad(i), one, L_CNT))
    e("s_mov_b64 exec, -1")
    e("s_waitcnt lgkmcnt(0)")
    e("s_barrier")
    stamp()
    PF1 = opt("pf1", 0); PF2 = opt("pf2", 0)
    NPF = PF1 + PF2
    if NPF:
        e("s_lshr_b32 s4, s2, 3")
        e("s_lshl_b32 s4, s4, 3")
        e("s_add_u32 s4, s4, s17")
        e("s_lshl_b32 s4, s4, 10")
        for k in range(PF1):
            e("buffer_load_dwordx4 v[%d:%d], v%d, s[8:11], s4 offen" % (BT[0], BT[0] + 3, LC))
            e("s_add_u32 s4, s4, %d" % (256 * 1024))
        e("s_lshl_b32 s4, s2, 3")
        e("s_add_u32 s4, s4, s17")
        e("s_add_u32 s4, s4, %d" % (256 * PF1))
        e("s_lshl_b32 s4, s4, 10")
        for k in range(PF2):
            e("buffer_load_dwordx4 v[%d:%d], v%d, s[8:11], s4 offen" % (BT[0], BT[0] + 3, LC))
            e("s_add_u32 s4, s4, %d" % (2000 * 1024))
    cc = 212
    e("v_and_b32 v%d, 63, v%d" % (t, TID))
    e("v_lshlrev_b32 v%d, 5, v%d" % (t, t))
    e("v_cmp_gt_u32 vcc, %d, v%d" % (NPB * 32, t))
    e("s_and_b64 exec, exec, vcc")
    e("ds_read_b128 v[%d:%d], v%d offset:%d" % (cc, cc + 3, t, L_CNT))
    e("ds_read_b128 v[%d:%d], v%d offset:%d" % (cc + 4, cc + 7, t, L_CNT + 16))
    tot = 220; lim = 221; tmp = 222; en = 223
    f = 228
    e("s_waitcnt lgkmcnt(0)")
    e("v_add_u32 v%d, v%d, v%d" % (tot, cc, cc + 1))
    for k in range(2, NPH):
        e("v_add_u32 v%d, v%d, v%d" % (tot, tot, cc + k))
    e("v_add_u32 v%d, 7, v%d" % (lim, tot))
    e("v_and_b32 v%d, -8, v%d" % (lim, lim))
    e("v_max_u32 v%d, %d, v%d" % (lim, 8 * NPH, lim))
    e("v_sub_u32 v%d, v%d, v%d" % (lim, lim, tot))
    e("v_mov_b32 v%d, 0" % f)
    e("v_mov_b32 v%d, v%d" % (en, cc))
    for k in range(1, NPH):
        e("v_add_u32 v%d, v%d, v%d" % (lim, lim, cc + k - 1))
        e("v_and_b32 v%d, -8, v%d" % (tmp, lim))
        e("v_min_u32 v%d, %d, v%d" % (tmp, 8 * k, tmp))
        e("v_max_u32 v%d, v%d, v%d" % (f + k, tmp, en))
        e("v_add_u32 v%d, v%d, v%d" % (en, f + k, cc + k))
    e("v_add_u32 v%d, s42, v%d" % (t, t))
    e("ds_write_b128 v%d, v[%d:%d]" % (t, f, f + 3))
    e("ds_write_b128 v%d, v[%d:%d] offset:16" % (t, f + 4, f + 7))
    if opt("bar", 0):
        e("s_mov_b32 s41, 1")
        for k in range(1, 8):
            e("v_cmp_lt_u32 vcc, %d, v%d" % (8 * k, en))
            e("s_cmp_lg_u64 vcc, 0")
            e("s_addc_u32 s41, s41, 0")
    e("s_mov_b64 exec, -1")
    e("s_waitcnt lgkmcnt(0)")
    st = 228
    for i in range(U):
        e("s_mov_b64 exec, %s" % msk(i))
        e("v_add_u32 v%d, s42, v%d" % (st + i, kad(i)))
        e("ds_read_b32 v%d, v%d" % (st + i, st + i))
    e("s_movk_i32 s4, %d" % COEF_STRIDE)
    e("s_movk_i32 s5, 80")
    e("s_waitcnt lgkmcnt(0)")
    for i in range(U):
        sl = rec(i) + 3
        a = T0 + 4 * (i & 1)
        e("s_mov_b64 exec, %s" % msk(i))
        e("s_cbranch_execz L2_pl%d" % i)
        e("v_add_u32 v%d, v%d, v%d" % (sl, sl, st + i))
        e("v_cmp_gt_u32 vcc, 64, v%d" % sl)
        e("s_and_b64 exec, exec, vcc")
        e("v_lshrrev_b32 v%d, 5, v%d" % (a, kad(i)))
        e("v_lshrrev_b32 v%d, 3, v%d" % (a + 1, sl))
        e("v_and_b32 v%d, 7, v%d" % (a + 2, sl))
        e("v_lshlrev_b32 v%d, 1, v%d" % (a + 2, a + 2))
        e("v_mad_u32_u24 v%d, v%d, s5, v%d" % (a + 2, a + 1, a + 2))
        e("v_mad_u32_u24 v%d, v%d, s4, v%d" % (a + 2, a, a + 2))
        e("v_lshl_add_u32 v%d, v%d, 6, v%d" % (a, a, sl))
        e("v_lshlrev_b32 v%d, 2, v%d" % (a, a))
        e("v_and_b32 v%d, 0x%x, v%d" % (rec(i) + 2, 0xffc00 if opt("small", 0) else 0xfffffc00, rec(i) + 2))
        e("ds_write_b32 v%d, v%d offset:%d" % (a, rec(i) + 2, L_OFFS))
        e("ds_write_b16 v%d, v%d offset:%d" % (a + 2, rec(i), L_COEF))
        e("ds_write_b16_d16_hi v%d, v%d offset:%d" % (a + 2, rec(i), L_COEF + 16))
        e("ds_write_b16 v%d, v%d offset:%d" % (a + 2, rec(i) + 1, L_COEF + 32))
        e("ds_write_b16_d16_hi v%d, v%d offset:%d" % (a + 2, rec(i) + 1, L_COEF + 48))
        e("v_and_b32 v%d, 0x%x, v%d" % (PEND, 0xffffffff ^ (1 << i), PEND))
        lab("L2_pl%d" % i)
    e("s_mov_b64 exec, -1")
    e("v_mov_b32 v%d, 0" % t)
    e("v_mov_b32 v%d, 1" % (t + 1))
    e("v_cmp_ne_u32 vcc, 0, v%d" % PEND)
    e("s_mov_b64 exec, vcc")
    e("ds_write_b32 v%d, v%d offset:%d" % (t, t + 1, L_FLAG))
    e("s_mov_b64 exec, -1")
    e("v_cmp_lt_i32 vcc, %d, v%d" % (2 * U, REM))
    e("s_mov_b64 exec, vcc")
    e("ds_write_b32 v%d, v%d offset:%d" % (t, t + 1, L_FLAG + 4))
    e("s_mov_b64 exec, -1")
    e("s_mul_i32 s4, s17, %d" % (5 * OFFS_STRIDE))
    e("s_mul_i32 s5, s17, %d" % (5 * COEF_STRIDE))
    e("v_lshrrev_b32 v%d, 2, v%d" % (t + 4, LC))
    e("v_add_u32 v%d, s4, v%d" % (t + 4, t + 4))
    e("v_add_u32 v%d, s5, v%d" % (VCA, PSEL))
    for k in range(8): e("s_mov_b32 s%d, %d" % (SL + k, k))
    e("s_waitcnt lgkmcnt(0)")
    e("s_barrier")
    stamp()
    e("ds_read_b64 v[%d:%d], v%d offset:%d" % (t + 2, t + 3, t, L_FLAG))
    for u in range(5):
        e("ds_read_b32 v%d, v%d offset:%d" % (VOFF + u, t + 4, L_OFFS + u * OFFS_STRIDE))
    def coff(g): return L_COEF + (g % 5) * COEF_STRIDE + (g // 5) * 80
    e("ds_read_b128 v[%d:%d], v%d offset:%d" % (AF[0], AF[0] + 3, VCA, coff(0)))
    e("s_waitcnt lgkmcnt(0)")
    e("v_readfirstlane_b32 s44, v%d" % (t + 2))
    e("v_readfirstlane_b32 s45, v%d" % (t + 3))
    for u in range(5):
        e("v_cmp_gt_u32 s[%d:%d], s10, v%d" % (SM + 2 * u, SM + 2 * u + 1, VOFF + u))
    for r in range(LB[0], LB[0] + 64): e("v_mov_b32 v%d, 0" % r)
    e("s_or_b64 s[4:5], s[%d:%d], s[%d:%d]" % (SM, SM + 1, SM + 2, SM + 3))
    for u in range(2, 5):
        e("s_or_b64 s[4:5], s[4:5], s[%d:%d]" % (SM + 2 * u, SM + 2 * u + 1))
    if opt("bar", 0):
        e("s_mov_b32 s40, s41")
    else:
        e("s_cbranch_scc0 L2_swept")
        e("s_flbit_i32_b64 s40, s[4:5]")
        e("s_sub_u32 s40, 71, s40")
        e("s_lshr_b32 s40, s40, 3")
    if opt("prio", 0) == 2:
        e("s_cmp_lt_u32 s17, 4")
        e("s_cselect_b32 s41, 1, 0")
    NC = [38, 39]
    lid = [0]
    def readl(u):
        return ["v_readlane_b32 s%d, v%d, s%d" % (SO + k, VOFF + u, SL + k) for k in range(8)]
    def count(u, buf):
        m = SM + 2 * u
        e("s_and_b32 s%d, s%d, 0xff" % (NC[buf], m))
        e("s_bcnt1_i32_b32 s%d, s%d" % (NC[buf], NC[buf]))
        e("s_lshr_b64 s[%d:%d], s[%d:%d], 8" % (m, m + 1, m, m + 1))
    def ladder(buf, wait=True):
        n = lid[0]; lid[0] += 1
        for i in range(8):
            e("s_cmp_le_u32 s%d, %d" % (NC[buf], i))
            e("s_cbranch_scc1 L2_w%d_%d" % (n, i if wait else 8))
            e("buffer_load_dwordx4 v[%d:%d], v%d, s[8:11], s%d offen" %
              (LB[buf] + 4 * i, LB[buf] + 4 * i + 3, LC, SO + i))
        if wait:
            e("s_branch L2_w%d_8" % n)
            for i in range(8):
                lab("L2_w%d_%d" % (n, i))
                e("s_waitcnt vmcnt(%d)" % i)
        lab("L2_w%d_8" % n)
        if wait: e("s_waitcnt vmcnt(8)")
    for x in readl(0): e(x)
    count(0, 0)
    e("s_nop 1")
    ladder(0, False)
    for x in readl(1): e(x)
    count(1, 1)
    e("s_nop 1")
    ladder(1)
    X = opt("x", "")
    out.append(".p2align 6")
    lab("L2_sweep")
    for g in range(10):
        u = g % 5; buf = g & 1; L = LB[buf]; A = AF[buf]
        u2 = (g + 2) % 5
        if u2 == 0:
            for k in range(8): e("s_add_u32 s%d, s%d, 8" % (SL + k, SL + k))
        rl = readl(u2)
        e("s_waitcnt lgkmcnt(0)")
        e("ds_read_b128 v[%d:%d], v%d offset:%d" % (AF[buf ^ 1], AF[buf ^ 1] + 3, VCA, coff(g + 1)))
        for x in rl: e(x)
        e("s_cmp_eq_u32 s%d, 0" % NC[buf])
        e("s_cbranch_scc1 L2_skip%d" % g)
        def P(j):
            if "P" in X: return
            d = j >> 1; s = "s19" if j & 1 else "s18"
            for tt in range(4):
                e("v_perm_b32 v%d, v%d, v%d, %s" % (BT[j & 1] + tt, L + 4 * (2 * tt + 1) + d, L + 4 * (2 * tt) + d, s))
        def M(j):
            if "M" in X: return
            a = ACC + 32 * u + 4 * j
            e("v_mfma_f32_16x16x32_bf16 v[%d:%d], v[%d:%d], v[%d:%d], v[%d:%d]" %
              (a, a + 3, A, A + 3, BT[j & 1], BT[j & 1] + 3, a, a + 3))
        P(0); P(1); M(0)
        for j in range(2, 8):
            P(j); M(j - 1)
        e("s_nop 0")
        M(7)
        lab("L2_skip%d" % g)
        count(u2, buf)
        if not opt("barw", 0) and (opt("bar", 0) == 1 or (opt("bar", 0) == 5 and u2 == 0)): e("s_barrier")
        if g == 4:
            e("s_sub_u32 s40, s40, 1")
        if g == 9:
            e("v_add_u32 v%d, 160, v%d" % (VCA, VCA))
            e("s_sub_u32 s40, s40, 1")
        ladder(buf)
        if opt("barw", 0) and (g + 1) % opt("bar", 0) == 0: e("s_barrier")
        if g in (4, 9):
            if opt("prio", 0) == 1:
                e("s_cmp_le_u32 s40, %d" % (NPH - 2)); e("s_cbranch_scc0 L2_pr%d" % g); e("s_setprio 2")
                e("s_cmp_le_u32 s40, %d" % (NPH - 3)); e("s_cbranch_scc0 L2_pr%d" % g); e("s_setprio 1")
                e("s_cmp_le_u32 s40, %d" % (NPH - 4)); e("s_cbranch_scc0 L2_pr%d" % g); e("s_setprio 0")
                lab("L2_pr%d" % g)
            if opt("prio", 0) == 2:
                e("s_add_u32 s41, s41, 1")
                e("s_cmp_ge_u32 s41, 2"); e("s_cbranch_scc0 L2_pr%d" % g); e("s_setprio 2")
                e("s_cmp_ge_u32 s41, 4"); e("s_cbranch_scc0 L2_pr%d" % g); e("s_setprio 1")
                e("s_cmp_ge_u32 s41, 6"); e("s_cbranch_scc0 L2_pr%d" % g); e("s_setprio 0")
                lab("L2_pr%d" % g)
            e("s_cmp_lg_u32 s40, 0")
            e("s_cbranch_scc0 L2_swept" if g == 4 else "s_cbranch_scc1 L2_sweep")
    lab("L2_swept")
    e("s_or_b32 s4, s44, s45")
    e("s_cmp_eq_u32 s4, 0")
    e("s_cbranch_scc1 L2_epi")
    e("s_waitcnt vmcnt(0) lgkmcnt(0)")
    e("s_barrier")
    e("s_cmp_lg_u32 s44, 0")
    e("s_cbranch_scc1 L2_pass")
    e("v_add_u32 v%d, %d, v%d" % (RB, 24 * U, RB))
    e("v_add_u32 v%d, %d, v%d" % (REM, -2 * U, REM))
    e("s_branch L2_batch")
    lab("L2_epi")
    stamp()
    WF = 160
    lane = 253
    e("s_waitcnt lgkmcnt(0)")
    e("v_and_b32 v%d, 63, v%d" % (lane, TID))
    e("v_lshlrev_b32 v%d, 4, v%d" % (254, lane))
    e("s_mul_i32 s4, s17, 20480")
    e("s_add_u32 s4, s4, %d" % (WS_WF + 4096))
    e("s_add_u32 s46, s14, s4")
    e("s_addc_u32 s47, s15, 0")
    for ks in range(20):
        if ks and ks % 8 == 0:
            e("s_add_u32 s46, s46, 8192")
            e("s_addc_u32 s47, s47, 0")
        e("global_load_dwordx4 v[%d:%d], v254, s[46:47] offset:%d" % (WF + 4 * ks, WF + 4 * ks + 3, (ks % 8) * 1024 - 4096))
    LA = 240; TS = 241; LBB = 242; SG = 243; SG2 = 244; ADR = 245; TMP = 246
    TA = [248, 164 if False else 248]
    e("v_lshrrev_b32 v%d, 4, v%d" % (TMP, lane))
    e("v_and_b32 v%d, 3, v%d" % (SG, lane))
    e("v_bfe_u32 v%d, v%d, 2, 2" % (ADR, lane))
    e("v_lshlrev_b32 v%d, 8, v%d" % (LA, SG))
    e("v_lshl_add_u32 v%d, v%d, 10, v%d" % (LA, ADR, LA))
    e("v_and_b32 v%d, 1, v%d" % (ADR, ADR))
    e("v_mul_u32_u24 v%d, 12, v%d" % (ADR, ADR))
    e("v_or_b32 v%d, v%d, v%d" % (SG, SG, ADR))
    e("v_lshlrev_b32 v%d, 4, v%d" % (SG, SG))
    e("v_mov_b32 v%d, v%d" % (SG2, SG))
    e("v_add_u32 v%d, %d, v%d" % (LBB, L_F0 + 16384, LA))
    e("v_mov_b32 v%d, 8192" % TS)
    e("v_mov_b32 v%d, v%d" % (TMP, LA))
    e("v_add_u32 v%d, %d, v%d" % (LA, L_F0, LA))
    for gp in range(1, 4):
        lo = 0xffff0000 if gp == 1 else 0
        hi = {1: 0, 2: 0x0000ffff, 3: 0xffff0000}[gp]
        e("s_mov_b32 exec_lo, 0x%x" % lo)
        e("s_mov_b32 exec_hi, 0x%x" % hi)
        e("v_add_u32 v%d, %d, v%d" % (LA, L_F1 + (gp - 1) * 24576, TMP))
        e("v_add_u32 v%d, %d, v%d" % (LBB, L_F1 + (7 if gp == 3 else 6) * 12288, TMP))
        e("v_mov_b32 v%d, 12288" % TS)
        if gp == 2: e("v_xor_b32 v%d, 128, v%d" % (SG2, SG2))
    e("s_mov_b64 exec, -1")
    e("s_mul_i32 s4, s17, 5")
    e("s_mov_b32 s48, 0xffff0000")
    e("s_mov_b32 s49, -1")
    TA0 = 248; TA1 = 252
    e("v_mov_b32 v%d, v%d" % (247, lane))
    lane = 247
    for u in range(5):
        A = ACC + 32 * u
        e("s_lshr_b32 s5, s4, 4")
        e("s_and_b32 s6, s4, 15")
        e("s_lshl_b32 s6, s6, 4")
        e("s_cmp_lt_u32 s4, 32")
        e("s_cselect_b64 s[50:51], -1, 0")
        e("v_mad_u32_u24 v%d, v%d, s5, v%d" % (ADR, TS, LA))
        e("v_cndmask_b32 v%d, v%d, v%d, s[50:51]" % (ADR, LBB, ADR))
        e("v_cndmask_b32 v%d, v%d, v%d, s[50:51]" % (TMP, SG2, SG))
        e("v_xor_b32 v%d, s6, v%d" % (TMP, TMP))
        e("v_add_u32 v%d, v%d, v%d" % (ADR, ADR, TMP))
        for dd in range(4):
            e("v_cvt_pk_bf16_f32 v%d, v%d, v%d" % (TA0 + dd, A + 8 * dd, A + 8 * dd + 4))
        e("ds_write_b128 v%d, v[%d:%d]" % (ADR, TA0, TA0 + 3))
        for dd in range(4):
            e("v_cvt_pk_bf16_f32 v%d, v%d, v%d" % (TA1 + dd, A + 8 * dd + 1, A + 8 * dd + 5))
        e("ds_write_b128 v%d, v[%d:%d] offset:4096" % (ADR, TA1, TA1 + 3))
        for j in range(8):
            e("v_sub_f32 v%d, v%d, v%d" % (A + 4 * j + 2, A + 4 * j + 2, A + 4 * j + 3))
        for dd in range(4):
            e("v_cvt_pk_bf16_f32 v%d, v%d, v%d" % (A + dd, A + 8 * dd + 2, A + 8 * dd + 6))
        e("s_mov_b64 exec, s[48:49]")
        e("ds_write_b128 v%d, v[%d:%d] offset:8192" % (ADR, A, A + 3))
        e("s_mov_b64 exec, -1")
        e("s_add_u32 s4, s4, 1")
    RA = [240, 241, 242, 243]
    e("s_waitcnt lgkmcnt(0)")
    e("v_lshrrev_b32 v%d, 4, v%d" % (TMP, lane))
    e("v_and_b32 v%d, 15, v%d" % (ADR, lane))
    e("v_xor_b32 v%d, v%d, v%d" % (RA[0], ADR, TMP))
    e("v_lshlrev_b32 v%d, 4, v%d" % (RA[0], RA[0]))
    e("v_lshl_add_u32 v%d, v%d, 8, v%d" % (RA[0], TMP, RA[0]))
    e("v_xor_b32 v%d, 0xc0, v%d" % (RA[1], RA[0]))
    e("v_add_u32 v%d, %d, v%d" % (RA[2], L_F + 65536, RA[0]))
    e("v_add_u32 v%d, %d, v%d" % (RA[3], L_F + 65536, RA[1]))
    e("v_add_u32 v%d, %d, v%d" % (RA[0], L_F, RA[0]))
    e("v_add_u32 v%d, %d, v%d" % (RA[1], L_F, RA[1]))
    VO = [248, 249, 250]; VOX = 251
    e("s_mul_i32 s4, s16, %d" % (NPB * 1024))
    e("s_lshl_b32 s5, s17, 5")
    e("s_add_u32 s4, s4, s5")
    e("v_lshlrev_b32 v%d, 10, v%d" % (VO[0], ADR))
    e("v_lshl_add_u32 v%d, v%d, 3, v%d" % (VO[0], TMP, VO[0]))
    e("v_add_u32 v%d, s4, v%d" % (VO[0], VO[0]))
    e("v_add_u32 v%d, 16384, v%d" % (VO[1], VO[0]))
    e("v_add_u32 v%d, 32768, v%d" % (VO[2], VO[0]))
    e("v_mov_b32 v%d, v%d" % (VOX, VO[2]))
    e("s_mov_b32 s52, 0xff00ff00")
    e("s_mov_b32 s53, 0xff00ff00")
    e("s_mov_b64 exec, s[52:53]")
    e("v_add_u32 v%d, %d, v%d" % (VOX, -8192 + 256, VOX))
    e("s_mov_b64 exec, -1")
    stamp()
    e("s_barrier")
    stamp()
    seq = []
    for ks in range(8):
        for tau in range(3): seq.append((ks, 4 * tau, tau * 8192 + ks * 1024, ks, ks == 0))
    for ks in range(12):
        for tl in range(8): seq.append((8 + ks, 12 + 4 * tl, 24576 + tl * 12288 + ks * 1024, ks, ks == 0))
    RING = 48; NR = 16; AHEAD = 12
    def rd(n):
        wk, acc, off, ks, first = seq[n]
        hi = off >= 65536
        r = RING + 4 * (n % NR)
        e("ds_read_b128 v[%d:%d], v%d offset:%d" % (r, r + 3, RA[(2 if hi else 0) + (ks & 1)], off - (65536 if hi else 0)))
    for n in range(AHEAD): rd(n)
    GT = 112
    lastw = -1
    gate_code = []
    for tau in range(3):
        for rr in range(4):
            g = GT + 4 * tau + rr; a = 4 * tau + rr
            gate_code.append("v_mul_f32 v%d, 0xbfb8aa3b, v%d" % (g, a))
    for k in range(12): gate_code.append("v_exp_f32 v%d, v%d" % (GT + k, GT + k))
    for k in range(12): gate_code.append("v_add_f32 v%d, 1.0, v%d" % (GT + k, GT + k))
    for k in range(12): gate_code.append("v_rcp_f32 v%d, v%d" % (GT + k, GT + k))
    for tau in range(3):
        gate_code.append("v_cvt_pk_bf16_f32 v%d, v%d, v%d" % (128 + 2 * tau, 4 * tau, 4 * tau + 1))
        gate_code.append("v_cvt_pk_bf16_f32 v%d, v%d, v%d" % (129 + 2 * tau, 4 * tau + 2, 4 * tau + 3))
    for rr in range(4): gate_code.append("v_mov_b32 v%d, v%d" % (124 + rr, GT + 8 + rr))
    for rr in range(4): gate_code.append("v_mov_b32_dpp v%d, v%d row_shr:8 row_mask:0xf bank_mask:0xc" % (124 + rr, GT + 8 + rr))
    for n in range(len(seq)):
        wk, acc, off, ks, first = seq[n]
        if wk != lastw:
            e("s_waitcnt vmcnt(%d)" % (19 - wk)); lastw = wk
        left = min(AHEAD, len(seq) - n) - 1
        e("s_waitcnt lgkmcnt(%d)" % left)
        r = RING + 4 * (n % NR)
        e("v_mfma_f32_16x16x32_bf16 v[%d:%d], v[%d:%d], v[%d:%d], %s" %
          (acc, acc + 3, WF + 4 * wk, WF + 4 * wk + 3, r, r + 3, "0" if first else "v[%d:%d]" % (acc, acc + 3)))
        if n + AHEAD < len(seq): rd(n + AHEAD)
        if n >= 24 + 10 and gate_code:
            e(gate_code.pop(0))
    assert not gate_code
    stamp()
    e("global_store_dwordx2 v%d, v[128:129], s[12:13]" % VO[0])
    e("global_store_dwordx2 v%d, v[130:131], s[12:13]" % VO[1])
    e("s_not_b64 exec, s[52:53]")
    e("global_store_dwordx2 v%d, v[132:133], s[12:13]" % VO[2])
    e("s_mov_b64 exec, -1")
    e("s_nop 4")
    for tl in range(8):
        a = 12 + 4 * tl
        if tl < 6: i = tl // 2; tau = tl % 2; g = GT + 4 * tau; vo = VO[tau]; off = 256 * (i + 1)
        elif tl == 6: g = 124; vo = VOX; off = 256
        else: g = GT + 8; vo = VO[2]; off = 768
        for rr in range(4):
            e("v_mul_f32 v%d, v%d, v%d" % (a + rr, a + rr, g + rr))
        e("v_cvt_pk_bf16_f32 v%d, v%d, v%d" % (a, a, a + 1))
        e("v_cvt_pk_bf16_f32 v%d, v%d, v%d" % (a + 1, a + 2, a + 3))
        if tl == 7: e("s_not_b64 exec, s[52:53]")
        e("global_store_dwordx2 v%d, v[%d:%d], s[12:13] offset:%d" % (vo, a, a + 1, off))
    if DIAG: e("s_waitcnt vmcnt(0)")
    dump_stamps("s[14:15]", "s17", 1 << 20, 140)
    if "enc" in OPT:
        k = int(OPT["enc"])
        if k < 0:
            e("s_mov_b64 exec, -1")
            e("v_mov_b32 v142, %d" % (WS_DBG + 4 * (-k - 1)))
            e("global_load_dword v143, v142, s[14:15]")
            e("s_waitcnt vmcnt(0)")
            e("v_readfirstlane_b32 s44, v143")
        else:
            e("s_mov_b32 s44, s%d" % (64 + 2 * k))
        lab("L2_spin")
        e("s_memrealtime s[46:47]")
        e("s_waitcnt lgkmcnt(0)")
        e("s_sub_u32 s46, s46, s44")
        e("s_cmp_lt_u32 s46, 6000")
        e("s_cbranch_scc1 L2_spin")
    if opt("dbg2", 0):
        e("s_cmp_lg_u32 s2, %d" % (opt("dbg2", 0) - 1))
        e("s_cbranch_scc1 L2_end")
        e("s_cmp_lg_u32 s17, 0")
        e("s_cbranch_scc1 L2_end")
        e("s_load_dwordx2 s[42:43], s[0:1], 80")
        e("s_mov_b64 exec, -1")
        e("v_mbcnt_lo_u32_b32 v141, -1, 0")
        e("v_lshlrev_b32 v141, 2, v141")
        e("v_add_u32 v142, %d, v141" % (WS_DBG + (opt("dbg2", 0) - 1) * 512))
        e("global_load_dword v143, v142, s[14:15]")
        e("s_waitcnt vmcnt(0) lgkmcnt(0)")
        e("v_readfirstlane_b32 s44, v143")
        for k in range(9): e("v_writelane_b32 v143, s%d, %d" % (64 + 2 * k, 7 + k))
        e("s_nop 1")
        e("v_subrev_u32 v143, s44, v143")
        e("v_writelane_b32 v143, s90, 0")
        e("s_mov_b64 exec, 0xffff")
        e("global_store_dword v141, v143, s[42:43]")
    lab("L2_end")
    e("s_endpgm")
    out.append(".p2align 13")
    e("s_endpgm")

header()
if opt("nop", 0):
    kstart("gstp_nop_kernel")
    e("s_endpgm")
k1()
k2()
out.append('.section .rodata,"a"')
if opt("nop", 0): kdesc("gstp_nop_kernel", 8, 16)
kdesc("gstp_bin_kernel", 72, 96 if DIAG else 48)
kdesc("gstp_main_kernel", 256, 96 if DIAG else 64)
open(sys.argv[1], "w").write("\n".join(out) + "\n")
```

```python
import sys
NAME = "gather_scatter__tensor_product_equiv_equiformer__graph"
OPT = dict(a.split('=') for a in sys.argv[2:]) if len(sys.argv) > 2 else {}
def opt(k, d): return type(d)(OPT.get(k, d))

N = 10000; E = 320000
NB = 250; NPB = 40
G = 250; CH = 1280
WS_REC = 0
WS_TAB = 4 << 20
WS_WF = 5 << 20
U = 10
OOB = 0x7F000000
NPH = opt("nph", 5)
PHMUL = {5: 0x8312, 6: 0x9d49, 7: 0xb780, 8: 0xd1b7}[NPH]
L_OFFS = 0; OFFS_STRIDE = 256
L_COEF = 10240; COEF_STRIDE = 640
L_FLAG = 36864
L_F = 37888
L_CNT = L_F
L_ST = L_F + 2048
L_F0 = L_F; L_F1 = L_F + 3 * 8192
LDS_MAIN = L_F + 122880

out = []
def e(s): out.append("    " + s)
def lab(s): out.append(s + ":")
def c(s): out.append("    ; " + s)

def header():
    ref = open("cdna_kernels/%s.s.ref" % NAME).read().split("\n")
    for l in ref:
        if l.startswith("; Override") : break
        out.append(l)
    out.append("; @launch kernel=gstp_bin_kernel grid=(%d,1,1) block=(384,1,1) lds=6144" % G)
    for _ in range(opt("nop", 0)):
        out.append("; @launch kernel=gstp_nop_kernel grid=(250,1,1) block=(64,1,1) lds=0")
    out.append("; @launch kernel=gstp_main_kernel grid=(%d,1,1) block=(512,1,1) lds=%d" % (NB, LDS_MAIN))
    out.append('.amdgcn_target "amdgcn-amd-amdhsa--gfx950"')
    out.append(".text")

def kstart(name):
    out.append(".globl %s" % name)
    out.append(".p2align 8")
    out.append(".type %s,@function" % name)
    lab(name)

def kdesc(name, vgpr, sgpr):
    out.append(".p2align 6")
    out.append(".amdhsa_kernel %s" % name)
    out.append("  .amdhsa_next_free_vgpr %d" % vgpr)
    out.append("  .amdhsa_next_free_sgpr %d" % sgpr)
    out.append("  .amdhsa_accum_offset %d" % ((vgpr + 3) // 4 * 4))
    out.append("  .amdhsa_group_segment_fixed_size 0")
    out.append("  .amdhsa_kernarg_size 96")
    out.append("  .amdhsa_user_sgpr_count 2")
    out.append("  .amdhsa_user_sgpr_kernarg_segment_ptr 1")
    out.append("  .amdhsa_system_sgpr_workgroup_id_x 1")
    out.append(".end_amdhsa_kernel")

DIAG = opt("diag", 0)
SFL = {"": "", "sc1": " sc1", "nt": " nt", "sc01": " sc0 sc1"}[opt("sfl", "")]
WS_DBG = 8 << 20
nstamp = [0]
def stamp():
    if not DIAG: return
    k = nstamp[0]; nstamp[0] += 1
    e("s_memrealtime s[%d:%d]" % (64 + 2 * k, 65 + 2 * k))
    if k == 0: e("s_memtime s[92:93]")
    e("s_waitcnt lgkmcnt(0)")
def dump_stamps(ws, swave, base, vt):
    if not DIAG: return
    e("s_memtime s[90:91]")
    stamp()
    e("s_mov_b64 exec, -1")
    e("v_mov_b32 v%d, 0" % vt)
    e("s_sub_u32 s90, s90, s92")
    e("v_writelane_b32 v%d, s90, 14" % vt)
    for k in range(nstamp[0]):
        e("v_writelane_b32 v%d, s%d, %d" % (vt, 64 + 2 * k, k))
    e("s_getreg_b32 s62, hwreg(HW_REG_XCC_ID)")
    e("v_writelane_b32 v%d, s62, 15" % vt)
    e("s_lshl_b32 s62, s2, 3")
    e("s_add_u32 s62, s62, %s" % swave)
    e("s_lshl_b32 s62, s62, 6")
    e("s_add_u32 s62, s62, %d" % (WS_DBG + base))
    e("v_mbcnt_lo_u32_b32 v%d, -1, 0" % (vt + 1))
    e("v_lshl_add_u32 v%d, v%d, 2, s62" % (vt + 1, vt + 1))
    e("s_mov_b64 exec, 0xffff")
    e("global_store_dword v%d, v%d, %s" % (vt + 1, vt, ws))
    nstamp[0] = 0

def wave_scan(v):
    for sh in (1, 2, 4, 8):
        e("s_nop 1")
        e("v_add_u32_dpp %s, %s, %s row_shr:%d row_mask:0xf bank_mask:0xf bound_ctrl:0" % (v, v, v, sh))
    e("s_nop 1")
    e("v_add_u32_dpp %s, %s, %s row_bcast:15 row_mask:0xa bank_mask:0xf" % (v, v, v))
    e("s_nop 1")
    e("v_add_u32_dpp %s, %s, %s row_bcast:31 row_mask:0xc bank_mask:0xf" % (v, v, v))

def k1():
    kstart("gstp_bin_kernel")
    e("s_cmp_ge_u32 s2, %d" % G)
    e("s_cbranch_scc1 L1_end")
    e("s_load_dwordx16 s[4:19], s[0:1], 0")
    e("s_load_dwordx2 s[20:21], s[0:1], 88")
    e("v_lshrrev_b32 v4, 6, v0")
    e("s_nop 0")
    e("v_readfirstlane_b32 s3, v4")
    e("s_cmp_eq_u32 s3, 5")
    e("s_cbranch_scc1 L1_help")
    stamp()
    if opt("dbgp", 0): e("s_memrealtime s[36:37]")
    e("s_mul_i32 s22, s2, %d" % (CH * 4))
    e("s_mul_i32 s23, s2, %d" % (CH * 6))
    e("s_mul_i32 s24, s2, %d" % (CH * 2))
    e("v_lshl_add_u32 v1, v0, 4, s22")
    e("v_mul_u32_u24 v2, 24, v0")
    e("v_add_u32 v2, s23, v2")
    e("v_lshl_add_u32 v3, v0, 3, s24")
    e("v_lshlrev_b32 v4, 2, v0")
    e("v_mov_b32 v5, 0")
    e("ds_write_b32 v4, v5")
    e("s_waitcnt lgkmcnt(0)")
    e("global_load_dwordx4 v[8:11], v1, s[12:13]")
    e("global_load_dwordx4 v[12:15], v1, s[10:11]")
    e("global_load_dwordx4 v[16:19], v2, s[6:7]")
    e("global_load_dwordx2 v[20:21], v2, s[6:7] offset:16")
    e("global_load_dwordx2 v[22:23], v3, s[8:9]")
    e("v_mov_b32 v5, 1")
    KP = opt("k1pf", 0)
    if KP:
        e("s_mul_i32 s28, s2, 40960")
        e("v_lshl_add_u32 v65, v0, 7, s28")
    e("s_barrier")
    if KP: e("global_load_dword v64, v65, s[4:5]")
    if KP == 2: e("global_load_dword v64, v65, s[4:5] offset:64")
    stamp()
    e("s_waitcnt vmcnt(%d)" % (4 + KP))
    stamp()
    for k in range(4):
        e("v_mul_u32_u24 v%d, 0xcccd, v%d" % (24 + k, 8 + k))
        e("v_lshrrev_b32 v%d, 21, v%d" % (24 + k, 24 + k))
        e("v_mul_u32_u24 v6, 40, v%d" % (24 + k))
        e("v_sub_u32 v%d, v%d, v6" % (8 + k, 8 + k))
        e("v_lshlrev_b32 v%d, 2, v%d" % (24 + k, 24 + k))
        e("ds_add_rtn_u32 v%d, v%d, v5" % (28 + k, 24 + k))
    e("s_waitcnt vmcnt(%d)" % (3 + KP))
    for k in range(4):
        e("v_mul_u32_u24 v6, 0x%x, v%d" % (PHMUL, 12 + k))
        if opt("shift", 1):
            e("v_mul_u32_u24 v7, 52, v%d" % (8 + k))
            e("v_lshrrev_b32 v7, 8, v7")
            e("v_mul_u32_u24 v7, 5, v7")
            e("v_sub_u32 v7, v%d, v7" % (8 + k))
            e("v_mul_u32_u24 v7, %d, v7" % ((1 << 26) // 5))
            e("v_sub_u32 v6, v6, v7")
            e("v_add_u32 v6, %d, v6" % (2 * ((1 << 26) // 5)))
            e("v_ashrrev_i32 v6, 26, v6")
            e("v_med3_i32 v6, v6, 0, %d" % (NPH - 1))
        else:
            e("v_lshrrev_b32 v6, 26, v6")
        e("v_lshl_add_u32 v6, v%d, 3, v6" % (8 + k))
        e("v_lshl_or_b32 v%d, v%d, 10, v6" % (34 + 4 * k, 12 + k))
    e("s_waitcnt vmcnt(%d)" % KP)
    if opt("dbgp", 0): e("s_memrealtime s[38:39]")
    stamp()
    def unpack(dst, idx, base):
        r = base + idx // 2
        if idx % 2 == 0: e("v_lshlrev_b32 %s, 16, v%d" % (dst, r))
        else: e("v_and_b32 %s, 0xffff0000, v%d" % (dst, r))
    for k in range(4):
        unpack("v48", k, 22)
        for j in range(3):
            unpack("v%d" % (49 + j), 3 * k + j, 16)
        for j in range(3):
            e("v_mul_f32 v%d, v48, v%d" % (49 + j, 49 + j))
        e("v_cvt_pk_bf16_f32 v%d, v48, v49" % (32 + 4 * k))
        e("v_cvt_pk_bf16_f32 v%d, v50, v51" % (33 + 4 * k))
    e("s_waitcnt lgkmcnt(0)")
    e("s_barrier")
    stamp()
    e("v_and_b32 v4, 63, v0")
    e("v_lshlrev_b32 v4, 4, v4")
    e("ds_read_b128 v[52:55], v4")
    e("s_add_u32 s25, s3, 1")
    e("s_lshl_b32 s25, s25, 10")
    e("s_waitcnt lgkmcnt(0)")
    e("v_add_u32 v57, v52, v53")
    e("v_add_u32 v58, v57, v54")
    e("v_add_u32 v59, v58, v55")
    e("v_mov_b32 v60, v59")
    wave_scan("v60")
    e("v_sub_u32 v60, v60, v59")
    e("v_add_u32 v61, v60, v52")
    e("v_add_u32 v62, v60, v57")
    e("v_add_u32 v63, v60, v58")
    e("v_add_u32 v7, s25, v4")
    e("ds_write_b128 v7, v[60:63]")
    for k in range(4):
        e("v_add_u32 v%d, s25, v%d" % (24 + k, 24 + k))
    e("s_waitcnt lgkmcnt(0)")
    for k in range(4):
        e("ds_read_b32 v%d, v%d" % (24 + k, 24 + k))
    e("s_cmp_lg_u32 s3, 0")
    e("s_cbranch_scc1 L1_notab")
    for k in range(4):
        e("v_lshl_or_b32 v%d, v%d, 16, v%d" % (60 + k, 52 + k, 60 + k))
    e("s_lshl_b32 s26, s2, 10")
    e("s_add_u32 s26, s26, %d" % WS_TAB)
    e("v_add_u32 v7, s26, v4")
    e("global_store_dwordx4 v7, v[60:63], s[20:21]")
    lab("L1_notab")
    e("s_mul_i32 s26, s2, %d" % (CH * 12))
    e("s_add_u32 s26, s26, %d" % WS_REC)
    e("v_mov_b32 v6, s26")
    e("s_waitcnt lgkmcnt(0)")
    for k in range(4):
        e("v_add_u32 v%d, v%d, v%d" % (24 + k, 24 + k, 28 + k))
        e("v_mad_u32_u24 v%d, v%d, 12, v6" % (24 + k, 24 + k))
        e("global_store_dwordx3 v%d, v[%d:%d], s[20:21]" % (24 + k, 32 + 4 * k, 34 + 4 * k))
    stamp()
    for _ in range(opt("k1sleep", 0)): e("s_sleep 33")
    if DIAG: e("s_waitcnt vmcnt(0)")
    if opt("dbgp", 0):
        e("s_waitcnt vmcnt(0)")
        e("s_memrealtime s[40:41]")
        e("s_load_dwordx2 s[42:43], s[0:1], 80")
        e("s_waitcnt lgkmcnt(0)")
        e("s_and_b32 s44, s2, 31")
        e("s_or_b32 s44, s44, s3")
        e("s_cmp_lg_u32 s44, 0")
        e("s_cbranch_scc1 L1_end")
        e("s_sub_u32 s40, s40, s36")
        e("s_sub_u32 s38, s38, s36")
        e("v_mov_b32 v4, s38")
        e("v_mov_b32 v5, s40")
        e("s_lshr_b32 s44, s2, 5")
        e("s_lshl_b32 s44, s44, 3")
        e("v_mov_b32 v6, s44")
        e("s_mov_b64 exec, 1")
        e("global_store_dwordx2 v6, v[4:5], s[42:43]")
    dump_stamps("s[20:21]", "s3", 0, 4)
    e("s_endpgm")
    lab("L1_help")
    e("v_and_b32 v1, 63, v0")
    e("s_waitcnt lgkmcnt(0)")
    e("s_cmp_ge_u32 s2, 160")
    e("s_cbranch_scc1 L1_now")
    e("s_mul_i32 s22, s2, 3277")
    e("s_lshr_b32 s22, s22, 16")
    e("s_mul_i32 s23, s22, 20")
    e("s_sub_u32 s23, s2, s23")
    e("s_cmp_lt_u32 s23, 8")
    e("s_cselect_b64 s[24:25], s[16:17], s[18:19]")
    e("s_cselect_b32 s26, 0, 8")
    e("s_sub_u32 s26, s23, s26")
    e("s_lshl_b32 s26, s26, 13")
    e("s_lshl_b32 s27, s22, 5")
    e("s_add_u32 s26, s26, s27")
    e("v_lshrrev_b32 v2, 4, v1")
    e("v_and_b32 v3, 15, v1")
    e("v_lshlrev_b32 v4, 11, v2")
    e("v_lshl_add_u32 v4, v3, 1, v4")
    e("v_add_u32 v4, s26, v4")
    e("s_lshl_b32 s27, s23, 6")
    e("v_lshl_add_u32 v5, v2, 4, s27")
    e("global_load_dwordx4 v[16:19], v5, s[14:15]")
    for i in range(8):
        e("global_load_ushort v%d, v4, s[24:25] offset:%d" % (8 + i, 256 * i))
    e("s_branch L1_now2")
    lab("L1_now")
    if opt("cpf", 0):
        e("s_getpc_b64 s[24:25]")
        lab("L1_pc")
        e("s_add_u32 s24, s24, gstp_main_kernel-L1_pc")
        e("s_addc_u32 s25, s25, 0")
        e("v_lshlrev_b32 v2, 7, v1")
        e("v_mov_b32 v3, s25")
        e("v_add_co_u32 v2, vcc, s24, v2")
        e("s_nop 1")
        e("v_addc_co_u32 v3, vcc, 0, v3, vcc")
        for k in range(opt("cpf", 0)):
            e("global_load_dword v8, v[2:3], off")
            e("v_add_co_u32 v2, vcc, 8192, v2")
            e("s_nop 1")
            e("v_addc_co_u32 v3, vcc, 0, v3, vcc")
    lab("L1_now2")
    e("s_barrier")
    e("s_barrier")
    if opt("prefetch", 1):
        e("s_mul_i32 s28, s2, 40960")
        e("v_lshl_add_u32 v6, v1, 4, s28")
        for i in range(10):
            for j in range(4):
                e("global_load_dwordx4 v[40:43], v6, s[4:5] offset:%d" % (1024 * j))
            if i < 9: e("v_add_u32 v6, 4096, v6")
        nx = 40
    else:
        nx = 0
    e("s_cmp_ge_u32 s2, 160")
    e("s_cbranch_scc1 L1_end")
    e("s_waitcnt vmcnt(%d)" % nx)
    for i in range(8):
        e("v_lshlrev_b32 v%d, 16, v%d" % (8 + i, 8 + i))
        unpack("v20", i, 16)
        e("v_mul_f32 v%d, v20, v%d" % (8 + i, 8 + i))
    for i in range(4):
        e("v_cvt_pk_bf16_f32 v%d, v%d, v%d" % (24 + i, 8 + 2 * i, 9 + 2 * i))
    e("s_lshl_b32 s26, s2, 10")
    e("s_add_u32 s26, s26, %d" % WS_WF)
    e("v_lshl_add_u32 v7, v1, 4, s26")
    e("global_store_dwordx4 v7, v[24:27], s[20:21]")
    lab("L1_end")
    e("s_endpgm")

ACC = 0; LB = [160, 192]; BT = [224, 228]; AF = [232, 236]; VOFF = 240
LC = 245; VCA = 246; PSEL = 247; RB = 249; REM = 250; PEND = 251; TID = 252
SL = 54
SO = 20
SM = 28
def rec(i): return 160 + 4 * i
def kad(i): return 200 + i
T0 = 210
MSK = 20
def msk(i): return "s[%d:%d]" % (MSK + 2 * i, MSK + 2 * i + 1)

def k2():
    kstart("gstp_main_kernel")
    e("s_cmp_ge_u32 s2, %d" % NB)
    e("s_cbranch_scc1 L2_end")
    e("s_load_dwordx2 s[8:9], s[0:1], 0")
    e("s_load_dwordx2 s[12:13], s[0:1], 72")
    e("s_load_dwordx2 s[14:15], s[0:1], 88")
    stamp()
    e("v_mov_b32 v%d, v0" % TID)
    e("v_lshrrev_b32 v%d, 6, v0" % T0)
    e("s_and_b32 s4, s2, 7")
    e("s_lshr_b32 s5, s2, 3")
    e("s_mul_i32 s16, s4, 31")
    e("s_min_u32 s4, s4, 2")
    e("s_add_u32 s16, s16, s4")
    e("s_add_u32 s16, s16, s5")
    e("v_readfirstlane_b32 s17, v%d" % T0)
    e("v_lshrrev_b32 v%d, 1, v0" % (T0 + 1))
    e("v_min_u32 v%d, %d, v%d" % (T0 + 1, G - 1, T0 + 1))
    e("s_lshl_b32 s4, s16, 2")
    e("s_add_u32 s4, s4, %d" % WS_TAB)
    e("v_lshl_add_u32 v%d, v%d, 10, s4" % (T0 + 2, T0 + 1))
    e("s_waitcnt lgkmcnt(0)")
    e("global_load_dword v%d, v%d, s[14:15]" % (T0 + 3, T0 + 2))
    e("s_mov_b32 s10, %d" % (N * 1024))
    e("s_mov_b32 s11, 0x20000")
    if opt("prio", 0): e("s_setprio 3")
    e("s_mov_b32 s18, 0x05040100")
    e("s_mov_b32 s19, 0x07060302")
    e("v_and_b32 v%d, 63, v0" % LC)
    e("v_lshlrev_b32 v%d, 4, v%d" % (LC, LC))
    tab = {(0, 0): 0, (1, 1): 1, (1, 2): 2, (1, 3): 3,
           (4, 0): 1, (5, 1): 0, (6, 3): 2, (7, 2): 3,
           (8, 0): 2, (9, 2): 0, (10, 1): 3, (11, 3): 1,
           (12, 0): 3, (13, 3): 0, (14, 2): 1, (15, 1): 2}
    e("v_mov_b32 v%d, 64" % PSEL)
    for p_ in range(4):
        m_ = 0
        for (m, q), v in tab.items():
            if v == p_: m_ |= 1 << (16 * q + m)
        e("s_mov_b32 exec_lo, 0x%x" % (m_ & 0xffffffff))
        e("s_mov_b32 exec_hi, 0x%x" % (m_ >> 32))
        e("v_mov_b32 v%d, %d" % (PSEL, 16 * p_))
    e("s_mov_b64 exec, -1")
    for r in range(160):
        e("v_mov_b32 v%d, 0" % r)
    e("s_mul_i32 s42, s17, 1280")
    e("s_add_u32 s42, s42, %d" % L_ST)
    e("s_waitcnt vmcnt(0)")
    stamp()
    t = T0
    e("v_and_b32 v%d, 1, v%d" % (t + 4, TID))
    e("v_and_b32 v%d, 0xffff, v%d" % (t + 5, t + 3))
    e("v_lshrrev_b32 v%d, 16, v%d" % (REM, t + 3))
    e("v_cmp_gt_u32 vcc, %d, v%d" % (2 * G, TID))
    e("v_mul_u32_u24 v%d, %d, v%d" % (t + 6, CH, t + 1))
    e("v_cndmask_b32 v%d, 0, v%d, vcc" % (REM, REM))
    e("v_add3_u32 v%d, v%d, v%d, v%d" % (t + 6, t + 6, t + 5, t + 4))
    e("v_mul_u32_u24 v%d, 12, v%d" % (RB, t + 6))
    if WS_REC: e("v_add_u32 v%d, %d, v%d" % (RB, WS_REC, RB))
    e("v_sub_u32 v%d, v%d, v%d" % (REM, REM, t + 4))
    lab("L2_batch")
    e("v_add_u32 v%d, 1, v%d" % (t, REM))
    e("v_ashrrev_i32 v%d, 1, v%d" % (t, t))
    e("v_max_i32 v%d, 0, v%d" % (t, t))
    e("v_min_i32 v%d, %d, v%d" % (t, U, t))
    e("v_lshlrev_b32 v%d, v%d, 1" % (PEND, t) if False else "v_mov_b32 v%d, 1" % (t + 1))
    e("v_lshlrev_b32 v%d, v%d, v%d" % (PEND, t, t + 1))
    e("v_add_u32 v%d, -1, v%d" % (PEND, PEND))
    lab("L2_pass")
    for i in range(U):
        e("v_and_b32 v%d, %d, v%d" % (t + (i & 1), 1 << i, PEND))
        e("v_cmp_ne_u32 %s, 0, v%d" % (msk(i), t + (i & 1)))
    for i in range(U):
        e("s_mov_b64 exec, %s" % msk(i))
        e("global_load_dwordx3 v[%d:%d], v%d, s[14:15] offset:%d" % (rec(i), rec(i) + 2, RB, 24 * i))
    e("s_mov_b64 exec, -1")
    z = T0 + 2
    for k in range(4): e("v_mov_b32 v%d, 0" % (z + k))
    for k in range(4): e("v_mov_b32 v%d, 0x%x" % (z + 4 + k, OOB))
    e("v_lshlrev_b32 v%d, 4, v%d" % (t, TID))
    e("v_lshlrev_b32 v%d, 3, v%d" % (t + 1, TID))
    e("v_lshlrev_b32 v%d, 2, v%d" % (t + 10, TID))
    e("ds_write_b128 v%d, v[%d:%d] offset:%d" % (t, z + 4, z + 7, L_OFFS))
    e("ds_write_b32 v%d, v%d offset:%d" % (t + 10, z + 4, L_OFFS + 8192))
    for k in range(3):
        e("ds_write_b128 v%d, v[%d:%d] offset:%d" % (t, z, z + 3, L_COEF + 8192 * k))
    e("ds_write_b32 v%d, v%d offset:%d" % (t + 10, z, L_COEF + 24576))
    e("v_lshlrev_b32 v%d, 2, v%d" % (t + 10, TID))
    e("ds_write_b32 v%d, v%d offset:%d" % (t + 10, z, L_CNT))
    e("s_mov_b64 exec, 1")
    e("ds_write_b64 v%d, v[%d:%d] offset:%d" % (z, z, z + 1, L_FLAG))
    e("s_mov_b64 exec, -1")
    one = T0 + 11
    e("v_mov_b32 v%d, 1" % one)
    e("s_waitcnt lgkmcnt(0)")
    e("s_barrier")
    for i in range(U):
        e("s_waitcnt vmcnt(%d)" % (U - 1 - i))
        e("s_mov_b64 exec, %s" % msk(i))
        e("v_and_b32 v%d, 0x3ff, v%d" % (kad(i), rec(i) + 2))
        e("v_lshlrev_b32 v%d, 2, v%d" % (kad(i), kad(i)))
        e("ds_add_rtn_u32 v%d, v%d, v%d offset:%d" % (rec(i) + 3, kad(i), one, L_CNT))
    e("s_mov_b64 exec, -1")
    e("s_waitcnt lgkmcnt(0)")
    e("s_barrier")
    stamp()
    PF1 = opt("pf1", 0); PF2 = opt("pf2", 0)
    NPF = PF1 + PF2
    if NPF:
        e("s_lshr_b32 s4, s2, 3")
        e("s_lshl_b32 s4, s4, 3")
        e("s_add_u32 s4, s4, s17")
        e("s_lshl_b32 s4, s4, 10")
        for k in range(PF1):
            e("buffer_load_dwordx4 v[%d:%d], v%d, s[8:11], s4 offen" % (BT[0], BT[0] + 3, LC))
            e("s_add_u32 s4, s4, %d" % (256 * 1024))
        e("s_lshl_b32 s4, s2, 3")
        e("s_add_u32 s4, s4, s17")
        e("s_add_u32 s4, s4, %d" % (256 * PF1))
        e("s_lshl_b32 s4, s4, 10")
        for k in range(PF2):
            e("buffer_load_dwordx4 v[%d:%d], v%d, s[8:11], s4 offen" % (BT[0], BT[0] + 3, LC))
            e("s_add_u32 s4, s4, %d" % (2000 * 1024))
    cc = 212
    e("v_and_b32 v%d, 63, v%d" % (t, TID))
    e("v_lshlrev_b32 v%d, 5, v%d" % (t, t))
    e("v_cmp_gt_u32 vcc, %d, v%d" % (NPB * 32, t))
    e("s_and_b64 exec, exec, vcc")
    e("ds_read_b128 v[%d:%d], v%d offset:%d" % (cc, cc + 3, t, L_CNT))
    e("ds_read_b128 v[%d:%d], v%d offset:%d" % (cc + 4, cc + 7, t, L_CNT + 16))
    tot = 220; lim = 221; tmp = 222; en = 223
    f = 228
    e("s_waitcnt lgkmcnt(0)")
    e("v_add_u32 v%d, v%d, v%d" % (tot, cc, cc + 1))
    for k in range(2, NPH):
        e("v_add_u32 v%d, v%d, v%d" % (tot, tot, cc + k))
    e("v_add_u32 v%d, 7, v%d" % (lim, tot))
    e("v_and_b32 v%d, -8, v%d" % (lim, lim))
    e("v_max_u32 v%d, %d, v%d" % (lim, 8 * NPH, lim))
    e("v_sub_u32 v%d, v%d, v%d" % (lim, lim, tot))
    e("v_mov_b32 v%d, 0" % f)
    e("v_mov_b32 v%d, v%d" % (en, cc))
    for k in range(1, NPH):
        e("v_add_u32 v%d, v%d, v%d" % (lim, lim, cc + k - 1))
        e("v_and_b32 v%d, -8, v%d" % (tmp, lim))
        e("v_min_u32 v%d, %d, v%d" % (tmp, 8 * k, tmp))
        e("v_max_u32 v%d, v%d, v%d" % (f + k, tmp, en))
        e("v_add_u32 v%d, v%d, v%d" % (en, f + k, cc + k))
    e("v_add_u32 v%d, s42, v%d" % (t, t))
    e("ds_write_b128 v%d, v[%d:%d]" % (t, f, f + 3))
    e("ds_write_b128 v%d, v[%d:%d] offset:16" % (t, f + 4, f + 7))
    if opt("bar", 0):
        e("s_mov_b32 s41, 1")
        for k in range(1, 8):
            e("v_cmp_lt_u32 vcc, %d, v%d" % (8 * k, en))
            e("s_cmp_lg_u64 vcc, 0")
            e("s_addc_u32 s41, s41, 0")
    e("s_mov_b64 exec, -1")
    e("s_waitcnt lgkmcnt(0)")
    st = 228
    for i in range(U):
        e("s_mov_b64 exec, %s" % msk(i))
        e("v_add_u32 v%d, s42, v%d" % (st + i, kad(i)))
        e("ds_read_b32 v%d, v%d" % (st + i, st + i))
    e("s_movk_i32 s4, %d" % COEF_STRIDE)
    e("s_movk_i32 s5, 80")
    e("s_waitcnt lgkmcnt(0)")
    for i in range(U):
        sl = rec(i) + 3
        a = T0 + 4 * (i & 1)
        e("s_mov_b64 exec, %s" % msk(i))
        e("s_cbranch_execz L2_pl%d" % i)
        e("v_add_u32 v%d, v%d, v%d" % (sl, sl, st + i))
        e("v_cmp_gt_u32 vcc, 64, v%d" % sl)
        e("s_and_b64 exec, exec, vcc")
        e("v_lshrrev_b32 v%d, 5, v%d" % (a, kad(i)))
        e("v_lshrrev_b32 v%d, 3, v%d" % (a + 1, sl))
        e("v_and_b32 v%d, 7, v%d" % (a + 2, sl))
        e("v_lshlrev_b32 v%d, 1, v%d" % (a + 2, a + 2))
        e("v_mad_u32_u24 v%d, v%d, s5, v%d" % (a + 2, a + 1, a + 2))
        e("v_mad_u32_u24 v%d, v%d, s4, v%d" % (a + 2, a, a + 2))
        e("v_lshl_add_u32 v%d, v%d, 6, v%d" % (a, a, sl))
        e("v_lshlrev_b32 v%d, 2, v%d" % (a, a))
        e("v_and_b32 v%d, 0x%x, v%d" % (rec(i) + 2, 0xffc00 if opt("small", 0) else 0xfffffc00, rec(i) + 2))
        e("ds_write_b32 v%d, v%d offset:%d" % (a, rec(i) + 2, L_OFFS))
        e("ds_write_b16 v%d, v%d offset:%d" % (a + 2, rec(i), L_COEF))
        e("ds_write_b16_d16_hi v%d, v%d offset:%d" % (a + 2, rec(i), L_COEF + 16))
        e("ds_write_b16 v%d, v%d offset:%d" % (a + 2, rec(i) + 1, L_COEF + 32))
        e("ds_write_b16_d16_hi v%d, v%d offset:%d" % (a + 2, rec(i) + 1, L_COEF + 48))
        e("v_and_b32 v%d, 0x%x, v%d" % (PEND, 0xffffffff ^ (1 << i), PEND))
        lab("L2_pl%d" % i)
    e("s_mov_b64 exec, -1")
    e("v_mov_b32 v%d, 0" % t)
    e("v_mov_b32 v%d, 1" % (t + 1))
    e("v_cmp_ne_u32 vcc, 0, v%d" % PEND)
    e("s_mov_b64 exec, vcc")
    e("ds_write_b32 v%d, v%d offset:%d" % (t, t + 1, L_FLAG))
    e("s_mov_b64 exec, -1")
    e("v_cmp_lt_i32 vcc, %d, v%d" % (2 * U, REM))
    e("s_mov_b64 exec, vcc")
    e("ds_write_b32 v%d, v%d offset:%d" % (t, t + 1, L_FLAG + 4))
    e("s_mov_b64 exec, -1")
    e("s_mul_i32 s4, s17, %d" % (5 * OFFS_STRIDE))
    e("s_mul_i32 s5, s17, %d" % (5 * COEF_STRIDE))
    e("v_lshrrev_b32 v%d, 2, v%d" % (t + 4, LC))
    e("v_add_u32 v%d, s4, v%d" % (t + 4, t + 4))
    e("v_add_u32 v%d, s5, v%d" % (VCA, PSEL))
    for k in range(8): e("s_mov_b32 s%d, %d" % (SL + k, k))
    e("s_waitcnt lgkmcnt(0)")
    e("s_barrier")
    stamp()
    e("ds_read_b64 v[%d:%d], v%d offset:%d" % (t + 2, t + 3, t, L_FLAG))
    for u in range(5):
        e("ds_read_b32 v%d, v%d offset:%d" % (VOFF + u, t + 4, L_OFFS + u * OFFS_STRIDE))
    def coff(g): return L_COEF + (g % 5) * COEF_STRIDE + (g // 5) * 80
    e("ds_read_b128 v[%d:%d], v%d offset:%d" % (AF[0], AF[0] + 3, VCA, coff(0)))
    e("s_waitcnt lgkmcnt(0)")
    e("v_readfirstlane_b32 s44, v%d" % (t + 2))
    e("v_readfirstlane_b32 s45, v%d" % (t + 3))
    for u in range(5):
        e("v_cmp_gt_u32 s[%d:%d], s10, v%d" % (SM + 2 * u, SM + 2 * u + 1, VOFF + u))
    for r in range(LB[0], LB[0] + 64): e("v_mov_b32 v%d, 0" % r)
    e("s_or_b64 s[4:5], s[%d:%d], s[%d:%d]" % (SM, SM + 1, SM + 2, SM + 3))
    for u in range(2, 5):
        e("s_or_b64 s[4:5], s[4:5], s[%d:%d]" % (SM + 2 * u, SM + 2 * u + 1))
    if opt("bar", 0):
        e("s_mov_b32 s40, s41")
    else:
        e("s_cbranch_scc0 L2_swept")
        e("s_flbit_i32_b64 s40, s[4:5]")
        e("s_sub_u32 s40, 71, s40")
        e("s_lshr_b32 s40, s40, 3")
    if opt("prio", 0) == 2:
        e("s_cmp_lt_u32 s17, 4")
        e("s_cselect_b32 s41, 1, 0")
    NC = [38, 39]
    lid = [0]
    def readl(u):
        return ["v_readlane_b32 s%d, v%d, s%d" % (SO + k, VOFF + u, SL + k) for k in range(8)]
    def count(u, buf):
        m = SM + 2 * u
        e("s_and_b32 s%d, s%d, 0xff" % (NC[buf], m))
        e("s_bcnt1_i32_b32 s%d, s%d" % (NC[buf], NC[buf]))
        e("s_lshr_b64 s[%d:%d], s[%d:%d], 8" % (m, m + 1, m, m + 1))
    def ladder(buf, wait=True):
        n = lid[0]; lid[0] += 1
        for i in range(8):
            e("s_cmp_le_u32 s%d, %d" % (NC[buf], i))
            e("s_cbranch_scc1 L2_w%d_%d" % (n, i if wait else 8))
            e("buffer_load_dwordx4 v[%d:%d], v%d, s[8:11], s%d offen" %
              (LB[buf] + 4 * i, LB[buf] + 4 * i + 3, LC, SO + i))
        if wait:
            e("s_branch L2_w%d_8" % n)
            for i in range(8):
                lab("L2_w%d_%d" % (n, i))
                e("s_waitcnt vmcnt(%d)" % i)
        lab("L2_w%d_8" % n)
        if wait: e("s_waitcnt vmcnt(8)")
    for x in readl(0): e(x)
    count(0, 0)
    e("s_nop 1")
    ladder(0, False)
    for x in readl(1): e(x)
    count(1, 1)
    e("s_nop 1")
    ladder(1)
    X = opt("x", "")
    out.append(".p2align 6")
    lab("L2_sweep")
    for g in range(10):
        u = g % 5; buf = g & 1; L = LB[buf]; A = AF[buf]
        u2 = (g + 2) % 5
        if u2 == 0:
            for k in range(8): e("s_add_u32 s%d, s%d, 8" % (SL + k, SL + k))
        rl = readl(u2)
        e("s_waitcnt lgkmcnt(0)")
        e("ds_read_b128 v[%d:%d], v%d offset:%d" % (AF[buf ^ 1], AF[buf ^ 1] + 3, VCA, coff(g + 1)))
        for x in rl: e(x)
        e("s_cmp_eq_u32 s%d, 0" % NC[buf])
        e("s_cbranch_scc1 L2_skip%d" % g)
        def P(j):
            if "P" in X: return
            d = j >> 1; s = "s19" if j & 1 else "s18"
            for tt in range(4):
                e("v_perm_b32 v%d, v%d, v%d, %s" % (BT[j & 1] + tt, L + 4 * (2 * tt + 1) + d, L + 4 * (2 * tt) + d, s))
        def M(j):
            if "M" in X: return
            a = ACC + 32 * u + 4 * j
            e("v_mfma_f32_16x16x32_bf16 v[%d:%d], v[%d:%d], v[%d:%d], v[%d:%d]" %
              (a, a + 3, A, A + 3, BT[j & 1], BT[j & 1] + 3, a, a + 3))
        P(0); P(1); M(0)
        for j in range(2, 8):
            P(j); M(j - 1)
        e("s_nop 0")
        M(7)
        lab("L2_skip%d" % g)
        count(u2, buf)
        if not opt("barw", 0) and (opt("bar", 0) == 1 or (opt("bar", 0) == 5 and u2 == 0)): e("s_barrier")
        if g == 4:
            e("s_sub_u32 s40, s40, 1")
        if g == 9:
            e("v_add_u32 v%d, 160, v%d" % (VCA, VCA))
            e("s_sub_u32 s40, s40, 1")
        ladder(buf)
        if opt("barw", 0) and (g + 1) % opt("bar", 0) == 0: e("s_barrier")
        if g in (4, 9):
            if opt("prio", 0) == 1:
                e("s_cmp_le_u32 s40, %d" % (NPH - 2)); e("s_cbranch_scc0 L2_pr%d" % g); e("s_setprio 2")
                e("s_cmp_le_u32 s40, %d" % (NPH - 3)); e("s_cbranch_scc0 L2_pr%d" % g); e("s_setprio 1")
                e("s_cmp_le_u32 s40, %d" % (NPH - 4)); e("s_cbranch_scc0 L2_pr%d" % g); e("s_setprio 0")
                lab("L2_pr%d" % g)
            if opt("prio", 0) == 2:
                e("s_add_u32 s41, s41, 1")
                e("s_cmp_ge_u32 s41, 2"); e("s_cbranch_scc0 L2_pr%d" % g); e("s_setprio 2")
                e("s_cmp_ge_u32 s41, 4"); e("s_cbranch_scc0 L2_pr%d" % g); e("s_setprio 1")
                e("s_cmp_ge_u32 s41, 6"); e("s_cbranch_scc0 L2_pr%d" % g); e("s_setprio 0")
                lab("L2_pr%d" % g)
            e("s_cmp_lg_u32 s40, 0")
            e("s_cbranch_scc0 L2_swept" if g == 4 else "s_cbranch_scc1 L2_sweep")
    lab("L2_swept")
    e("s_or_b32 s4, s44, s45")
    e("s_cmp_eq_u32 s4, 0")
    e("s_cbranch_scc1 L2_epi")
    e("s_waitcnt vmcnt(0) lgkmcnt(0)")
    e("s_barrier")
    e("s_cmp_lg_u32 s44, 0")
    e("s_cbranch_scc1 L2_pass")
    e("v_add_u32 v%d, %d, v%d" % (RB, 24 * U, RB))
    e("v_add_u32 v%d, %d, v%d" % (REM, -2 * U, REM))
    e("s_branch L2_batch")
    lab("L2_epi")
    stamp()
    WF = 160
    lane = 253
    e("s_waitcnt lgkmcnt(0)")
    e("v_and_b32 v%d, 63, v%d" % (lane, TID))
    e("v_lshlrev_b32 v%d, 4, v%d" % (254, lane))
    e("s_mul_i32 s4, s17, 20480")
    e("s_add_u32 s4, s4, %d" % (WS_WF + 4096))
    e("s_add_u32 s46, s14, s4")
    e("s_addc_u32 s47, s15, 0")
    for ks in range(20):
        if ks and ks % 8 == 0:
            e("s_add_u32 s46, s46, 8192")
            e("s_addc_u32 s47, s47, 0")
        e("global_load_dwordx4 v[%d:%d], v254, s[46:47] offset:%d" % (WF + 4 * ks, WF + 4 * ks + 3, (ks % 8) * 1024 - 4096))
    LA = 240; TS = 241; LBB = 242; SG = 243; SG2 = 244; ADR = 245; TMP = 246
    TA = [248, 164 if False else 248]
    e("v_lshrrev_b32 v%d, 4, v%d" % (TMP, lane))
    e("v_and_b32 v%d, 3, v%d" % (SG, lane))
    e("v_bfe_u32 v%d, v%d, 2, 2" % (ADR, lane))
    e("v_lshlrev_b32 v%d, 8, v%d" % (LA, SG))
    e("v_lshl_add_u32 v%d, v%d, 10, v%d" % (LA, ADR, LA))
    e("v_and_b32 v%d, 1, v%d" % (ADR, ADR))
    e("v_mul_u32_u24 v%d, 12, v%d" % (ADR, ADR))
    e("v_or_b32 v%d, v%d, v%d" % (SG, SG, ADR))
    e("v_lshlrev_b32 v%d, 4, v%d" % (SG, SG))
    e("v_mov_b32 v%d, v%d" % (SG2, SG))
    e("v_add_u32 v%d, %d, v%d" % (LBB, L_F0 + 16384, LA))
    e("v_mov_b32 v%d, 8192" % TS)
    e("v_mov_b32 v%d, v%d" % (TMP, LA))
    e("v_add_u32 v%d, %d, v%d" % (LA, L_F0, LA))
    for gp in range(1, 4):
        lo = 0xffff0000 if gp == 1 else 0
        hi = {1: 0, 2: 0x0000ffff, 3: 0xffff0000}[gp]
        e("s_mov_b32 exec_lo, 0x%x" % lo)
        e("s_mov_b32 exec_hi, 0x%x" % hi)
        e("v_add_u32 v%d, %d, v%d" % (LA, L_F1 + (gp - 1) * 24576, TMP))
        e("v_add_u32 v%d, %d, v%d" % (LBB, L_F1 + (7 if gp == 3 else 6) * 12288, TMP))
        e("v_mov_b32 v%d, 12288" % TS)
        if gp == 2: e("v_xor_b32 v%d, 128, v%d" % (SG2, SG2))
    e("s_mov_b64 exec, -1")
    e("s_mul_i32 s4, s17, 5")
    e("s_mov_b32 s48, 0xffff0000")
    e("s_mov_b32 s49, -1")
    TA0 = 248; TA1 = 252
    e("v_mov_b32 v%d, v%d" % (247, lane))
    lane = 247
    for u in range(5):
        A = ACC + 32 * u
        e("s_lshr_b32 s5, s4, 4")
        e("s_and_b32 s6, s4, 15")
        e("s_lshl_b32 s6, s6, 4")
        e("s_cmp_lt_u32 s4, 32")
        e("s_cselect_b64 s[50:51], -1, 0")
        e("v_mad_u32_u24 v%d, v%d, s5, v%d" % (ADR, TS, LA))
        e("v_cndmask_b32 v%d, v%d, v%d, s[50:51]" % (ADR, LBB, ADR))
        e("v_cndmask_b32 v%d, v%d, v%d, s[50:51]" % (TMP, SG2, SG))
        e("v_xor_b32 v%d, s6, v%d" % (TMP, TMP))
        e("v_add_u32 v%d, v%d, v%d" % (ADR, ADR, TMP))
        for dd in range(4):
            e("v_cvt_pk_bf16_f32 v%d, v%d, v%d" % (TA0 + dd, A + 8 * dd, A + 8 * dd + 4))
        e("ds_write_b128 v%d, v[%d:%d]" % (ADR, TA0, TA0 + 3))
        for dd in range(4):
            e("v_cvt_pk_bf16_f32 v%d, v%d, v%d" % (TA1 + dd, A + 8 * dd + 1, A + 8 * dd + 5))
        e("ds_write_b128 v%d, v[%d:%d] offset:4096" % (ADR, TA1, TA1 + 3))
        for j in range(8):
            e("v_sub_f32 v%d, v%d, v%d" % (A + 4 * j + 2, A + 4 * j + 2, A + 4 * j + 3))
        for dd in range(4):
            e("v_cvt_pk_bf16_f32 v%d, v%d, v%d" % (A + dd, A + 8 * dd + 2, A + 8 * dd + 6))
        e("s_mov_b64 exec, s[48:49]")
        e("ds_write_b128 v%d, v[%d:%d] offset:8192" % (ADR, A, A + 3))
        e("s_mov_b64 exec, -1")
        e("s_add_u32 s4, s4, 1")
    RA = [240, 241, 242, 243]
    e("s_waitcnt lgkmcnt(0)")
    e("v_lshrrev_b32 v%d, 4, v%d" % (TMP, lane))
    e("v_and_b32 v%d, 15, v%d" % (ADR, lane))
    e("v_xor_b32 v%d, v%d, v%d" % (RA[0], ADR, TMP))
    e("v_lshlrev_b32 v%d, 4, v%d" % (RA[0], RA[0]))
    e("v_lshl_add_u32 v%d, v%d, 8, v%d" % (RA[0], TMP, RA[0]))
    e("v_xor_b32 v%d, 0xc0, v%d" % (RA[1], RA[0]))
    e("v_add_u32 v%d, %d, v%d" % (RA[2], L_F + 65536, RA[0]))
    e("v_add_u32 v%d, %d, v%d" % (RA[3], L_F + 65536, RA[1]))
    e("v_add_u32 v%d, %d, v%d" % (RA[0], L_F, RA[0]))
    e("v_add_u32 v%d, %d, v%d" % (RA[1], L_F, RA[1]))
    VO = [248, 249, 250]; VOX = 251
    e("s_mul_i32 s4, s16, %d" % (NPB * 1024))
    e("s_lshl_b32 s5, s17, 5")
    e("s_add_u32 s4, s4, s5")
    e("v_lshlrev_b32 v%d, 10, v%d" % (VO[0], ADR))
    e("v_lshl_add_u32 v%d, v%d, 3, v%d" % (VO[0], TMP, VO[0]))
    e("v_add_u32 v%d, s4, v%d" % (VO[0], VO[0]))
    e("v_add_u32 v%d, 16384, v%d" % (VO[1], VO[0]))
    e("v_add_u32 v%d, 32768, v%d" % (VO[2], VO[0]))
    e("v_mov_b32 v%d, v%d" % (VOX, VO[2]))
    e("s_mov_b32 s52, 0xff00ff00")
    e("s_mov_b32 s53, 0xff00ff00")
    e("s_mov_b64 exec, s[52:53]")
    e("v_add_u32 v%d, %d, v%d" % (VOX, -8192 + 256, VOX))
    e("s_mov_b64 exec, -1")
    stamp()
    e("s_barrier")
    stamp()
    seq = []
    for ks in range(8):
        for tau in range(3): seq.append((ks, 4 * tau, tau * 8192 + ks * 1024, ks, ks == 0))
    for ks in range(12):
        for tl in range(8): seq.append((8 + ks, 12 + 4 * tl, 24576 + tl * 12288 + ks * 1024, ks, ks == 0))
    RING = 48; NR = 16; AHEAD = 12
    def rd(n):
        wk, acc, off, ks, first = seq[n]
        hi = off >= 65536
        r = RING + 4 * (n % NR)
        e("ds_read_b128 v[%d:%d], v%d offset:%d" % (r, r + 3, RA[(2 if hi else 0) + (ks & 1)], off - (65536 if hi else 0)))
    for n in range(AHEAD): rd(n)
    GT = 112
    lastw = -1
    gate_code = []
    for tau in range(3):
        for rr in range(4):
            g = GT + 4 * tau + rr; a = 4 * tau + rr
            gate_code.append("v_mul_f32 v%d, 0xbfb8aa3b, v%d" % (g, a))
    for k in range(12): gate_code.append("v_exp_f32 v%d, v%d" % (GT + k, GT + k))
    for k in range(12): gate_code.append("v_add_f32 v%d, 1.0, v%d" % (GT + k, GT + k))
    for k in range(12): gate_code.append("v_rcp_f32 v%d, v%d" % (GT + k, GT + k))
    for tau in range(3):
        gate_code.append("v_cvt_pk_bf16_f32 v%d, v%d, v%d" % (128 + 2 * tau, 4 * tau, 4 * tau + 1))
        gate_code.append("v_cvt_pk_bf16_f32 v%d, v%d, v%d" % (129 + 2 * tau, 4 * tau + 2, 4 * tau + 3))
    for rr in range(4): gate_code.append("v_mov_b32 v%d, v%d" % (124 + rr, GT + 8 + rr))
    for rr in range(4): gate_code.append("v_mov_b32_dpp v%d, v%d row_shr:8 row_mask:0xf bank_mask:0xc" % (124 + rr, GT + 8 + rr))
    for n in range(len(seq)):
        wk, acc, off, ks, first = seq[n]
        if wk != lastw:
            e("s_waitcnt vmcnt(%d)" % (19 - wk)); lastw = wk
        left = min(AHEAD, len(seq) - n) - 1
        e("s_waitcnt lgkmcnt(%d)" % left)
        r = RING + 4 * (n % NR)
        e("v_mfma_f32_16x16x32_bf16 v[%d:%d], v[%d:%d], v[%d:%d], %s" %
          (acc, acc + 3, WF + 4 * wk, WF + 4 * wk + 3, r, r + 3, "0" if first else "v[%d:%d]" % (acc, acc + 3)))
        if n + AHEAD < len(seq): rd(n + AHEAD)
        if n >= 24 + 10 and gate_code:
            e(gate_code.pop(0))
    assert not gate_code
    stamp()
    e("global_store_dwordx2 v%d, v[128:129], s[12:13]%s" % (VO[0], SFL))
    e("global_store_dwordx2 v%d, v[130:131], s[12:13]%s" % (VO[1], SFL))
    e("s_not_b64 exec, s[52:53]")
    e("global_store_dwordx2 v%d, v[132:133], s[12:13]%s" % (VO[2], SFL))
    e("s_mov_b64 exec, -1")
    e("s_nop 4")
    for tl in range(8):
        a = 12 + 4 * tl
        if tl < 6: i = tl // 2; tau = tl % 2; g = GT + 4 * tau; vo = VO[tau]; off = 256 * (i + 1)
        elif tl == 6: g = 124; vo = VOX; off = 256
        else: g = GT + 8; vo = VO[2]; off = 768
        for rr in range(4):
            e("v_mul_f32 v%d, v%d, v%d" % (a + rr, a + rr, g + rr))
        e("v_cvt_pk_bf16_f32 v%d, v%d, v%d" % (a, a, a + 1))
        e("v_cvt_pk_bf16_f32 v%d, v%d, v%d" % (a + 1, a + 2, a + 3))
        if tl == 7: e("s_not_b64 exec, s[52:53]")
        e("global_store_dwordx2 v%d, v[%d:%d], s[12:13] offset:%d%s" % (vo, a, a + 1, off, SFL))
    if DIAG: e("s_waitcnt vmcnt(0)")
    dump_stamps("s[14:15]", "s17", 1 << 20, 140)
    if "enc" in OPT:
        k = int(OPT["enc"])
        if k < 0:
            e("s_mov_b64 exec, -1")
            e("v_mov_b32 v142, %d" % (WS_DBG + 4 * (-k - 1)))
            e("global_load_dword v143, v142, s[14:15]")
            e("s_waitcnt vmcnt(0)")
            e("v_readfirstlane_b32 s44, v143")
        else:
            e("s_mov_b32 s44, s%d" % (64 + 2 * k))
        lab("L2_spin")
        e("s_memrealtime s[46:47]")
        e("s_waitcnt lgkmcnt(0)")
        e("s_sub_u32 s46, s46, s44")
        e("s_cmp_lt_u32 s46, 6000")
        e("s_cbranch_scc1 L2_spin")
    if opt("dbg2", 0):
        e("s_cmp_lg_u32 s2, %d" % (opt("dbg2", 0) - 1))
        e("s_cbranch_scc1 L2_end")
        e("s_cmp_lg_u32 s17, 0")
        e("s_cbranch_scc1 L2_end")
        e("s_load_dwordx2 s[42:43], s[0:1], 80")
        e("s_mov_b64 exec, -1")
        e("v_mbcnt_lo_u32_b32 v141, -1, 0")
        e("v_lshlrev_b32 v141, 2, v141")
        e("v_add_u32 v142, %d, v141" % (WS_DBG + (opt("dbg2", 0) - 1) * 512))
        e("global_load_dword v143, v142, s[14:15]")
        e("s_waitcnt vmcnt(0) lgkmcnt(0)")
        e("v_readfirstlane_b32 s44, v143")
        for k in range(9): e("v_writelane_b32 v143, s%d, %d" % (64 + 2 * k, 7 + k))
        e("s_nop 1")
        e("v_subrev_u32 v143, s44, v143")
        e("v_writelane_b32 v143, s90, 0")
        e("s_mov_b64 exec, 0xffff")
        e("global_store_dword v141, v143, s[42:43]")
    lab("L2_end")
    e("s_endpgm")
    out.append(".p2align 13")
    e("s_endpgm")

header()
if opt("nop", 0):
    kstart("gstp_nop_kernel")
    e("s_endpgm")
k1()
k2()
out.append('.section .rodata,"a"')
if opt("nop", 0): kdesc("gstp_nop_kernel", 8, 16)
kdesc("gstp_bin_kernel", 72, 96 if DIAG else 48)
kdesc("gstp_main_kernel", 256, 96 if DIAG else 64)
open(sys.argv[1], "w").write("\n".join(out) + "\n")
```

```python
import sys
NAME = "gather_scatter__tensor_product_equiv_equiformer__graph"
OPT = dict(a.split('=') for a in sys.argv[2:]) if len(sys.argv) > 2 else {}
def opt(k, d): return type(d)(OPT.get(k, d))

N = 10000; E = 320000
NB = opt("nb", 256)
G = 250; CH = 1280
WS_REC = 0
WS_TAB = 4 << 20
WS_WF = 5 << 20
WS_DBG = 8 << 20
U = 10
DK = 3
OOB = 0x7F000000
NPH = opt("nph", 6)
PHMUL = {5: 0x8312, 6: 0x9d49, 7: 0xb780, 8: 0xd1b7}[NPH]
L_COEF = 0; COEF_STRIDE = 640
L_OFFS = 25728; OFFS_STRIDE = 256
L_WT = 36864
L_F = 37888
L_CNT = L_F; L_ST = L_F + 2048; L_SLOT = L_ST + 8 * 1280
L_F0 = L_F; L_F1 = L_F + 3 * 8192
LDS_MAIN = L_F + 122880
R0 = 8 - NPH
DIAG = opt("diag", 0)
FL = {"": "", "sc1": " sc1", "nt": " nt", "sc01": " sc0 sc1"}
SFL = FL[opt("sfl", "sc1")]
KFL = FL[opt("kfl", "sc1")]

out = []
def e(s): out.append("    " + s)
def lab(s): out.append(s + ":")

def header():
    ref = open("cdna_kernels/%s.s.ref" % NAME).read().split("\n")
    for l in ref:
        if l.startswith("; Override"): break
        out.append(l)
    out.append("; @launch kernel=gstp_bin_kernel grid=(%d,1,1) block=(384,1,1) lds=21504" % G)
    out.append("; @launch kernel=gstp_main_kernel grid=(%d,1,1) block=(512,1,1) lds=%d" % (NB, LDS_MAIN))
    out.append('.amdgcn_target "amdgcn-amd-amdhsa--gfx950"')
    out.append(".text")

def kstart(name):
    out.append(".globl %s" % name)
    out.append(".p2align 8")
    out.append(".type %s,@function" % name)
    lab(name)

def kdesc(name, vgpr, sgpr):
    out.append(".p2align 6")
    out.append(".amdhsa_kernel %s" % name)
    out.append("  .amdhsa_next_free_vgpr %d" % vgpr)
    out.append("  .amdhsa_next_free_sgpr %d" % sgpr)
    out.append("  .amdhsa_accum_offset %d" % ((vgpr + 3) // 4 * 4))
    out.append("  .amdhsa_group_segment_fixed_size 0")
    out.append("  .amdhsa_kernarg_size 96")
    out.append("  .amdhsa_user_sgpr_count 2")
    out.append("  .amdhsa_user_sgpr_kernarg_segment_ptr 1")
    out.append("  .amdhsa_system_sgpr_workgroup_id_x 1")
    out.append(".end_amdhsa_kernel")

nstamp = [0]
def stamp():
    if not DIAG: return
    k = nstamp[0]; nstamp[0] += 1
    e("s_memrealtime s[%d:%d]" % (64 + 2 * k, 65 + 2 * k))
    if k == 0: e("s_memtime s[92:93]")
    e("s_waitcnt lgkmcnt(0)")
def dump_stamps(ws, swave, base, vt):
    if not DIAG: return
    e("s_memtime s[90:91]")
    stamp()
    e("s_mov_b64 exec, -1")
    e("v_mov_b32 v%d, 0" % vt)
    e("s_sub_u32 s90, s90, s92")
    e("v_writelane_b32 v%d, s90, 14" % vt)
    for k in range(nstamp[0]):
        e("v_writelane_b32 v%d, s%d, %d" % (vt, 64 + 2 * k, k))
    e("s_lshl_b32 s62, s2, 3")
    e("s_add_u32 s62, s62, %s" % swave)
    e("s_lshl_b32 s62, s62, 6")
    e("s_add_u32 s62, s62, %d" % (WS_DBG + base))
    e("v_mbcnt_lo_u32_b32 v%d, -1, 0" % (vt + 1))
    e("v_lshl_add_u32 v%d, v%d, 2, s62" % (vt + 1, vt + 1))
    e("s_mov_b64 exec, 0xffff")
    e("global_store_dword v%d, v%d, %s" % (vt + 1, vt, ws))
    nstamp[0] = 0

def wave_scan(v, rows_only=False):
    for sh in (1, 2, 4, 8):
        e("s_nop 1")
        e("v_add_u32_dpp %s, %s, %s row_shr:%d row_mask:0xf bank_mask:0xf bound_ctrl:0" % (v, v, v, sh))
    if rows_only: return
    e("s_nop 1")
    e("v_add_u32_dpp %s, %s, %s row_bcast:15 row_mask:0xa bank_mask:0xf" % (v, v, v))
    e("s_nop 1")
    e("v_add_u32_dpp %s, %s, %s row_bcast:31 row_mask:0xc bank_mask:0xf" % (v, v, v))

def k1():
    STG = 6144
    kstart("gstp_bin_kernel")
    e("s_cmp_ge_u32 s2, %d" % G)
    e("s_cbranch_scc1 L1_end")
    e("s_load_dwordx16 s[4:19], s[0:1], 0")
    e("s_load_dwordx2 s[20:21], s[0:1], 88")
    e("v_lshrrev_b32 v4, 6, v0")
    e("s_nop 0")
    e("v_readfirstlane_b32 s3, v4")
    e("s_cmp_eq_u32 s3, 5")
    e("s_cbranch_scc1 L1_help")
    stamp()
    e("s_mul_i32 s22, s2, %d" % (CH * 4))
    e("s_mul_i32 s23, s2, %d" % (CH * 6))
    e("s_mul_i32 s24, s2, %d" % (CH * 2))
    e("v_lshl_add_u32 v1, v0, 4, s22")
    e("v_mul_u32_u24 v2, 24, v0")
    e("v_add_u32 v2, s23, v2")
    e("v_lshl_add_u32 v3, v0, 3, s24")
    e("v_lshlrev_b32 v4, 2, v0")
    e("v_mov_b32 v5, 0")
    e("ds_write_b32 v4, v5")
    KP = opt("k1pf", 1)
    if KP:
        e("s_mul_i32 s28, s2, 40960")
        e("v_lshl_add_u32 v65, v0, 7, s28")
    e("s_waitcnt lgkmcnt(0)")
    e("global_load_dwordx4 v[8:11], v1, s[12:13]")
    e("global_load_dwordx4 v[12:15], v1, s[10:11]")
    e("global_load_dwordx4 v[16:19], v2, s[6:7]")
    e("global_load_dwordx2 v[20:21], v2, s[6:7] offset:16")
    e("global_load_dwordx2 v[22:23], v3, s[8:9]")
    e("v_mov_b32 v5, 1")
    e("s_barrier")
    if KP: e("global_load_dword v64, v65, s[4:5]")
    stamp()
    e("s_waitcnt vmcnt(%d)" % (4 + KP))
    stamp()
    for k in range(4):
        if NB == 256:
            e("v_mul_u32_u24 v%d, 429497, v%d" % (24 + k, 8 + k))
            e("v_lshrrev_b32 v%d, 24, v%d" % (24 + k, 24 + k))
            e("v_mul_u32_u24 v6, 625, v%d" % (24 + k))
            e("v_add_u32 v6, 15, v6")
            e("v_lshrrev_b32 v6, 4, v6")
        else:
            e("v_mul_u32_u24 v%d, 0xcccd, v%d" % (24 + k, 8 + k))
            e("v_lshrrev_b32 v%d, 21, v%d" % (24 + k, 24 + k))
            e("v_mul_u32_u24 v6, 40, v%d" % (24 + k))
        e("v_lshlrev_b32 v%d, 2, v%d" % (24 + k, 24 + k))
        e("ds_add_rtn_u32 v%d, v%d, v5" % (28 + k, 24 + k))
        e("v_sub_u32 v%d, v%d, v6" % (8 + k, 8 + k))
    e("s_waitcnt vmcnt(%d)" % (3 + KP))
    for k in range(4):
        e("v_mul_u32_u24 v6, 0x%x, v%d" % (PHMUL, 12 + k))
        if opt("shift", 1):
            e("v_mul_u32_u24 v7, 52, v%d" % (8 + k))
            e("v_lshrrev_b32 v7, 8, v7")
            e("v_mul_u32_u24 v7, 5, v7")
            e("v_sub_u32 v7, v%d, v7" % (8 + k))
            e("v_mul_u32_u24 v7, %d, v7" % ((1 << 26) // 5))
            e("v_sub_u32 v6, v6, v7")
            e("v_add_u32 v6, %d, v6" % (2 * ((1 << 26) // 5)))
            e("v_ashrrev_i32 v6, 26, v6")
            e("v_med3_i32 v6, v6, 0, %d" % (NPH - 1))
        else:
            e("v_lshrrev_b32 v6, 26, v6")
        e("v_lshl_add_u32 v6, v%d, 3, v6" % (8 + k))
        e("v_lshl_or_b32 v%d, v%d, 10, v6" % (34 + 4 * k, 12 + k))
    e("s_waitcnt lgkmcnt(0)")
    e("s_barrier")
    stamp()
    e("v_and_b32 v4, 63, v0")
    e("v_lshlrev_b32 v4, 4, v4")
    e("ds_read_b128 v[52:55], v4")
    e("s_add_u32 s25, s3, 1")
    e("s_lshl_b32 s25, s25, 10")
    def unpack(dst, idx, base):
        r = base + idx // 2
        if idx % 2 == 0: e("v_lshlrev_b32 %s, 16, v%d" % (dst, r))
        else: e("v_and_b32 %s, 0xffff0000, v%d" % (dst, r))
    def coefs(k):
        unpack("v48", k, 22)
        for j in range(3):
            unpack("v%d" % (49 + j), 3 * k + j, 16)
        for j in range(3):
            e("v_mul_f32 v%d, v48, v%d" % (49 + j, 49 + j))
        e("v_cvt_pk_bf16_f32 v%d, v48, v49" % (32 + 4 * k))
        e("v_cvt_pk_bf16_f32 v%d, v50, v51" % (33 + 4 * k))
    e("s_waitcnt vmcnt(%d)" % KP)
    coefs(0); coefs(1)
    e("s_waitcnt lgkmcnt(0)")
    e("v_add_u32 v57, v52, v53")
    e("v_add_u32 v58, v57, v54")
    e("v_add_u32 v59, v58, v55")
    e("v_mov_b32 v60, v59")
    wave_scan("v60")
    e("v_sub_u32 v60, v60, v59")
    e("v_add_u32 v61, v60, v52")
    e("v_add_u32 v62, v60, v57")
    e("v_add_u32 v63, v60, v58")
    e("v_add_u32 v7, s25, v4")
    e("ds_write_b128 v7, v[60:63]")
    for k in range(4):
        e("v_add_u32 v%d, s25, v%d" % (24 + k, 24 + k))
        e("ds_read_b32 v%d, v%d" % (24 + k, 24 + k))
    coefs(2); coefs(3)
    e("s_cmp_lg_u32 s3, 0")
    e("s_cbranch_scc1 L1_notab")
    for k in range(4):
        e("v_lshl_or_b32 v%d, v%d, 16, v%d" % (56 + k, 52 + k, 60 + k))
    e("s_lshl_b32 s26, s2, 10")
    e("s_add_u32 s26, s26, %d" % WS_TAB)
    e("v_add_u32 v7, s26, v4")
    e("global_store_dwordx4 v7, v[56:59], s[20:21]%s" % KFL)
    lab("L1_notab")
    e("s_waitcnt lgkmcnt(0)")
    for k in range(4):
        e("v_add_u32 v%d, v%d, v%d" % (24 + k, 24 + k, 28 + k))
        e("v_mul_u32_u24 v%d, 12, v%d" % (24 + k, 24 + k))
        e("v_add_u32 v%d, %d, v%d" % (24 + k, STG, 24 + k))
        e("ds_write2_b32 v%d, v%d, v%d offset0:0 offset1:1" % (24 + k, 32 + 4 * k, 33 + 4 * k))
        e("ds_write_b32 v%d, v%d offset:8" % (24 + k, 34 + 4 * k))
    e("v_lshlrev_b32 v6, 4, v0")
    e("s_mul_i32 s26, s2, %d" % (CH * 12))
    e("s_add_u32 s26, s26, %d" % WS_REC)
    e("v_add_u32 v7, s26, v6")
    e("v_add_u32 v8, 5120, v7")
    e("v_add_u32 v9, 10240, v7")
    e("s_waitcnt lgkmcnt(0)")
    e("s_barrier")
    for k in range(3):
        e("ds_read_b128 v[%d:%d], v6 offset:%d" % (12 + 4 * k, 15 + 4 * k, STG + 5120 * k))
    for k in range(3):
        e("s_waitcnt lgkmcnt(%d)" % (2 - k))
        e("global_store_dwordx4 v%d, v[%d:%d], s[20:21]%s" % (7 + k, 12 + 4 * k, 15 + 4 * k, KFL))
    stamp()
    if DIAG: e("s_waitcnt vmcnt(0)")
    dump_stamps("s[20:21]", "s3", 0, 4)
    e("s_endpgm")
    lab("L1_help")
    e("s_cmp_ge_u32 s2, 160")
    e("s_cbranch_scc1 L1_end")
    e("v_and_b32 v1, 63, v0")
    e("s_mul_i32 s22, s2, 1639")
    e("s_lshr_b32 s22, s22, 16")
    e("s_mul_i32 s23, s22, 40")
    e("s_sub_u32 s23, s2, s23")
    e("s_and_b32 s29, s23, 1")
    e("s_lshr_b32 s23, s23, 1")
    e("s_waitcnt lgkmcnt(0)")
    e("s_cmp_lt_u32 s23, 8")
    e("s_cselect_b64 s[24:25], s[16:17], s[18:19]")
    e("s_cselect_b32 s26, 0, 8")
    e("s_sub_u32 s26, s23, s26")
    e("s_lshl_b32 s26, s26, 13")
    e("s_lshl_b32 s27, s22, 6")
    e("s_add_u32 s26, s26, s27")
    e("s_lshl_b32 s27, s29, 3")
    e("s_add_u32 s26, s26, s27")
    e("v_lshrrev_b32 v2, 4, v1")
    e("v_bfe_u32 v3, v1, 2, 2")
    e("v_and_b32 v6, 3, v1")
    e("v_lshlrev_b32 v4, 11, v2")
    e("v_lshl_add_u32 v4, v3, 4, v4")
    e("v_lshl_add_u32 v4, v6, 1, v4")
    e("v_add_u32 v4, s26, v4")
    e("s_lshl_b32 s27, s23, 6")
    e("v_lshl_add_u32 v5, v2, 4, s27")
    e("global_load_dwordx4 v[16:19], v5, s[14:15]")
    for i in range(8):
        e("global_load_ushort v%d, v4, s[24:25] offset:%d" % (8 + i, 256 * i))
    e("s_barrier")
    e("s_barrier")
    e("s_barrier")
    e("s_waitcnt vmcnt(0)")
    for i in range(8):
        e("v_lshlrev_b32 v%d, 16, v%d" % (8 + i, 8 + i))
        unpack("v20", i, 16)
        e("v_mul_f32 v%d, v20, v%d" % (8 + i, 8 + i))
    for i in range(4):
        e("v_cvt_pk_bf16_f32 v%d, v%d, v%d" % (24 + i, 8 + 2 * i, 9 + 2 * i))
    e("s_lshl_b32 s26, s2, 10")
    e("s_add_u32 s26, s26, %d" % WS_WF)
    e("v_lshl_add_u32 v7, v1, 4, s26")
    e("global_store_dwordx4 v7, v[24:27], s[20:21]%s" % KFL)
    lab("L1_end")
    e("s_endpgm")

ACC = 0; LB = [160, 192]; BT = [224, 228]; AF = [232, 236]; VO = 240
VCA = 248; RB = 249; REM = 250; PEND = 251; TID = 252; VOA = 253; PSEL = 254
SM = 28
def rec(i): return 160 + 4 * i
def kad(i): return 200 + i
T0 = 210
MSK = 20
def msk(i): return "s[%d:%d]" % (MSK + 2 * i, MSK + 2 * i + 1)

def lds_init():
    z = 224; a = 232
    for k in range(7): e("v_mov_b32 v%d, 0" % (z + k + (1 if k == 6 else 0)))
    e("v_mov_b32 v%d, 0x%x" % (z + 6, OOB))
    e("v_lshlrev_b32 v%d, 4, v%d" % (a, TID))
    e("v_add_u32 v%d, %d, v%d" % (a, L_SLOT, a))
    e("v_lshlrev_b32 v%d, 2, v%d" % (a + 1, TID))
    e("v_mul_u32_u24 v%d, 80, v%d" % (a + 2, TID))
    for k in range(5):
        e("ds_write_b128 v%d, v[%d:%d] offset:%d" % (a, z + 4, z + 7, 8192 * k))
    e("ds_write_b32 v%d, v%d offset:%d" % (a + 1, z, L_CNT))
    e("v_cmp_gt_u32 vcc, 320, v%d" % TID)
    e("s_mov_b64 exec, vcc")
    e("ds_write_b128 v%d, v[%d:%d] offset:%d" % (a + 2, z, z + 3, L_COEF + 64))
    e("s_mov_b64 exec, -1")

def k2():
    kstart("gstp_main_kernel")
    e("s_cmp_ge_u32 s2, %d" % NB)
    e("s_cbranch_scc1 L2_end")
    e("s_load_dwordx2 s[8:9], s[0:1], 0")
    e("s_load_dwordx2 s[12:13], s[0:1], 72")
    e("s_load_dwordx2 s[14:15], s[0:1], 88")
    stamp()
    t = T0
    e("v_mov_b32 v%d, v0" % TID)
    e("v_lshrrev_b32 v%d, 6, v0" % t)
    e("s_and_b32 s4, s2, 7")
    e("s_lshr_b32 s5, s2, 3")
    if NB == 256:
        e("s_lshl_b32 s16, s4, 5")
        e("s_add_u32 s16, s16, s5")
    else:
        e("s_mul_i32 s16, s4, 31")
        e("s_min_u32 s4, s4, 2")
        e("s_add_u32 s16, s16, s4")
        e("s_add_u32 s16, s16, s5")
    e("v_readfirstlane_b32 s17, v%d" % t)
    e("v_lshrrev_b32 v%d, 1, v0" % (t + 1))
    e("v_min_u32 v%d, %d, v%d" % (t + 1, G - 1, t + 1))
    e("s_lshl_b32 s4, s16, 2")
    e("s_add_u32 s4, s4, %d" % WS_TAB)
    e("v_lshl_add_u32 v%d, v%d, 10, s4" % (t + 2, t + 1))
    e("s_waitcnt lgkmcnt(0)")
    e("global_load_dword v%d, v%d, s[14:15]" % (t + 3, t + 2))
    e("s_or_b32 s9, s9, 0x00100000")
    e("s_mov_b32 s10, %d" % (N * 1024))
    e("s_mov_b32 s11, 0x00800000")
    e("s_setprio 3")
    e("s_mov_b32 s18, 0x05040100")
    e("s_mov_b32 s19, 0x07060302")
    lds_init()
    tab = {(0, 0): 0, (1, 1): 1, (1, 2): 2, (1, 3): 3,
           (4, 0): 1, (5, 1): 0, (6, 3): 2, (7, 2): 3,
           (8, 0): 2, (9, 2): 0, (10, 1): 3, (11, 3): 1,
           (12, 0): 3, (13, 3): 0, (14, 2): 1, (15, 1): 2}
    e("v_mov_b32 v%d, 64" % PSEL)
    for p_ in range(4):
        m_ = 0
        for (m, q), v in tab.items():
            if v == p_: m_ |= 1 << (16 * q + m)
        e("s_mov_b32 exec_lo, 0x%x" % (m_ & 0xffffffff))
        e("s_mov_b32 exec_hi, 0x%x" % (m_ >> 32))
        e("v_mov_b32 v%d, %d" % (PSEL, 16 * p_))
    e("s_mov_b64 exec, -1")
    e("s_mul_i32 s42, s17, 1280")
    e("s_add_u32 s42, s42, %d" % L_ST)
    e("v_mul_u32_u24 v%d, %d, v%d" % (t + 1, CH, t + 1))
    for r in range(0, 96, 2):
        e("v_mov_b64 v[%d:%d], 0" % (r, r + 1))
    e("s_waitcnt vmcnt(0)")
    stamp()
    par = t + 4
    e("v_and_b32 v%d, 1, v%d" % (par, TID))
    e("v_and_b32 v%d, 0xffff, v%d" % (t + 2, t + 3))
    e("v_lshrrev_b32 v%d, 16, v%d" % (REM, t + 3))
    e("v_cmp_gt_u32 vcc, %d, v%d" % (2 * G, TID))
    e("v_add3_u32 v%d, v%d, v%d, v%d" % (t + 1, t + 1, t + 2, par))
    e("v_mul_u32_u24 v%d, 12, v%d" % (RB, t + 1))
    e("v_cndmask_b32 v%d, 0, v%d, vcc" % (REM, REM))
    e("v_sub_u32 v%d, v%d, v%d" % (REM, REM, par))
    e("s_mov_b32 s43, 1")
    lab("L2_batch")
    e("v_add_u32 v%d, 1, v%d" % (t, REM))
    e("v_ashrrev_i32 v%d, 1, v%d" % (t, t))
    e("v_med3_i32 v%d, v%d, 0, %d" % (t, t, U))
    e("v_bfm_b32 v%d, v%d, 0" % (PEND, t))
    lab("L2_pass")
    for i in range(U):
        e("v_and_b32 v%d, %d, v%d" % (t + (i & 1), 1 << i, PEND))
        e("v_cmp_ne_u32 %s, 0, v%d" % (msk(i), t + (i & 1)))
        e("s_mov_b64 exec, %s" % msk(i))
        e("s_cbranch_execz L2_ld%d" % i)
        e("global_load_dwordx3 v[%d:%d], v%d, s[14:15] offset:%d" % (rec(i), rec(i) + 2, RB, 24 * i))
        lab("L2_ld%d" % i)
        e("s_mov_b64 exec, -1")
    e("s_cmp_eq_u32 s43, 0")
    e("s_cbranch_scc1 L2_noz")
    for r in range(96, 160, 2):
        e("v_mov_b64 v[%d:%d], 0" % (r, r + 1))
    lab("L2_noz")
    one = t + 5
    e("v_mov_b32 v%d, 1" % one)
    e("v_and_b32 v%d, 63, v%d" % (t, TID))
    e("v_lshlrev_b32 v%d, 5, v%d" % (t, t))
    e("v_cmp_gt_u32 s[46:47], %d, v%d" % (40 * 32, t) if False else "v_cmp_gt_u32 vcc, %d, v%d" % (40 * 32, t))
    e("s_mov_b64 s[46:47], vcc")
    e("s_waitcnt lgkmcnt(0)")
    e("s_barrier")
    e("s_waitcnt vmcnt(0)")
    for i in range(U):
        e("s_mov_b64 exec, %s" % msk(i))
        e("s_cbranch_execz L2_at%d" % i)
        e("v_and_b32 v%d, 0x3ff, v%d" % (kad(i), rec(i) + 2))
        e("v_lshlrev_b32 v%d, 2, v%d" % (kad(i), kad(i)))
        e("ds_add_rtn_u32 v%d, v%d, v%d offset:%d" % (rec(i) + 3, kad(i), one, L_CNT))
        lab("L2_at%d" % i)
    e("s_mov_b64 exec, s[46:47]")
    e("s_waitcnt lgkmcnt(0)")
    e("s_barrier")
    stamp()
    cc = 212
    e("ds_read_b128 v[%d:%d], v%d offset:%d" % (cc, cc + 3, t, L_CNT))
    e("ds_read_b128 v[%d:%d], v%d offset:%d" % (cc + 4, cc + 7, t, L_CNT + 16))
    lim = 220; tmp = 221; en = 222
    f = 224
    e("v_add_u32 v%d, s42, v%d" % (t, t))
    e("s_waitcnt lgkmcnt(0)")
    e("v_add3_u32 v%d, v%d, v%d, v%d" % (lim, cc, cc + 1, cc + 2))
    k = 3
    while k < NPH:
        if k + 1 < NPH:
            e("v_add3_u32 v%d, v%d, v%d, v%d" % (lim, lim, cc + k, cc + k + 1)); k += 2
        else:
            e("v_add_u32 v%d, v%d, v%d" % (lim, lim, cc + k)); k += 1
    e("v_sub_u32 v%d, 64, v%d" % (lim, lim))
    e("v_max_i32 v%d, 0, v%d" % (lim, lim))
    e("v_and_b32 v%d, -8, v%d" % (tmp, lim))
    e("v_min_u32 v%d, %d, v%d" % (f, 8 * R0, tmp))
    for k in range(1, NPH):
        e("v_add_u32 v%d, v%d, v%d" % (lim, lim, cc + k - 1))
        e("v_add_u32 v%d, v%d, v%d" % (en, f + k - 1, cc + k - 1))
        e("v_and_b32 v%d, -8, v%d" % (tmp, lim))
        e("v_min_u32 v%d, %d, v%d" % (tmp, 8 * (R0 + k), tmp))
        e("v_max_u32 v%d, v%d, v%d" % (f + k, tmp, en))
    e("ds_write_b128 v%d, v[%d:%d]" % (t, f, f + 3))
    e("ds_write_b128 v%d, v[%d:%d] offset:16" % (t, f + 4, f + 7))
    st = lambda i: 232 + i
    for i in range(U):
        e("s_mov_b64 exec, %s" % msk(i))
        e("s_cbranch_execz L2_st%d" % i)
        e("v_add_u32 v%d, s42, v%d" % (st(i), kad(i)))
        e("ds_read_b32 v%d, v%d" % (st(i), st(i)))
        e("v_lshrrev_b32 v%d, 5, v%d" % (kad(i), kad(i)))
        e("v_lshlrev_b32 v%d, 6, v%d" % (kad(i), kad(i)))
        lab("L2_st%d" % i)
    e("s_waitcnt lgkmcnt(0)")
    for i in range(U):
        sl = rec(i) + 3
        e("s_mov_b64 exec, %s" % msk(i))
        e("s_cbranch_execz L2_pl%d" % i)
        e("v_add_u32 v%d, v%d, v%d" % (sl, sl, st(i)))
        e("v_cmp_gt_u32 vcc, 64, v%d" % sl)
        e("v_add_lshl_u32 v%d, v%d, v%d, 4" % (sl, sl, kad(i)))
        e("s_and_b64 exec, exec, vcc")
        e("ds_write_b128 v%d, v[%d:%d] offset:%d" % (sl, rec(i), rec(i) + 3, L_SLOT))
        e("v_and_b32 v%d, 0x%x, v%d" % (PEND, 0xffffffff ^ (1 << i), PEND))
        lab("L2_pl%d" % i)
    e("s_mov_b64 exec, -1")
    e("v_cmp_ne_u32 vcc, 0, v%d" % PEND)
    e("v_cmp_lt_i32 s[6:7], %d, v%d" % (2 * U, REM))
    e("s_cmp_lg_u64 vcc, 0")
    e("s_cselect_b32 s4, 1, 0")
    e("s_cmp_lg_u64 s[6:7], 0")
    e("s_cselect_b32 s5, 2, 0")
    e("s_or_b32 s4, s4, s5")
    e("s_lshl_b32 s5, s17, 2")
    e("v_mov_b32 v%d, s4" % (t + 2))
    e("v_mov_b32 v%d, s5" % (t + 3))
    e("s_mov_b64 exec, 1")
    e("ds_write_b32 v%d, v%d offset:%d" % (t + 3, t + 2, L_WT))
    e("s_mov_b64 exec, -1")
    va = 255; vo = AF[1] + 1; vb = AF[1] + 2; D0 = AF[0]
    e("v_and_b32 v%d, 63, v%d" % (vo, TID))
    e("s_mul_i32 s4, s17, %d" % (5 * 1024))
    e("s_add_u32 s4, s4, %d" % L_SLOT)
    e("v_lshl_add_u32 v%d, v%d, 4, s4" % (va, vo))
    e("v_lshlrev_b32 v%d, 2, v%d" % (vo, vo))
    e("v_and_b32 v%d, 28, v%d" % (vb, vo))
    e("s_mul_i32 s48, s17, %d" % (5 * OFFS_STRIDE))
    e("s_mul_i32 s49, s17, %d" % (5 * COEF_STRIDE))
    e("v_add_u32 v%d, s48, v%d" % (vo, vo))
    e("s_waitcnt lgkmcnt(0)")
    for r in range(LB[0], LB[0] + 64, 2): e("v_mov_b64 v[%d:%d], 0" % (r, r + 1))
    e("s_barrier")
    stamp()
    for u in range(5):
        e("ds_read_b32 v%d, v%d offset:%d" % (D0 + u, va, 1024 * u + 8))
    e("ds_read_b32 v%d, v%d offset:%d" % (vb, vb, L_WT))
    for u in range(5):
        e("s_waitcnt lgkmcnt(5)")
        e("v_and_b32 v%d, 0x%x, v%d" % (D0 + u, 0xfffffc00, D0 + u))
        e("v_cmp_gt_u32 s[%d:%d], s10, v%d" % (SM + 2 * u, SM + 2 * u + 1, D0 + u))
        if opt("small", 0): e("v_and_b32 v%d, 0xffc00, v%d" % (D0 + u, D0 + u))
        e("ds_write_b32 v%d, v%d offset:%d" % (vo, D0 + u, L_OFFS + OFFS_STRIDE * u))
    e("s_or_b64 s[4:5], s[%d:%d], s[%d:%d]" % (SM, SM + 1, SM + 2, SM + 3))
    for u in range(2, 5):
        e("s_or_b64 s[4:5], s[4:5], s[%d:%d]" % (SM + 2 * u, SM + 2 * u + 1))
    e("s_bitset1_b32 s5, 24")
    e("s_ff1_i32_b64 s6, s[4:5]")
    e("s_and_b32 s6, s6, 0x38")
    for u in range(5):
        e("s_lshr_b64 s[%d:%d], s[%d:%d], s6" % (SM + 2 * u, SM + 2 * u + 1, SM + 2 * u, SM + 2 * u + 1))
    e("s_lshl_b32 s7, s6, 2")
    e("s_add_u32 s7, s7, s48")
    e("v_mov_b32 v%d, s7" % VOA)
    e("s_mul_i32 s7, s6, 10")
    e("s_add_u32 s7, s7, s49")
    e("v_add_u32 v%d, s7, v%d" % (VCA, PSEL))
    e("s_lshr_b32 s6, s6, 3")
    e("s_sub_u32 s40, 8, s6")
    e("s_cmp_lt_u32 s17, 4")
    e("s_addc_u32 s41, s6, 0")
    def ooff(g): return L_OFFS + (g % 5) * OFFS_STRIDE + (g // 5) * 32
    def coff(g): return L_COEF + (g % 5) * COEF_STRIDE + (g // 5) * 80
    def rdoff(g, r=VO):
        e("ds_read_b128 v[%d:%d], v%d offset:%d" % (r, r + 3, VOA, ooff(g)))
        e("ds_read_b128 v[%d:%d], v%d offset:%d" % (r + 4, r + 7, VOA, ooff(g) + 16))
    NC = [38, 39]
    lid = [0]
    def count(u, buf):
        m = SM + 2 * u
        e("s_and_b32 s%d, s%d, 0xff" % (NC[buf], m))
        e("s_bcnt1_i32_b32 s%d, s%d" % (NC[buf], NC[buf]))
        e("s_lshr_b64 s[%d:%d], s[%d:%d], 8" % (m, m + 1, m, m + 1))
    def ladder(buf, wait=True, r=VO):
        n = lid[0]; lid[0] += 1
        for i in range(8):
            e("s_cmp_le_u32 s%d, %d" % (NC[buf], i))
            e("s_cbranch_scc1 L2_w%d_%d" % (n, i if wait else 8))
            e("buffer_load_dwordx4 v[%d:%d], v%d, s[8:11], 0 offen" %
              (LB[buf] + 4 * i, LB[buf] + 4 * i + 3, r + i))
        if wait:
            e("s_branch L2_w%d_8" % n)
            for i in range(8):
                lab("L2_w%d_%d" % (n, i))
                e("s_waitcnt vmcnt(%d)" % i)
        lab("L2_w%d_8" % n)
        if wait: e("s_waitcnt vmcnt(8)")
    rdoff(0)
    count(0, 0)
    count(1, 1)
    e("s_waitcnt lgkmcnt(0)")
    ladder(0, False)
    rdoff(1)
    e("v_and_b32 v239, 1, v%d" % vb)
    e("v_cmp_ne_u32 vcc, 0, v239")
    e("s_or_b32 s44, vcc_lo, vcc_hi")
    e("v_cmp_lt_u32 vcc, 1, v%d" % vb)
    e("s_or_b32 s45, vcc_lo, vcc_hi")
    CF = 224
    for u in range(5):
        e("ds_read_b64 v[%d:%d], v%d offset:%d" % (CF + 2 * u, CF + 2 * u + 1, va, 1024 * u))
    sa = 234; sb = 235; kp = 236; sd = 237; wa = 238; rc = 239
    e("v_mov_b32 v%d, s18" % sa)
    e("v_mov_b32 v%d, s19" % sb)
    e("v_bfe_u32 v%d, v%d, 3, 3" % (wa, TID))
    e("v_mul_u32_u24 v%d, 80, v%d" % (wa, wa))
    e("v_bfe_u32 v%d, v%d, 1, 2" % (kp, TID))
    e("v_lshl_add_u32 v%d, v%d, 2, v%d" % (wa, kp, wa))
    e("v_add_u32 v%d, s49, v%d" % (wa, wa))
    e("s_mov_b32 s6, 0xaaaaaaaa")
    e("s_mov_b32 s7, 0xaaaaaaaa")
    e("s_mov_b64 exec, s[6:7]")
    e("v_mov_b32 v%d, 0x01000504" % sa)
    e("v_mov_b32 v%d, 0x03020706" % sb)
    e("v_add_u32 v%d, 32, v%d" % (wa, wa))
    e("s_mov_b64 exec, -1")
    e("s_waitcnt lgkmcnt(5)")
    n1 = lid[0]
    ladder(1, False)
    e("s_waitcnt lgkmcnt(0)")
    for u in range(5):
        lo = CF + 2 * u; hi = lo + 1
        e("v_cndmask_b32 v%d, v%d, v%d, s[6:7]" % (sd, hi, lo))
        e("v_cndmask_b32 v%d, v%d, v%d, s[6:7]" % (kp, lo, hi))
        e("s_nop 0")
        e("v_mov_b32_dpp v%d, v%d quad_perm:[1,0,3,2] row_mask:0xf bank_mask:0xf" % (rc, sd))
        e("v_perm_b32 v%d, v%d, v%d, v%d" % (lo, rc, kp, sa))
        e("v_perm_b32 v%d, v%d, v%d, v%d" % (hi, rc, kp, sb))
        e("ds_write2_b32 v%d, v%d, v%d offset0:0 offset1:4" % (wa, lo, hi))
        if u < 4: e("v_add_u32 v%d, %d, v%d" % (wa, COEF_STRIDE, wa))
    e("s_waitcnt lgkmcnt(0)")
    e("ds_read_b128 v[%d:%d], v%d offset:%d" % (AF[0], AF[0] + 3, VCA, coff(0)))
    for r in range(BT[0], BT[0] + 8, 2): e("v_mov_b64 v[%d:%d], 0" % (r, r + 1))
    e("s_barrier")
    for i in range(8):
        e("s_cmp_le_u32 s%d, %d" % (NC[1], i))
        e("s_cbranch_scc1 L2_f%d" % i)
    e("s_branch L2_f8")
    for i in range(9):
        lab("L2_f%d" % i)
        e("s_waitcnt vmcnt(%d)" % i)
    e("s_waitcnt lgkmcnt(0)")
    X = opt("x", "")
    VAR = opt("var", 1)
    out.append(".p2align 6")
    lab("L2_sweep")
    for g in range(10):
        u = g % 5; buf = g & 1; L = LB[buf]; A = AF[buf]
        u2 = (g + 2) % 5
        rdoff(g + 2)
        e("ds_read_b128 v[%d:%d], v%d offset:%d" % (AF[buf ^ 1], AF[buf ^ 1] + 3, VCA, coff(g + 1)))
        def body(np_):
            def P(j):
                if "P" in X: return
                d = j >> 1; s = "s19" if j & 1 else "s18"
                for tt in range(np_):
                    e("v_perm_b32 v%d, v%d, v%d, %s" % (BT[j & 1] + tt, L + 4 * (2 * tt + 1) + d, L + 4 * (2 * tt) + d, s))
            def M(j):
                if "M" in X: return
                a = ACC + 32 * u + 4 * j
                if np_ == 2:
                    e("v_mfma_f32_16x16x16_bf16 v[%d:%d], v[%d:%d], v[%d:%d], v[%d:%d]" %
                      (a, a + 3, A, A + 1, BT[j & 1], BT[j & 1] + 1, a, a + 3))
                else:
                    e("v_mfma_f32_16x16x32_bf16 v[%d:%d], v[%d:%d], v[%d:%d], v[%d:%d]" %
                      (a, a + 3, A, A + 3, BT[j & 1], BT[j & 1] + 3, a, a + 3))
            P(0); P(1); M(0)
            for j in range(2, 8):
                P(j); M(j - 1)
            e("s_nop 0")
            M(7)
        if VAR:
            e("s_cmp_gt_u32 s%d, 6" % NC[buf])
            e("s_cbranch_scc1 L2_v4_%d" % g)
            e("s_cmp_gt_u32 s%d, 4" % NC[buf])
            e("s_cbranch_scc1 L2_v3_%d" % g)
            e("s_cmp_eq_u32 s%d, 0" % NC[buf])
            e("s_cbranch_scc1 L2_skip%d" % g)
            body(2)
            e("s_branch L2_skip%d" % g)
            lab("L2_v3_%d" % g)
            body(3)
            e("s_branch L2_skip%d" % g)
            lab("L2_v4_%d" % g)
            body(4)
        else:
            e("s_cmp_eq_u32 s%d, 0" % NC[buf])
            e("s_cbranch_scc1 L2_skip%d" % g)
            body(4)
        lab("L2_skip%d" % g)
        count(u2, buf)
        if g == 4:
            e("s_sub_u32 s40, s40, 1")
        if g == 9:
            e("v_add_u32 v%d, 160, v%d" % (VCA, VCA))
            e("v_add_u32 v%d, 64, v%d" % (VOA, VOA))
            e("s_sub_u32 s40, s40, 1")
        e("s_waitcnt lgkmcnt(0)")
        ladder(buf)
        if g in (4, 9):
            e("s_add_u32 s41, s41, 1")
            e("s_cmp_ge_u32 s41, 4"); e("s_cbranch_scc0 L2_pr%d" % g); e("s_setprio 2")
            e("s_cmp_ge_u32 s41, 6"); e("s_cbranch_scc0 L2_pr%d" % g); e("s_setprio 1")
            e("s_cmp_ge_u32 s41, 8"); e("s_cbranch_scc0 L2_pr%d" % g); e("s_setprio 0")
            lab("L2_pr%d" % g)
            e("s_cmp_lg_u32 s40, 0")
            e("s_cbranch_scc0 L2_swept" if g == 4 else "s_cbranch_scc1 L2_sweep")
    lab("L2_swept")
    e("s_or_b32 s6, s44, s45")
    e("s_cbranch_scc0 L2_epi")
    e("s_barrier")
    lds_init()
    e("s_mov_b32 s43, 0")
    e("s_cmp_lg_u32 s44, 0")
    e("s_cbranch_scc1 L2_pass")
    e("v_add_u32 v%d, %d, v%d" % (RB, 24 * U, RB))
    e("v_add_u32 v%d, %d, v%d" % (REM, -2 * U, REM))
    e("s_branch L2_batch")
    lab("L2_epi")
    stamp()
    e("s_setprio 0")
    LC = 245; lane = 253
    e("v_and_b32 v%d, 63, v%d" % (lane, TID))
    e("v_lshlrev_b32 v%d, 4, v%d" % (LC, lane))
    def wreg(f_): return 160 + 4 * f_ if f_ < 20 else 4 * (f_ - 20)
    e("s_sub_u32 s4, s17, 4")
    e("s_mul_i32 s4, s4, 40960")
    e("s_add_u32 s4, s4, %d" % (WS_WF + 4096))
    e("s_add_u32 s46, s14, s4")
    e("s_addc_u32 s47, s15, 0")
    wl = [0]
    def wload(lo, hi):
        n = wl[0]; wl[0] += 1
        e("s_cmp_lt_u32 s17, 4")
        e("s_cbranch_scc1 L2_nw%d" % n)
        for f_ in range(lo, hi):
            if f_ and f_ % 8 == 0:
                e("s_add_u32 s46, s46, 8192")
                e("s_addc_u32 s47, s47, 0")
            e("global_load_dwordx4 v[%d:%d], v%d, s[46:47] offset:%d" % (wreg(f_), wreg(f_) + 3, LC, (f_ % 8) * 1024 - 4096))
        lab("L2_nw%d" % n)
    wload(0, 8)
    LA = 240; TS = 241; LBB = 242; SG = 243; SG2 = 244; ADR = 246; TMP = 247
    e("v_and_b32 v%d, 3, v%d" % (SG, lane))
    e("v_bfe_u32 v%d, v%d, 2, 2" % (ADR, lane))
    e("v_lshlrev_b32 v%d, 8, v%d" % (LA, SG))
    e("v_lshl_add_u32 v%d, v%d, 10, v%d" % (LA, ADR, LA))
    e("v_and_b32 v%d, 1, v%d" % (ADR, ADR))
    e("v_mul_u32_u24 v%d, 12, v%d" % (ADR, ADR))
    e("v_or_b32 v%d, v%d, v%d" % (SG, SG, ADR))
    e("v_lshlrev_b32 v%d, 4, v%d" % (SG, SG))
    e("v_mov_b32 v%d, v%d" % (SG2, SG))
    e("v_add_u32 v%d, %d, v%d" % (LBB, L_F0 + 16384, LA))
    e("v_mov_b32 v%d, 8192" % TS)
    e("v_mov_b32 v%d, v%d" % (TMP, LA))
    e("v_add_u32 v%d, %d, v%d" % (LA, L_F0, LA))
    for gp in range(1, 4):
        lo = 0xffff0000 if gp == 1 else 0
        hi = {1: 0, 2: 0x0000ffff, 3: 0xffff0000}[gp]
        e("s_mov_b32 exec_lo, 0x%x" % lo)
        e("s_mov_b32 exec_hi, 0x%x" % hi)
        e("v_add_u32 v%d, %d, v%d" % (LA, L_F1 + (gp - 1) * 24576, TMP))
        e("v_add_u32 v%d, %d, v%d" % (LBB, L_F1 + (7 if gp == 3 else 6) * 12288, TMP))
        e("v_mov_b32 v%d, 12288" % TS)
        if gp == 2: e("v_xor_b32 v%d, 128, v%d" % (SG2, SG2))
    e("s_mov_b64 exec, -1")
    e("s_mul_i32 s4, s17, 5")
    e("s_mov_b32 s48, 0xffff0000")
    e("s_mov_b32 s49, -1")
    TA0 = 248; TA1 = 252
    after = {0: (8, 14), 1: (14, 20), 2: (20, 28), 3: (28, 36), 4: (36, 40)}
    for u in range(5):
        A = ACC + 32 * u
        e("s_lshr_b32 s5, s4, 4")
        e("s_and_b32 s6, s4, 15")
        e("s_lshl_b32 s6, s6, 4")
        e("s_cmp_lt_u32 s4, 32")
        e("s_cselect_b64 s[50:51], -1, 0")
        e("v_mad_u32_u24 v%d, v%d, s5, v%d" % (ADR, TS, LA))
        e("v_cndmask_b32 v%d, v%d, v%d, s[50:51]" % (ADR, LBB, ADR))
        e("v_cndmask_b32 v%d, v%d, v%d, s[50:51]" % (TMP, SG2, SG))
        e("v_xor_b32 v%d, s6, v%d" % (TMP, TMP))
        e("v_add_u32 v%d, v%d, v%d" % (ADR, ADR, TMP))
        for dd in range(4):
            e("v_cvt_pk_bf16_f32 v%d, v%d, v%d" % (TA0 + dd, A + 8 * dd, A + 8 * dd + 4))
        e("ds_write_b128 v%d, v[%d:%d]" % (ADR, TA0, TA0 + 3))
        for dd in range(4):
            e("v_cvt_pk_bf16_f32 v%d, v%d, v%d" % (TA1 + dd, A + 8 * dd + 1, A + 8 * dd + 5))
        e("ds_write_b128 v%d, v[%d:%d] offset:4096" % (ADR, TA1, TA1 + 3))
        for j in range(8):
            e("v_sub_f32 v%d, v%d, v%d" % (A + 4 * j + 2, A + 4 * j + 2, A + 4 * j + 3))
        for dd in range(4):
            e("v_cvt_pk_bf16_f32 v%d, v%d, v%d" % (A + dd, A + 8 * dd + 2, A + 8 * dd + 6))
        e("s_mov_b64 exec, s[48:49]")
        e("ds_write_b128 v%d, v[%d:%d] offset:8192" % (ADR, A, A + 3))
        e("s_mov_b64 exec, -1")
        e("s_add_u32 s4, s4, 1")
        if u >= 2: e("s_waitcnt lgkmcnt(6)")
        wload(*after[u])
    e("s_waitcnt lgkmcnt(0)")
    e("s_cmp_lt_u32 s17, 4")
    e("s_cbranch_scc0 L2_gemm")
    stamp()
    e("s_barrier")
    if DIAG:
        e("s_branch L2_fin")
        nstamp[0] -= 1
    else:
        e("s_endpgm")
    lab("L2_gemm")
    RA = [240, 241, 242, 243]
    OA = 244; OAX = 248
    e("v_lshrrev_b32 v%d, 8, v%d" % (TMP, LC))
    e("v_bfe_u32 v%d, v%d, 4, 4" % (ADR, LC))
    e("v_xor_b32 v%d, v%d, v%d" % (RA[0], ADR, TMP))
    e("v_lshlrev_b32 v%d, 4, v%d" % (RA[0], RA[0]))
    e("v_lshl_add_u32 v%d, v%d, 8, v%d" % (RA[0], TMP, RA[0]))
    e("v_xor_b32 v%d, 0xc0, v%d" % (RA[1], RA[0]))
    e("v_add_u32 v%d, %d, v%d" % (RA[2], L_F + 65536, RA[0]))
    e("v_add_u32 v%d, %d, v%d" % (RA[3], L_F + 65536, RA[1]))
    e("v_add_u32 v%d, %d, v%d" % (RA[0], L_F, RA[0]))
    e("v_add_u32 v%d, %d, v%d" % (RA[1], L_F, RA[1]))
    e("v_lshlrev_b32 v%d, 10, v%d" % (OA, ADR))
    e("v_lshl_add_u32 v%d, v%d, 4, v%d" % (OA, TMP, OA))
    e("v_mov_b32 v%d, v%d" % (OAX, OA))
    e("s_mov_b32 s52, 0xff00ff00")
    e("s_mov_b32 s53, 0xff00ff00")
    e("s_mov_b64 exec, s[52:53]")
    e("v_add_u32 v%d, %d, v%d" % (OAX, -8192 + 256, OAX))
    e("s_mov_b64 exec, -1")
    if NB == 256:
        e("s_mul_i32 s5, s16, 625")
        e("s_add_u32 s6, s5, %d" % (625 + 15))
        e("s_add_u32 s5, s5, 15")
        e("s_lshr_b32 s5, s5, 4")
        e("s_lshr_b32 s6, s6, 4")
        e("s_sub_u32 s7, s6, s5")
    else:
        e("s_mul_i32 s5, s16, 40")
        e("s_mov_b32 s7, 40")
    e("s_cmp_eq_u32 s7, 40")
    e("s_cselect_b32 s54, -1, 0x7f7f7f7f")
    e("s_and_b32 s52, s54, 0x00ff00ff")
    e("s_mov_b32 s53, s52")
    e("s_mov_b32 s55, s54")
    e("s_lshl_b32 s5, s5, 10")
    e("s_lshl_b32 s6, s17, 6")
    e("s_add_u32 s5, s5, s6")
    e("s_sub_u32 s5, s5, 256")
    e("s_add_u32 s20, s12, s5")
    e("s_addc_u32 s21, s13, 0")
    e("s_add_u32 s22, s20, 16384")
    e("s_addc_u32 s23, s21, 0")
    e("s_add_u32 s24, s20, 32768")
    e("s_addc_u32 s25, s21, 0")
    stamp()
    e("s_barrier")
    stamp()
    jobs = []
    for tau in range(3):
        jobs.append(("g", tau, tau * 8192, 0, 8, 0))
        if tau < 2:
            for i in range(3): jobs.append(("o", tau, 24576 + (2 * i + tau) * 12288, 8, 12, i + 1))
        else:
            jobs.append(("x", tau, 24576 + 6 * 12288, 8, 12, 1))
            jobs.append(("y", tau, 24576 + 7 * 12288, 8, 12, 3))
    AC = [80, 88, 96]; RING = 104; NR = 8; AHEAD = opt("ahead", 6)
    GT = [136, 144]; PK = [152, 156]
    seq = []; jstart = []
    for jn, (kind, tau, off, k0, nk, part) in enumerate(jobs):
        jstart.append(len(seq))
        for ks in range(nk): seq.append((jn, k0 + ks, off + ks * 1024, ks))
    jstart.append(len(seq))
    nl = [0]; rdq = {}
    def rd(n):
        jn, wk, off, ks = seq[n]
        hi = off >= 65536
        r = RING + 4 * (n % NR)
        e("ds_read_b128 v[%d:%d], v%d offset:%d" % (r, r + 3, RA[(2 if hi else 0) + (ks & 1)], off - (65536 if hi else 0)))
        rdq[n] = nl[0]; nl[0] += 1
    def fin(jn):
        kind, tau, off, k0, nk, part = jobs[jn]
        a = AC[jn % 3]; g = GT[tau & 1]; p = PK[jn & 1]; c = []
        sb = "s[%d:%d]" % (20 + 2 * tau, 21 + 2 * tau)
        if kind != "g":
            c += ["v_mul_f32 v%d, v%d, v%d" % (a + r, a + r, g + r) for r in range(8)]
        c += ["v_cvt_pk_bf16_f32 v%d, v%d, v%d" % (p + r, a + 2 * r, a + 2 * r + 1) for r in range(4)]
        stt = "global_store_dwordx4 v%d, v[%d:%d], %s offset:%d%s" % (OAX if kind == "x" else OA, p, p + 3, sb, 256 * part, SFL)
        if tau == 2:
            c.append(["s_mov_b64 exec, %s" % ("s[54:55]" if kind == "x" else "s[52:53]"), stt, "s_mov_b64 exec, -1"])
        else:
            c.append(stt)
        if kind == "g":
            c += ["v_mul_f32 v%d, 0xbfb8aa3b, v%d" % (g + r, a + r) for r in range(8)]
            c += ["v_exp_f32 v%d, v%d" % (g + r, g + r) for r in range(8)]
            c += ["v_add_f32 v%d, 1.0, v%d" % (g + r, g + r) for r in range(8)]
            c += ["v_rcp_f32 v%d, v%d" % (g + r, g + r) for r in range(8)]
            if tau == 2:
                c += ["v_mov_b32_dpp v%d, v%d row_shr:8 row_mask:0xf bank_mask:0xc" % (g + r, g + r) for r in range(8)]
        return c
    side = []
    for jn in range(len(jobs)):
        side += [(jstart[jn + 1] + 2, jn, x) for x in fin(jn)]
    nst = [0]
    def emit(x):
        for y in (x if isinstance(x, list) else [x]):
            e(y)
            if y.startswith("global_store"): nst[0] += 1
    for n in range(AHEAD): rd(n)
    wdone = -1
    for n in range(len(seq)):
        jn, wk, off, ks = seq[n]
        if ks == 0:
            while side and side[0][1] <= jn - 3: emit(side.pop(0)[2])
        if wk > wdone:
            e("s_waitcnt vmcnt(%d)" % (39 - (2 * wk + 1) + nst[0])); wdone = wk
        e("s_waitcnt lgkmcnt(%d)" % (nl[0] - 1 - rdq[n]))
        r = RING + 4 * (n % NR)
        for T in range(2):
            a = AC[jn % 3] + 4 * T; w = wreg(2 * wk + T)
            e("v_mfma_f32_16x16x32_bf16 v[%d:%d], v[%d:%d], v[%d:%d], %s" %
              (a, a + 3, w, w + 3, r, r + 3, "0" if ks == 0 else "v[%d:%d]" % (a, a + 3)))
            if T == 0 and n + AHEAD < len(seq): rd(n + AHEAD)
            for _ in range(1 + T):
                if side and side[0][0] <= n: emit(side.pop(0)[2])
    stamp()
    last = len(jobs) - 1
    while side and side[0][1] < last: emit(side.pop(0)[2])
    e("s_nop 7")
    for _, _, x in side: emit(x)
    lab("L2_fin")
    if DIAG: e("s_waitcnt vmcnt(0)")
    dump_stamps("s[14:15]", "s17", 1 << 20, 140)
    if "enc" in OPT:
        k = int(OPT["enc"])
        if k < 0:
            e("s_mov_b64 exec, -1")
            e("v_mov_b32 v142, %d" % (WS_DBG + 4 * (-k - 1)))
            e("global_load_dword v143, v142, s[14:15]")
            e("s_waitcnt vmcnt(0)")
            e("v_readfirstlane_b32 s44, v143")
        else:
            e("s_mov_b32 s44, s%d" % (64 + 2 * k))
        lab("L2_spin")
        e("s_memrealtime s[46:47]")
        e("s_waitcnt lgkmcnt(0)")
        e("s_sub_u32 s46, s46, s44")
        e("s_cmp_lt_u32 s46, 6000")
        e("s_cbranch_scc1 L2_spin")
    lab("L2_end")
    e("s_endpgm")

header()
k1()
k2()
out.append('.section .rodata,"a"')
kdesc("gstp_bin_kernel", 72, 96 if DIAG else 32)
kdesc("gstp_main_kernel", 256, 96 if DIAG else 64)
open(sys.argv[1], "w").write("\n".join(out) + "\n")
```

```python
import sys
NAME = "gather_scatter__tensor_product_equiv_equiformer__graph"
OPT = dict(a.split('=') for a in sys.argv[2:]) if len(sys.argv) > 2 else {}
def opt(k, d): return type(d)(OPT.get(k, d))

N = 10000; E = 320000
NB = opt("nb", 256)
G = 250; CH = 1280
WS_REC = 0
WS_TAB = 4 << 20
WS_WF = 5 << 20
WS_DBG = 8 << 20
U = 10
DK = 3
OOB = 0x7F000000
NPH = opt("nph", 6)
PHMUL = {5: 0x8312, 6: 0x9d49, 7: 0xb780, 8: 0xd1b7}[NPH]
L_COEF = 0; COEF_STRIDE = 640
L_OFFS = 25728; OFFS_STRIDE = 256
L_WT = 36864
L_F = 37888
L_CNT = L_F; L_ST = L_F + 2048; L_SLOT = L_ST + 2048
L_F0 = L_F; L_F1 = L_F + 3 * 8192
LDS_MAIN = L_F + 122880
R0 = 8 - NPH
DIAG = opt("diag", 0)
FL = {"": "", "sc1": " sc1", "nt": " nt", "sc01": " sc0 sc1"}
SFL = FL[opt("sfl", "sc1")]
KFL = FL[opt("kfl", "sc1")]

out = []
def e(s): out.append("    " + s)
def lab(s): out.append(s + ":")

def header():
    ref = open("cdna_kernels/%s.s.ref" % NAME).read().split("\n")
    for l in ref:
        if l.startswith("; Override"): break
        out.append(l)
    out.append("; @launch kernel=gstp_bin_kernel grid=(%d,1,1) block=(704,1,1) lds=17408" % G)
    out.append("; @launch kernel=gstp_main_kernel grid=(%d,1,1) block=(512,1,1) lds=%d" % (NB, LDS_MAIN))
    out.append('.amdgcn_target "amdgcn-amd-amdhsa--gfx950"')
    out.append(".text")

def kstart(name):
    out.append(".globl %s" % name)
    out.append(".p2align 8")
    out.append(".type %s,@function" % name)
    lab(name)

def kdesc(name, vgpr, sgpr):
    out.append(".p2align 6")
    out.append(".amdhsa_kernel %s" % name)
    out.append("  .amdhsa_next_free_vgpr %d" % vgpr)
    out.append("  .amdhsa_next_free_sgpr %d" % sgpr)
    out.append("  .amdhsa_accum_offset %d" % ((vgpr + 3) // 4 * 4))
    out.append("  .amdhsa_group_segment_fixed_size 0")
    out.append("  .amdhsa_kernarg_size 96")
    out.append("  .amdhsa_user_sgpr_count 2")
    out.append("  .amdhsa_user_sgpr_kernarg_segment_ptr 1")
    out.append("  .amdhsa_system_sgpr_workgroup_id_x 1")
    out.append(".end_amdhsa_kernel")

nstamp = [0]
FINE = opt("fine", 0)
def fstamp():
    if FINE: stamp(True)
def stamp(f=False):
    if not DIAG: return
    if FINE and nstamp[0] >= 12: return
    k = nstamp[0]; nstamp[0] += 1
    e("s_memrealtime s[%d:%d]" % (64 + 2 * k, 65 + 2 * k))
    if k == 0: e("s_memtime s[92:93]")
    if k == opt("ca", 3): e("s_memtime s[88:89]")
    if k == opt("cb", 4): e("s_memtime s[94:95]")
    e("s_waitcnt lgkmcnt(0)")
def dump_stamps(ws, swave, base, vt):
    if not DIAG: return
    e("s_memtime s[90:91]")
    stamp()
    e("s_mov_b64 exec, -1")
    e("v_mov_b32 v%d, 0" % vt)
    e("s_sub_u32 s90, s90, s92")
    e("v_writelane_b32 v%d, s90, 14" % vt)
    e("s_sub_u32 s94, s94, s88")
    e("v_writelane_b32 v%d, s94, 13" % vt)
    for k in range(nstamp[0]):
        e("v_writelane_b32 v%d, s%d, %d" % (vt, 64 + 2 * k, k))
    e("s_lshl_b32 s62, s2, 3")
    e("s_add_u32 s62, s62, %s" % swave)
    e("s_lshl_b32 s62, s62, 6")
    e("s_add_u32 s62, s62, %d" % (WS_DBG + base))
    e("v_mbcnt_lo_u32_b32 v%d, -1, 0" % (vt + 1))
    e("v_lshl_add_u32 v%d, v%d, 2, s62" % (vt + 1, vt + 1))
    e("s_mov_b64 exec, 0xffff")
    e("global_store_dword v%d, v%d, %s" % (vt + 1, vt, ws))
    nstamp[0] = 0

def wave_scan(v, rows_only=False):
    for sh in (1, 2, 4, 8):
        e("s_nop 1")
        e("v_add_u32_dpp %s, %s, %s row_shr:%d row_mask:0xf bank_mask:0xf bound_ctrl:0" % (v, v, v, sh))
    if rows_only: return
    e("s_nop 1")
    e("v_add_u32_dpp %s, %s, %s row_bcast:15 row_mask:0xa bank_mask:0xf" % (v, v, v))
    e("s_nop 1")
    e("v_add_u32_dpp %s, %s, %s row_bcast:31 row_mask:0xc bank_mask:0xf" % (v, v, v))

def unpack(dst, idx, base):
    r = base + idx // 2
    if idx % 2 == 0: e("v_lshlrev_b32 %s, 16, v%d" % (dst, r))
    else: e("v_and_b32 %s, 0xffff0000, v%d" % (dst, r))

def k1():
    STG = 2048
    EPT = 2; NW1 = CH // (64 * EPT)
    kstart("gstp_bin_kernel")
    e("s_cmp_ge_u32 s2, %d" % G)
    e("s_cbranch_scc1 L1_end")
    e("s_load_dwordx16 s[4:19], s[0:1], 0")
    e("s_load_dwordx2 s[20:21], s[0:1], 88")
    e("v_lshrrev_b32 v4, 6, v0")
    e("s_nop 0")
    e("v_readfirstlane_b32 s3, v4")
    e("s_cmp_eq_u32 s3, %d" % NW1)
    e("s_cbranch_scc1 L1_help")
    stamp()
    e("s_mul_i32 s22, s2, %d" % (CH * 4))
    e("s_mul_i32 s23, s2, %d" % (CH * 6))
    e("s_mul_i32 s24, s2, %d" % (CH * 2))
    e("v_lshl_add_u32 v1, v0, 3, s22")
    e("v_mul_u32_u24 v2, 12, v0")
    e("v_add_u32 v2, s23, v2")
    e("v_lshl_add_u32 v3, v0, 2, s24")
    e("v_and_b32 v4, 255, v0")
    e("v_lshlrev_b32 v4, 2, v4")
    e("v_mov_b32 v5, 0")
    e("ds_write_b32 v4, v5")
    KP = opt("k1pf", 1)
    if KP:
        e("s_mul_i32 s28, s2, 40960")
        e("v_lshl_add_u32 v45, v0, 6, s28")
    e("v_and_b32 v4, 63, v0")
    e("v_lshlrev_b32 v4, 4, v4")
    e("v_mov_b32 v46, %d" % (2 * ((1 << 26) // 5)))
    e("s_mov_b32 s29, 0x%x" % PHMUL)
    e("s_waitcnt lgkmcnt(0)")
    e("global_load_dwordx2 v[8:9], v1, s[12:13]")
    e("global_load_dwordx2 v[12:13], v1, s[10:11]")
    e("global_load_dwordx3 v[16:18], v2, s[6:7]")
    e("global_load_dword v22, v3, s[8:9]")
    e("v_mov_b32 v5, 1")
    e("s_barrier")
    if KP: e("global_load_dword v44, v45, s[4:5]")
    stamp()
    e("s_waitcnt vmcnt(%d)" % (3 + KP))
    stamp()
    for k in range(EPT):
        if NB == 256:
            e("v_mul_u32_u24 v%d, 429497, v%d" % (24 + k, 8 + k))
            e("v_lshrrev_b32 v%d, 24, v%d" % (24 + k, 24 + k))
        else:
            e("v_mul_u32_u24 v%d, 0xcccd, v%d" % (24 + k, 8 + k))
            e("v_lshrrev_b32 v%d, 21, v%d" % (24 + k, 24 + k))
        e("v_lshlrev_b32 v%d, 2, v%d" % (26 + k, 24 + k))
        e("ds_add_rtn_u32 v%d, v%d, v5" % (28 + k, 26 + k))
    for k in range(EPT):
        if NB == 256:
            e("v_mul_u32_u24 v6, 625, v%d" % (24 + k))
            e("v_add_u32 v6, 15, v6")
            e("v_lshrrev_b32 v6, 4, v6")
        else:
            e("v_mul_u32_u24 v6, 40, v%d" % (24 + k))
        e("v_sub_u32 v%d, v%d, v6" % (8 + k, 8 + k))
    def keyw(k):
        e("v_mad_u32_u24 v6, v%d, s29, v46" % (12 + k))
        e("v_mul_u32_u24 v7, %d, v%d" % ((1 << 26) // 5 + 1, 8 + k))
        e("v_and_b32 v7, 0x3ffffff, v7")
        e("v_sub_u32 v6, v6, v7")
        e("v_ashrrev_i32 v6, 26, v6")
        e("v_med3_i32 v6, v6, 0, %d" % (NPH - 1))
        e("v_lshl_add_u32 v6, v%d, 3, v6" % (8 + k))
        e("v_lshl_add_u32 v6, v%d, 10, v6" % (12 + k))
        e("v_lshlrev_b32 v%d, 2, v6" % (34 + 4 * k))
    e("s_waitcnt lgkmcnt(0)")
    e("s_barrier")
    stamp()
    e("ds_read_b128 v[52:55], v4")
    def coefs(k):
        unpack("v48", k, 22)
        for j in range(3):
            unpack("v%d" % (49 + j), 3 * k + j, 16)
        for j in range(3):
            e("v_mul_f32 v%d, v48, v%d" % (49 + j, 49 + j))
        e("v_cvt_pk_bf16_f32 v%d, v48, v49" % (32 + 4 * k))
        e("v_cvt_pk_bf16_f32 v%d, v50, v51" % (33 + 4 * k))
    e("s_waitcnt vmcnt(%d)" % KP)
    keyw(0)
    e("s_waitcnt lgkmcnt(0)")
    e("v_add_u32 v57, v52, v53")
    e("v_add_u32 v58, v57, v54")
    e("v_add_u32 v59, v58, v55")
    e("v_mov_b32 v60, v59")
    save = out[:]; del out[:]
    keyw(1); coefs(0)
    fill = out[:]; out[:] = save
    for sh in ("row_shr:1 row_mask:0xf bank_mask:0xf bound_ctrl:0", "row_shr:2 row_mask:0xf bank_mask:0xf bound_ctrl:0",
               "row_shr:4 row_mask:0xf bank_mask:0xf bound_ctrl:0", "row_shr:8 row_mask:0xf bank_mask:0xf bound_ctrl:0",
               "row_bcast:15 row_mask:0xa bank_mask:0xf", "row_bcast:31 row_mask:0xc bank_mask:0xf"):
        out.append(fill.pop(0)); out.append(fill.pop(0))
        e("v_add_u32_dpp v60, v60, v60 %s" % sh)
    e("v_sub_u32 v60, v60, v59")
    e("v_add_u32 v61, v60, v52")
    e("v_add_u32 v62, v60, v57")
    e("v_add_u32 v63, v60, v58")
    e("ds_write_b128 v4, v[60:63] offset:1024")
    for k in range(EPT):
        e("ds_read_b32 v%d, v%d offset:1024" % (24 + k, 26 + k))
    out.extend(fill)
    coefs(1)
    e("s_cmp_lg_u32 s3, 0")
    e("s_cbranch_scc1 L1_notab")
    for k in range(4):
        e("v_lshl_or_b32 v%d, v%d, 16, v%d" % (56 + k, 52 + k, 60 + k))
    e("s_lshl_b32 s26, s2, 10")
    e("s_add_u32 s26, s26, %d" % WS_TAB)
    e("v_add_u32 v7, s26, v4")
    e("global_store_dwordx4 v7, v[56:59], s[20:21]%s" % KFL)
    lab("L1_notab")
    e("s_waitcnt lgkmcnt(0)")
    for k in range(EPT):
        e("v_add_u32 v%d, v%d, v%d" % (24 + k, 24 + k, 28 + k))
        e("v_mul_u32_u24 v%d, 12, v%d" % (24 + k, 24 + k))
        e("v_add_u32 v%d, %d, v%d" % (24 + k, STG, 24 + k))
        e("ds_write2_b32 v%d, v%d, v%d offset0:0 offset1:1" % (24 + k, 32 + 4 * k, 33 + 4 * k))
        e("ds_write_b32 v%d, v%d offset:8" % (24 + k, 34 + 4 * k))
    e("v_lshlrev_b32 v6, 4, v0")
    e("s_mul_i32 s26, s2, %d" % (CH * 12))
    e("s_add_u32 s26, s26, %d" % WS_REC)
    e("v_add_u32 v7, s26, v6")
    e("v_add_u32 v8, 10240, v7")
    e("s_cmp_ge_u32 s3, 5")
    e("s_waitcnt lgkmcnt(0)")
    e("s_barrier")
    e("ds_read_b128 v[12:15], v6 offset:%d" % STG)
    e("s_cbranch_scc1 L1_one")
    e("ds_read_b128 v[16:19], v6 offset:%d" % (STG + 10240))
    e("s_waitcnt lgkmcnt(0)")
    e("global_store_dwordx4 v8, v[16:19], s[20:21]%s" % KFL)
    lab("L1_one")
    e("s_waitcnt lgkmcnt(0)")
    e("global_store_dwordx4 v7, v[12:15], s[20:21]%s" % KFL)
    stamp()
    if DIAG:
        e("s_waitcnt vmcnt(0)")
        e("s_cmp_ge_u32 s3, 5")
        e("s_cbranch_scc1 L1_end")
    dump_stamps("s[20:21]", "s3", 0, 4)
    e("s_endpgm")
    lab("L1_help")
    e("s_cmp_ge_u32 s2, 160")
    e("s_cbranch_scc1 L1_end")
    e("v_and_b32 v1, 63, v0")
    e("s_mul_i32 s22, s2, 1639")
    e("s_lshr_b32 s22, s22, 16")
    e("s_mul_i32 s23, s22, 40")
    e("s_sub_u32 s23, s2, s23")
    e("s_and_b32 s29, s23, 1")
    e("s_lshr_b32 s23, s23, 1")
    e("s_waitcnt lgkmcnt(0)")
    e("s_cmp_lt_u32 s23, 8")
    e("s_cselect_b64 s[24:25], s[16:17], s[18:19]")
    e("s_cselect_b32 s26, 0, 8")
    e("s_sub_u32 s26, s23, s26")
    e("s_lshl_b32 s26, s26, 13")
    e("s_lshl_b32 s27, s22, 6")
    e("s_add_u32 s26, s26, s27")
    e("s_lshl_b32 s27, s29, 3")
    e("s_add_u32 s26, s26, s27")
    e("v_lshrrev_b32 v2, 4, v1")
    e("v_bfe_u32 v3, v1, 2, 2")
    e("v_and_b32 v6, 3, v1")
    e("v_lshlrev_b32 v4, 11, v2")
    e("v_lshl_add_u32 v4, v3, 4, v4")
    e("v_lshl_add_u32 v4, v6, 1, v4")
    e("v_add_u32 v4, s26, v4")
    e("s_lshl_b32 s27, s23, 6")
    e("v_lshl_add_u32 v5, v2, 4, s27")
    e("global_load_dwordx4 v[16:19], v5, s[14:15]")
    for i in range(8):
        e("global_load_ushort v%d, v4, s[24:25] offset:%d" % (8 + i, 256 * i))
    e("s_barrier")
    e("s_barrier")
    e("s_barrier")
    e("s_waitcnt vmcnt(0)")
    for i in range(8):
        e("v_lshlrev_b32 v%d, 16, v%d" % (8 + i, 8 + i))
        unpack("v20", i, 16)
        e("v_mul_f32 v%d, v20, v%d" % (8 + i, 8 + i))
    for i in range(4):
        e("v_cvt_pk_bf16_f32 v%d, v%d, v%d" % (24 + i, 8 + 2 * i, 9 + 2 * i))
    e("s_lshl_b32 s26, s2, 10")
    e("s_add_u32 s26, s26, %d" % WS_WF)
    e("v_lshl_add_u32 v7, v1, 4, s26")
    e("global_store_dwordx4 v7, v[24:27], s[20:21]%s" % KFL)
    lab("L1_end")
    e("s_endpgm")

ACC = 0; LB = [160, 192]; BT = [224, 228]; AF = [232, 236]; VO = 240
VCA = 248; RB = 249; REM = 250; PEND = 251; TID = 252; VOA = 253; PSEL = 254
SM = 28
def rec(i): return 160 + 4 * i
def kad(i): return 200 + i
T0 = 210
MSK = 20
def msk(i): return "s[%d:%d]" % (MSK + 2 * i, MSK + 2 * i + 1)

def lds_init():
    z = 224; a = 232
    for k in range(7): e("v_mov_b32 v%d, 0" % (z + k + (1 if k == 6 else 0)))
    e("v_mov_b32 v%d, -1" % (z + 6))
    e("v_and_b32 v%d, 63, v%d" % (a, TID))
    e("s_lshl_b32 s4, s17, 11")
    e("s_add_u32 s4, s4, %d" % L_SLOT)
    e("v_lshl_add_u32 v%d, v%d, 4, s4" % (a, a))
    e("v_add_u32 v%d, 32768, v%d" % (a + 3, a))
    e("v_lshlrev_b32 v%d, 2, v%d" % (a + 1, TID))
    e("v_mul_u32_u24 v%d, 80, v%d" % (a + 2, TID))
    for k in range(5):
        e("ds_write_b128 v%d, v[%d:%d] offset:%d" % (a if k < 2 else a + 3, z + 4, z + 7, 16384 * (k if k < 2 else k - 2)))
    e("ds_write_b32 v%d, v%d offset:%d" % (a + 1, z, L_CNT))
    e("v_cmp_gt_u32 vcc, 320, v%d" % TID)
    e("s_mov_b64 exec, vcc")
    e("ds_write_b128 v%d, v[%d:%d] offset:%d" % (a + 2, z, z + 3, L_COEF + 64))
    e("s_mov_b64 exec, -1")

def k2():
    kstart("gstp_main_kernel")
    e("s_cmp_ge_u32 s2, %d" % NB)
    e("s_cbranch_scc1 L2_end")
    e("s_load_dwordx2 s[8:9], s[0:1], 0")
    e("s_load_dwordx2 s[12:13], s[0:1], 72")
    e("s_load_dwordx2 s[14:15], s[0:1], 88")
    stamp()
    t = T0
    e("v_mov_b32 v%d, v0" % TID)
    e("v_lshrrev_b32 v%d, 6, v0" % t)
    e("s_and_b32 s4, s2, 7")
    e("s_lshr_b32 s5, s2, 3")
    if NB == 256:
        e("s_lshl_b32 s16, s4, 5")
        e("s_add_u32 s16, s16, s5")
    else:
        e("s_mul_i32 s16, s4, 31")
        e("s_min_u32 s4, s4, 2")
        e("s_add_u32 s16, s16, s4")
        e("s_add_u32 s16, s16, s5")
    e("v_readfirstlane_b32 s17, v%d" % t)
    e("v_lshrrev_b32 v%d, 1, v0" % (t + 1))
    e("v_min_u32 v%d, %d, v%d" % (t + 1, G - 1, t + 1))
    e("s_lshl_b32 s4, s16, 2")
    e("s_add_u32 s4, s4, %d" % WS_TAB)
    e("v_lshl_add_u32 v%d, v%d, 10, s4" % (t + 2, t + 1))
    par = t + 4
    e("v_and_b32 v%d, 1, v%d" % (par, TID))
    e("v_mul_u32_u24 v%d, %d, v%d" % (t + 1, CH, t + 1))
    e("v_cmp_gt_u32 vcc, %d, v%d" % (2 * G, TID))
    e("s_mov_b64 s[50:51], vcc")
    e("s_setprio 3")
    e("s_mov_b32 s18, 0x05040100")
    e("s_mov_b32 s19, 0x07060302")
    EARLY = opt("early", 1)
    if EARLY: lds_init()
    e("s_waitcnt lgkmcnt(0)")
    fstamp()
    e("global_load_dword v%d, v%d, s[14:15]" % (t + 3, t + 2))
    e("s_or_b32 s9, s9, 0x00100000")
    e("s_mov_b32 s10, %d" % (N * 1024))
    e("s_mov_b32 s11, 0x00800000")
    if not EARLY: lds_init()
    NZ = opt("nz", 4)
    for r in range(0, 16 * NZ, 16):
        e("v_mfma_f32_32x32x16_bf16 v[%d:%d], v[224:227], v[224:227], 0" % (r, r + 15))
    e("s_mov_b32 s44, 0")
    e("s_mov_b32 s45, 0")
    fstamp()
    e("s_waitcnt vmcnt(0)")
    stamp()
    e("v_and_b32 v%d, 0xffff, v%d" % (t + 2, t + 3))
    e("v_lshrrev_b32 v%d, 16, v%d" % (REM, t + 3))
    e("v_add3_u32 v%d, v%d, v%d, v%d" % (t + 1, t + 1, t + 2, par))
    e("v_cndmask_b32 v%d, 0, v%d, s[50:51]" % (REM, REM))
    e("v_mul_u32_u24 v%d, 12, v%d" % (RB, t + 1))
    e("v_sub_u32 v%d, v%d, v%d" % (REM, REM, par))
    NS = 4
    lab("L2_batch")
    for i in range(U):
        e("v_cmpx_lt_i32 %s, %d, v%d" % (msk(i), 2 * i, REM))
        if i >= NS:
            e("s_mov_b32 s42, %d" % i)
            e("s_cbranch_execz L2_ld")
        e("global_load_dwordx3 v[%d:%d], v%d, s[14:15] offset:%d" % (rec(i), rec(i) + 2, RB, 24 * i))
    e("s_mov_b32 s42, %d" % U)
    lab("L2_ld")
    e("s_mov_b64 exec, -1")
    fstamp()
    e("s_or_b32 s4, s44, s45")
    e("s_cbranch_scc1 L2_noz")
    e("s_nop 1")
    for r in range(16 * NZ, 160, 16):
        e("v_mfma_f32_32x32x16_bf16 v[%d:%d], v[224:227], v[224:227], 0" % (r, r + 15))
    lab("L2_noz")
    def stage(name, body):
        for i in range(U):
            if i >= NS:
                e("s_cmp_le_u32 s42, %d" % i)
                e("s_cbranch_scc1 L2_%s" % name)
            e("s_mov_b64 exec, %s" % msk(i))
            body(i)
        lab("L2_%s" % name)
    tab = {(0, 0): 0, (1, 1): 1, (1, 2): 2, (1, 3): 3,
           (4, 0): 1, (5, 1): 0, (6, 3): 2, (7, 2): 3,
           (8, 0): 2, (9, 2): 0, (10, 1): 3, (11, 3): 1,
           (12, 0): 3, (13, 3): 0, (14, 2): 1, (15, 1): 2}
    e("v_mov_b32 v%d, 64" % PSEL)
    for p_ in range(4):
        m_ = 0
        for (m, q), v in tab.items():
            if v == p_: m_ |= 1 << (16 * q + m)
        e("s_mov_b32 exec_lo, 0x%x" % (m_ & 0xffffffff))
        e("s_mov_b32 exec_hi, 0x%x" % (m_ >> 32))
        e("v_mov_b32 v%d, %d" % (PSEL, 16 * p_))
    e("s_mov_b64 exec, -1")
    va = 255; vo = 244; vb = 245; vf = 246; D0 = AF[0]
    e("v_and_b32 v%d, 63, v%d" % (vo, TID))
    e("s_mul_i32 s4, s17, %d" % (5 * 2048))
    e("s_add_u32 s4, s4, %d" % L_SLOT)
    e("v_lshl_add_u32 v%d, v%d, 4, s4" % (va, vo))
    e("v_lshlrev_b32 v%d, 2, v%d" % (vo, vo))
    e("v_and_b32 v%d, 28, v%d" % (vb, vo))
    e("s_mul_i32 s48, s17, %d" % (5 * OFFS_STRIDE))
    e("s_mul_i32 s49, s17, %d" % (5 * COEF_STRIDE))
    e("v_add_u32 v%d, s48, v%d" % (vo, vo))
    e("s_lshl_b32 s5, s17, 2")
    e("v_mov_b32 v%d, s5" % vf)
    e("v_cmp_lt_i32 vcc, %d, v%d" % (2 * U, REM))
    e("s_cmp_lg_u64 vcc, 0")
    e("s_cselect_b32 s43, 2, 0")
    one = t + 1
    e("v_mov_b32 v%d, 1" % one)
    e("v_and_b32 v%d, 63, v%d" % (t, TID))
    e("v_lshlrev_b32 v%d, 5, v%d" % (t, t))
    e("v_cmp_gt_u32 vcc, %d, v%d" % (40 * 32, t))
    e("s_mov_b64 s[46:47], vcc")
    e("v_mov_b32 v%d, 0" % PEND)
    e("s_waitcnt lgkmcnt(0)")
    e("s_barrier")
    fstamp()
    e("s_waitcnt vmcnt(0)")
    fstamp()
    def b_at(i):
        e("v_and_b32 v%d, 0xffc, v%d" % (kad(i), rec(i) + 2))
        e("ds_add_rtn_u32 v%d, v%d, v%d offset:%d" % (rec(i) + 3, kad(i), one, L_CNT))
    stage("at", b_at)
    e("s_mov_b64 exec, s[46:47]")
    e("s_waitcnt lgkmcnt(0)")
    e("s_barrier")
    stamp()
    cc = 212
    e("ds_read_b128 v[%d:%d], v%d offset:%d" % (cc, cc + 3, t, L_CNT))
    e("ds_read_b128 v[%d:%d], v%d offset:%d" % (cc + 4, cc + 7, t, L_CNT + 16))
    lim = 220; tmp = 221; en = 222; nb_ = 223
    f = 224; fo = 232
    e("s_waitcnt lgkmcnt(0)")
    e("v_add3_u32 v%d, v%d, v%d, v%d" % (lim, cc, cc + 1, cc + 2))
    k = 3
    while k < NPH:
        if k + 1 < NPH:
            e("v_add3_u32 v%d, v%d, v%d, v%d" % (lim, lim, cc + k, cc + k + 1)); k += 2
        else:
            e("v_add_u32 v%d, v%d, v%d" % (lim, lim, cc + k)); k += 1
    e("v_sub_u32 v%d, 64, v%d" % (lim, lim))
    e("v_max_i32 v%d, 0, v%d" % (lim, lim))
    e("v_and_b32 v%d, -8, v%d" % (tmp, lim))
    e("v_min_u32 v%d, %d, v%d" % (f, 8 * R0, tmp))
    for k in range(1, NPH):
        e("v_add_u32 v%d, v%d, v%d" % (lim, lim, cc + k - 1))
        e("v_add_u32 v%d, v%d, v%d" % (en, f + k - 1, cc + k - 1))
        e("v_and_b32 v%d, -8, v%d" % (tmp, lim))
        e("v_min_u32 v%d, %d, v%d" % (tmp, 8 * (R0 + k), tmp))
        e("v_max_u32 v%d, v%d, v%d" % (f + k, tmp, en))
    e("ds_write_b128 v%d, v[%d:%d] offset:%d" % (t, f, f + 3, L_ST))
    e("ds_write_b128 v%d, v[%d:%d] offset:%d" % (t, f + 4, f + 7, L_ST + 16))
    st = lambda i: 232 + i
    def b_st(i):
        e("ds_read_b32 v%d, v%d offset:%d" % (st(i), kad(i), L_ST))
        e("v_and_b32 v%d, 0xfe0, v%d" % (kad(i), kad(i)))
        e("v_lshlrev_b32 v%d, 6, v%d" % (kad(i), kad(i)))
    stage("st", b_st)
    e("s_waitcnt lgkmcnt(0)")
    fstamp()
    def b_pl(i):
        e("v_add_u32 v%d, v%d, v%d" % (st(i), st(i), rec(i) + 3))
        e("v_min_u32 v%d, 64, v%d" % (st(i), st(i)))
        e("v_lshl_add_u32 v%d, v%d, 4, v%d" % (kad(i), st(i), kad(i)))
        e("v_lshrrev_b32 v%d, 6, v%d" % (st(i), st(i)))
        e("ds_write_b96 v%d, v[%d:%d] offset:%d" % (kad(i), rec(i), rec(i) + 2, L_SLOT))
        e("v_lshl_or_b32 v%d, v%d, %d, v%d" % (PEND, st(i), i, PEND))
    stage("pl", b_pl)
    e("s_mov_b64 exec, -1")
    e("v_cmp_ne_u32 vcc, 0, v%d" % PEND)
    e("s_cmp_lg_u64 vcc, 0")
    e("s_addc_u32 s4, s43, 0")
    e("v_mov_b32 v%d, s4" % (t + 2))
    e("ds_write_b32 v%d, v%d offset:%d" % (vf, t + 2, L_WT))
    e("s_waitcnt lgkmcnt(0)")
    e("s_barrier")
    stamp()
    for u in range(5):
        e("ds_read_b32 v%d, v%d offset:%d" % (D0 + u, va, 2048 * u + 8))
    e("ds_read_b32 v238, v%d offset:%d" % (vb, L_WT))
    vb = 238
    for r in range(LB[0], LB[0] + 32, 2): e("v_mov_b64 v[%d:%d], 0" % (r, r + 1))
    for u in range(5):
        e("s_waitcnt lgkmcnt(5)")
        e("v_lshrrev_b32 v%d, 12, v%d" % (D0 + u, D0 + u))
        e("v_lshlrev_b32 v%d, 10, v%d" % (D0 + u, D0 + u))
        e("v_cmp_gt_u32 s[%d:%d], s10, v%d" % (SM + 2 * u, SM + 2 * u + 1, D0 + u))
        if opt("small", 0): e("v_and_b32 v%d, 0xffc00, v%d" % (D0 + u, D0 + u))
        e("ds_write_b32 v%d, v%d offset:%d" % (vo, D0 + u, L_OFFS + OFFS_STRIDE * u))
    e("s_or_b64 s[4:5], s[%d:%d], s[%d:%d]" % (SM, SM + 1, SM + 2, SM + 3))
    for u in range(2, 5):
        e("s_or_b64 s[4:5], s[4:5], s[%d:%d]" % (SM + 2 * u, SM + 2 * u + 1))
    e("s_bitset1_b32 s5, 24")
    e("s_ff1_i32_b64 s6, s[4:5]")
    e("s_and_b32 s6, s6, 0x38")
    for u in range(5):
        e("s_lshr_b64 s[%d:%d], s[%d:%d], s6" % (SM + 2 * u, SM + 2 * u + 1, SM + 2 * u, SM + 2 * u + 1))
    e("s_lshl_b32 s7, s6, 2")
    e("s_add_u32 s7, s7, s48")
    e("v_mov_b32 v%d, s7" % VOA)
    e("s_mul_i32 s7, s6, 10")
    e("s_add_u32 s7, s7, s49")
    e("v_add_u32 v%d, s7, v%d" % (VCA, PSEL))
    e("s_lshr_b32 s6, s6, 3")
    e("s_sub_u32 s40, 8, s6")
    e("s_cmp_lt_u32 s17, 4")
    e("s_addc_u32 s41, s6, 0")
    def ooff(g): return L_OFFS + (g % 5) * OFFS_STRIDE + (g // 5) * 32
    def coff(g): return L_COEF + (g % 5) * COEF_STRIDE + (g // 5) * 80
    def rdoff(g, r=VO):
        e("ds_read_b128 v[%d:%d], v%d offset:%d" % (r, r + 3, VOA, ooff(g)))
        e("ds_read_b128 v[%d:%d], v%d offset:%d" % (r + 4, r + 7, VOA, ooff(g) + 16))
    NC = [38, 39]
    lid = [0]
    def count(u, buf):
        m = SM + 2 * u
        e("s_and_b32 s%d, s%d, 0xff" % (NC[buf], m))
        e("s_bcnt1_i32_b32 s%d, s%d" % (NC[buf], NC[buf]))
        e("s_lshr_b64 s[%d:%d], s[%d:%d], 8" % (m, m + 1, m, m + 1))
    def ladder(buf, wait=True, r=VO):
        n = lid[0]; lid[0] += 1
        for i in range(8):
            e("s_cmp_le_u32 s%d, %d" % (NC[buf], i))
            e("s_cbranch_scc1 L2_w%d_%d" % (n, i if wait else 8))
            e("buffer_load_dwordx4 v[%d:%d], v%d, s[8:11], 0 offen" %
              (LB[buf] + 4 * i, LB[buf] + 4 * i + 3, r + i))
        if wait:
            e("s_branch L2_w%d_8" % n)
            for i in range(8):
                lab("L2_w%d_%d" % (n, i))
                e("s_waitcnt vmcnt(%d)" % i)
        lab("L2_w%d_8" % n)
        if wait: e("s_waitcnt vmcnt(8)")
    rdoff(0)
    count(0, 0)
    count(1, 1)
    e("s_waitcnt lgkmcnt(0)")
    fstamp()
    ladder(0, False)
    rdoff(1)
    for r in range(LB[1], LB[1] + 32, 2): e("v_mov_b64 v[%d:%d], 0" % (r, r + 1))
    e("v_and_b32 v239, 1, v%d" % vb)
    e("v_cmp_ne_u32 vcc, 0, v239")
    e("s_or_b32 s44, vcc_lo, vcc_hi")
    e("v_cmp_lt_u32 vcc, 1, v%d" % vb)
    e("s_or_b32 s45, vcc_lo, vcc_hi")
    CF = 224
    for u in range(5):
        e("ds_read_b64 v[%d:%d], v%d offset:%d" % (CF + 2 * u, CF + 2 * u + 1, va, 2048 * u))
    sa = 234; sb = 235; kp = 236; sd = 237; wa = 238; rc = 239
    e("v_mov_b32 v%d, s18" % sa)
    e("v_mov_b32 v%d, s19" % sb)
    e("v_bfe_u32 v%d, v%d, 3, 3" % (wa, TID))
    e("v_mul_u32_u24 v%d, 80, v%d" % (wa, wa))
    e("v_bfe_u32 v%d, v%d, 1, 2" % (kp, TID))
    e("v_lshl_add_u32 v%d, v%d, 2, v%d" % (wa, kp, wa))
    e("v_add_u32 v%d, s49, v%d" % (wa, wa))
    e("s_mov_b32 s6, 0xaaaaaaaa")
    e("s_mov_b32 s7, 0xaaaaaaaa")
    e("s_mov_b64 exec, s[6:7]")
    e("v_mov_b32 v%d, 0x01000504" % sa)
    e("v_mov_b32 v%d, 0x03020706" % sb)
    e("v_add_u32 v%d, 32, v%d" % (wa, wa))
    e("s_mov_b64 exec, -1")
    e("s_waitcnt lgkmcnt(5)")
    n1 = lid[0]
    ladder(1, False)
    e("s_waitcnt lgkmcnt(0)")
    for u in range(5):
        lo = CF + 2 * u; hi = lo + 1
        e("v_cndmask_b32 v%d, v%d, v%d, s[6:7]" % (sd, hi, lo))
        e("v_cndmask_b32 v%d, v%d, v%d, s[6:7]" % (kp, lo, hi))
        e("s_nop 0")
        e("v_mov_b32_dpp v%d, v%d quad_perm:[1,0,3,2] row_mask:0xf bank_mask:0xf" % (rc, sd))
        e("v_perm_b32 v%d, v%d, v%d, v%d" % (lo, rc, kp, sa))
        e("v_perm_b32 v%d, v%d, v%d, v%d" % (hi, rc, kp, sb))
        e("ds_write2_b32 v%d, v%d, v%d offset0:0 offset1:4" % (wa, lo, hi))
        if u < 4: e("v_add_u32 v%d, %d, v%d" % (wa, COEF_STRIDE, wa))
    e("s_waitcnt lgkmcnt(0)")
    e("ds_read_b128 v[%d:%d], v%d offset:%d" % (AF[0], AF[0] + 3, VCA, coff(0)))
    for r in range(BT[0], BT[0] + 8, 2): e("v_mov_b64 v[%d:%d], 0" % (r, r + 1))
    e("s_barrier")
    for i in range(8):
        e("s_cmp_le_u32 s%d, %d" % (NC[1], i))
        e("s_cbranch_scc1 L2_f%d" % i)
    e("s_branch L2_f8")
    for i in range(9):
        lab("L2_f%d" % i)
        e("s_waitcnt vmcnt(%d)" % i)
    e("s_waitcnt lgkmcnt(0)")
    fstamp()
    X = opt("x", "")
    VAR = opt("var", 1)
    out.append(".p2align 6")
    lab("L2_sweep")
    for g in range(10):
        u = g % 5; buf = g & 1; L = LB[buf]; A = AF[buf]
        u2 = (g + 2) % 5
        rdoff(g + 2)
        e("ds_read_b128 v[%d:%d], v%d offset:%d" % (AF[buf ^ 1], AF[buf ^ 1] + 3, VCA, coff(g + 1)))
        def body(np_):
            def P(j):
                if "P" in X: return
                d = j >> 1; s = "s19" if j & 1 else "s18"
                for tt in range(np_):
                    e("v_perm_b32 v%d, v%d, v%d, %s" % (BT[j & 1] + tt, L + 4 * (2 * tt + 1) + d, L + 4 * (2 * tt) + d, s))
            def M(j):
                if "M" in X: return
                a = ACC + 32 * u + 4 * j
                if np_ == 2:
                    e("v_mfma_f32_16x16x16_bf16 v[%d:%d], v[%d:%d], v[%d:%d], v[%d:%d]" %
                      (a, a + 3, A, A + 1, BT[j & 1], BT[j & 1] + 1, a, a + 3))
                else:
                    e("v_mfma_f32_16x16x32_bf16 v[%d:%d], v[%d:%d], v[%d:%d], v[%d:%d]" %
                      (a, a + 3, A, A + 3, BT[j & 1], BT[j & 1] + 3, a, a + 3))
            P(0); P(1); M(0)
            for j in range(2, 8):
                P(j); M(j - 1)
            e("s_nop 0")
            M(7)
        if VAR:
            e("s_cmp_gt_u32 s%d, 6" % NC[buf])
            e("s_cbranch_scc1 L2_v4_%d" % g)
            e("s_cmp_gt_u32 s%d, 4" % NC[buf])
            e("s_cbranch_scc1 L2_v3_%d" % g)
            e("s_cmp_eq_u32 s%d, 0" % NC[buf])
            e("s_cbranch_scc1 L2_skip%d" % g)
            body(2)
            e("s_branch L2_skip%d" % g)
            lab("L2_v3_%d" % g)
            body(3)
            e("s_branch L2_skip%d" % g)
            lab("L2_v4_%d" % g)
            body(4)
        else:
            e("s_cmp_eq_u32 s%d, 0" % NC[buf])
            e("s_cbranch_scc1 L2_skip%d" % g)
            body(4)
        lab("L2_skip%d" % g)
        count(u2, buf)
        if g == 4:
            e("s_sub_u32 s40, s40, 1")
        if g == 9:
            e("v_add_u32 v%d, 160, v%d" % (VCA, VCA))
            e("v_add_u32 v%d, 64, v%d" % (VOA, VOA))
            e("s_sub_u32 s40, s40, 1")
        e("s_waitcnt lgkmcnt(0)")
        ladder(buf)
        if g in (4, 9):
            e("s_add_u32 s41, s41, 1")
            e("s_cmp_ge_u32 s41, 4"); e("s_cbranch_scc0 L2_pr%d" % g); e("s_setprio 2")
            e("s_cmp_ge_u32 s41, 6"); e("s_cbranch_scc0 L2_pr%d" % g); e("s_setprio 1")
            e("s_cmp_ge_u32 s41, 8"); e("s_cbranch_scc0 L2_pr%d" % g); e("s_setprio 0")
            lab("L2_pr%d" % g)
            e("s_cmp_lg_u32 s40, 0")
            e("s_cbranch_scc0 L2_swept" if g == 4 else "s_cbranch_scc1 L2_sweep")
    lab("L2_swept")
    e("s_or_b32 s6, s44, s45")
    e("s_cbranch_scc0 L2_epi")
    e("s_barrier")
    lds_init()
    e("s_cmp_lg_u32 s44, 0")
    e("s_cbranch_scc1 L2_pass")
    e("v_add_u32 v%d, %d, v%d" % (RB, 24 * U, RB))
    e("v_add_u32 v%d, %d, v%d" % (REM, -2 * U, REM))
    e("s_branch L2_batch")
    lab("L2_pass")
    for i in range(U):
        e("v_and_b32 v%d, %d, v%d" % (t, 1 << i, PEND))
        e("v_cmp_ne_u32 %s, 0, v%d" % (msk(i), t))
        e("s_mov_b64 exec, %s" % msk(i))
        e("global_load_dwordx3 v[%d:%d], v%d, s[14:15] offset:%d" % (rec(i), rec(i) + 2, RB, 24 * i))
        e("s_mov_b64 exec, -1")
    e("s_mov_b32 s42, %d" % U)
    e("s_branch L2_ld")
    lab("L2_epi")
    stamp()
    e("s_setprio 0")
    LC = 245; lane = 253
    e("v_and_b32 v%d, 63, v%d" % (lane, TID))
    e("v_lshlrev_b32 v%d, 4, v%d" % (LC, lane))
    def wreg(f_): return 160 + 4 * f_ if f_ < 20 else 4 * (f_ - 20)
    e("s_sub_u32 s4, s17, 4")
    e("s_mul_i32 s4, s4, 40960")
    e("s_add_u32 s4, s4, %d" % (WS_WF + 4096))
    e("s_add_u32 s46, s14, s4")
    e("s_addc_u32 s47, s15, 0")
    wl = [0]
    def wload(lo, hi):
        n = wl[0]; wl[0] += 1
        e("s_cmp_lt_u32 s17, 4")
        e("s_cbranch_scc1 L2_nw%d" % n)
        for f_ in range(lo, hi):
            if f_ and f_ % 8 == 0:
                e("s_add_u32 s46, s46, 8192")
                e("s_addc_u32 s47, s47, 0")
            e("global_load_dwordx4 v[%d:%d], v%d, s[46:47] offset:%d" % (wreg(f_), wreg(f_) + 3, LC, (f_ % 8) * 1024 - 4096))
        lab("L2_nw%d" % n)
    WLM = opt('wl', 1)
    wload(0, 8 if WLM else 4)
    LA = 240; TS = 241; LBB = 242; SG = 243; SG2 = 244; ADR = 246; TMP = 247
    e("v_and_b32 v%d, 3, v%d" % (SG, lane))
    e("v_bfe_u32 v%d, v%d, 2, 2" % (ADR, lane))
    e("v_lshlrev_b32 v%d, 8, v%d" % (LA, SG))
    e("v_lshl_add_u32 v%d, v%d, 10, v%d" % (LA, ADR, LA))
    e("v_and_b32 v%d, 1, v%d" % (ADR, ADR))
    e("v_mul_u32_u24 v%d, 12, v%d" % (ADR, ADR))
    e("v_or_b32 v%d, v%d, v%d" % (SG, SG, ADR))
    e("v_lshlrev_b32 v%d, 4, v%d" % (SG, SG))
    e("v_mov_b32 v%d, v%d" % (SG2, SG))
    e("v_add_u32 v%d, %d, v%d" % (LBB, L_F0 + 16384, LA))
    e("v_mov_b32 v%d, 8192" % TS)
    e("v_mov_b32 v%d, v%d" % (TMP, LA))
    e("v_add_u32 v%d, %d, v%d" % (LA, L_F0, LA))
    for gp in range(1, 4):
        lo = 0xffff0000 if gp == 1 else 0
        hi = {1: 0, 2: 0x0000ffff, 3: 0xffff0000}[gp]
        e("s_mov_b32 exec_lo, 0x%x" % lo)
        e("s_mov_b32 exec_hi, 0x%x" % hi)
        e("v_add_u32 v%d, %d, v%d" % (LA, L_F1 + (gp - 1) * 24576, TMP))
        e("v_add_u32 v%d, %d, v%d" % (LBB, L_F1 + (7 if gp == 3 else 6) * 12288, TMP))
        e("v_mov_b32 v%d, 12288" % TS)
        if gp == 2: e("v_xor_b32 v%d, 128, v%d" % (SG2, SG2))
    e("s_mov_b64 exec, -1")
    e("s_mul_i32 s4, s17, 5")
    e("s_mov_b32 s48, 0xffff0000")
    e("s_mov_b32 s49, -1")
    TA0 = 248; TA1 = 252
    after = {0: (8, 14), 1: (14, 20), 2: (20, 28), 3: (28, 36), 4: (36, 40)} if WLM else {0: (4, 8), 1: (8, 12), 2: (12, 16), 3: (16, 20)}
    for u in range(5):
        A = ACC + 32 * u
        e("s_lshr_b32 s5, s4, 4")
        e("s_and_b32 s6, s4, 15")
        e("s_lshl_b32 s6, s6, 4")
        e("s_cmp_lt_u32 s4, 32")
        e("s_cselect_b64 s[50:51], -1, 0")
        e("v_mad_u32_u24 v%d, v%d, s5, v%d" % (ADR, TS, LA))
        e("v_cndmask_b32 v%d, v%d, v%d, s[50:51]" % (ADR, LBB, ADR))
        e("v_cndmask_b32 v%d, v%d, v%d, s[50:51]" % (TMP, SG2, SG))
        e("v_xor_b32 v%d, s6, v%d" % (TMP, TMP))
        e("v_add_u32 v%d, v%d, v%d" % (ADR, ADR, TMP))
        for dd in range(4):
            e("v_cvt_pk_bf16_f32 v%d, v%d, v%d" % (TA0 + dd, A + 8 * dd, A + 8 * dd + 4))
        e("ds_write_b128 v%d, v[%d:%d]" % (ADR, TA0, TA0 + 3))
        for dd in range(4):
            e("v_cvt_pk_bf16_f32 v%d, v%d, v%d" % (TA1 + dd, A + 8 * dd + 1, A + 8 * dd + 5))
        e("ds_write_b128 v%d, v[%d:%d] offset:4096" % (ADR, TA1, TA1 + 3))
        for j in range(8):
            e("v_sub_f32 v%d, v%d, v%d" % (A + 4 * j + 2, A + 4 * j + 2, A + 4 * j + 3))
        for dd in range(4):
            e("v_cvt_pk_bf16_f32 v%d, v%d, v%d" % (A + dd, A + 8 * dd + 2, A + 8 * dd + 6))
        e("s_mov_b64 exec, s[48:49]")
        e("ds_write_b128 v%d, v[%d:%d] offset:8192" % (ADR, A, A + 3))
        e("s_mov_b64 exec, -1")
        e("s_add_u32 s4, s4, 1")
        if WLM and u >= 2: e("s_waitcnt lgkmcnt(6)")
        if u in after: wload(*after[u])
    e("s_waitcnt lgkmcnt(0)")
    e("s_cmp_lt_u32 s17, 4")
    e("s_cbranch_scc0 L2_gemm")
    stamp()
    e("s_barrier")
    if DIAG:
        e("s_branch L2_fin")
        if not FINE: nstamp[0] -= 1
    else:
        e("s_endpgm")
    lab("L2_gemm")
    RA = [240, 241, 242, 243]
    OA = 244; OAX = 248
    e("v_lshrrev_b32 v%d, 8, v%d" % (TMP, LC))
    e("v_bfe_u32 v%d, v%d, 4, 4" % (ADR, LC))
    e("v_xor_b32 v%d, v%d, v%d" % (RA[0], ADR, TMP))
    e("v_lshlrev_b32 v%d, 4, v%d" % (RA[0], RA[0]))
    e("v_lshl_add_u32 v%d, v%d, 8, v%d" % (RA[0], TMP, RA[0]))
    e("v_xor_b32 v%d, 0xc0, v%d" % (RA[1], RA[0]))
    e("v_add_u32 v%d, %d, v%d" % (RA[2], L_F + 65536, RA[0]))
    e("v_add_u32 v%d, %d, v%d" % (RA[3], L_F + 65536, RA[1]))
    e("v_add_u32 v%d, %d, v%d" % (RA[0], L_F, RA[0]))
    e("v_add_u32 v%d, %d, v%d" % (RA[1], L_F, RA[1]))
    e("v_lshlrev_b32 v%d, 10, v%d" % (OA, ADR))
    e("v_lshl_add_u32 v%d, v%d, 4, v%d" % (OA, TMP, OA))
    e("v_mov_b32 v%d, v%d" % (OAX, OA))
    e("s_mov_b32 s52, 0xff00ff00")
    e("s_mov_b32 s53, 0xff00ff00")
    e("s_mov_b64 exec, s[52:53]")
    e("v_add_u32 v%d, %d, v%d" % (OAX, -8192 + 256, OAX))
    e("s_mov_b64 exec, -1")
    if NB == 256:
        e("s_mul_i32 s5, s16, 625")
        e("s_add_u32 s6, s5, %d" % (625 + 15))
        e("s_add_u32 s5, s5, 15")
        e("s_lshr_b32 s5, s5, 4")
        e("s_lshr_b32 s6, s6, 4")
        e("s_sub_u32 s7, s6, s5")
    else:
        e("s_mul_i32 s5, s16, 40")
        e("s_mov_b32 s7, 40")
    e("s_cmp_eq_u32 s7, 40")
    e("s_cselect_b32 s54, -1, 0x7f7f7f7f")
    e("s_and_b32 s52, s54, 0x00ff00ff")
    e("s_mov_b32 s53, s52")
    e("s_mov_b32 s55, s54")
    e("s_lshl_b32 s5, s5, 10")
    e("s_lshl_b32 s6, s17, 6")
    e("s_add_u32 s5, s5, s6")
    e("s_sub_u32 s5, s5, 256")
    e("s_add_u32 s20, s12, s5")
    e("s_addc_u32 s21, s13, 0")
    e("s_add_u32 s22, s20, 16384")
    e("s_addc_u32 s23, s21, 0")
    e("s_add_u32 s24, s20, 32768")
    e("s_addc_u32 s25, s21, 0")
    stamp()
    e("s_barrier")
    stamp()
    jobs = [("g", tau, tau * 8192, 0, 8, 0) for tau in range(3)]
    for tau in range(2):
        for i in range(3): jobs.append(("o", tau, 24576 + (2 * i + tau) * 12288, 8, 12, i + 1))
    jobs.append(("x", 2, 24576 + 6 * 12288, 8, 12, 1))
    jobs.append(("y", 2, 24576 + 7 * 12288, 8, 12, 3))
    GA = [80, 88, 96]
    AC = [104, 112]; RING = 120; NR = 8; AHEAD = opt("ahead", 6)
    PK = [152, 156]
    def acc_of(jn): return GA[jn] if jn < 3 else AC[jn & 1]
    seq = []; jstart = []
    for jn, (kind, tau, off, k0, nk, part) in enumerate(jobs):
        jstart.append(len(seq))
        for ks in range(nk): seq.append((jn, k0 + ks, off + ks * 1024, ks))
    jstart.append(len(seq))
    nl = [0]; rdq = {}
    def rd(n):
        jn, wk, off, ks = seq[n]
        hi = off >= 65536
        r = RING + 4 * (n % NR)
        e("ds_read_b128 v[%d:%d], v%d offset:%d" % (r, r + 3, RA[(2 if hi else 0) + (ks & 1)], off - (65536 if hi else 0)))
        rdq[n] = nl[0]; nl[0] += 1
    def fin(jn):
        kind, tau, off, k0, nk, part = jobs[jn]
        a = acc_of(jn); g = GA[tau]; p = PK[jn & 1]; c = []
        sb = "s[%d:%d]" % (20 + 2 * tau, 21 + 2 * tau)
        if kind != "g":
            c += ["v_mul_f32 v%d, v%d, v%d" % (a + r, a + r, g + r) for r in range(8)]
        c += ["v_cvt_pk_bf16_f32 v%d, v%d, v%d" % (p + r, a + 2 * r, a + 2 * r + 1) for r in range(4)]
        stt = "global_store_dwordx4 v%d, v[%d:%d], %s offset:%d%s" % (OAX if kind == "x" else OA, p, p + 3, sb, 256 * part, SFL)
        if tau == 2:
            c.append(["s_mov_b64 exec, %s" % ("s[54:55]" if kind == "x" else "s[52:53]"), stt, "s_mov_b64 exec, -1"])
        else:
            c.append(stt)
        return c
    def gate(tau):
        g = GA[tau]; c = []
        c += ["v_mul_f32 v%d, 0xbfb8aa3b, v%d" % (g + r, g + r) for r in range(8)]
        c += ["v_exp_f32 v%d, v%d" % (g + r, g + r) for r in range(8)]
        c += ["v_add_f32 v%d, 1.0, v%d" % (g + r, g + r) for r in range(8)]
        c += ["v_rcp_f32 v%d, v%d" % (g + r, g + r) for r in range(8)]
        if tau == 2:
            c += ["v_mov_b32_dpp v%d, v%d row_shr:8 row_mask:0xf bank_mask:0xc" % (g + r, g + r) for r in range(8)]
        return c
    INF = 10 ** 6
    side = []
    for f_ in range(20, 20 if WLM else 40):
        it = []
        if f_ % 8 == 0: it += ["s_add_u32 s46, s46, 8192", "s_addc_u32 s47, s47, 0"]
        it.append("global_load_dwordx4 v[%d:%d], v%d, s[46:47] offset:%d" % (wreg(f_), wreg(f_) + 3, LC, (f_ % 8) * 1024 - 4096))
        side.append((0, jstart[3] - 8, it))
    ready = lambda jn: jstart[jn + 1] + 2
    def add(items, lo, dl): side.extend((lo, dl, x) for x in items)
    add(fin(0), ready(0), INF); add(gate(0), ready(0), INF)
    add(fin(1), ready(1), INF); add(fin(2), ready(2), INF)
    g1 = gate(1); g2 = gate(2)
    for jn in range(3, len(jobs)):
        dl = jstart[jn + 2] if jn + 2 < len(jobs) else INF
        add(fin(jn), ready(jn), dl)
        if jn in (3, 4): add(g1[16 * (jn - 3):16 * (jn - 2)], 0, INF)
        if jn in (5, 6, 7): add(g2[14 * (jn - 5):14 * (jn - 4)], 0, INF)
    if opt("noside", 0): side = [x for x in side if x[0] >= ready(len(jobs) - 1)]
    vm = []
    def emit(x):
        cost = 0
        for y in (x if isinstance(x, list) else [x]):
            e(y); cost += 2 if y.startswith(("v_exp", "v_rcp")) else 1
            if y.startswith("global_"): vm.append(y)
        return cost
    def wait_frag(f_):
        if WLM: n = 39 - f_ + len(vm)
        elif f_ < 20: n = 19 - f_ + len(vm)
        else:
            pos = [k for k, y in enumerate(vm) if y.startswith("global_load")][f_ - 20]
            n = len(vm) - 1 - pos
        e("s_waitcnt vmcnt(%d)" % n)
    for n in range(AHEAD): rd(n)
    wdone = -1; credit = 0.0
    BUD = float(opt("bud", 3.0))
    for n in range(len(seq)):
        jn, wk, off, ks = seq[n]
        while any(dl <= n for _, dl, _ in side): emit(side.pop(0)[2])
        if wk > wdone:
            wait_frag(2 * wk + 3); wdone = wk + 1
        if n % 2 == 0:
            e("s_waitcnt lgkmcnt(%d)" % (nl[0] - 1 - rdq[min(n + 1, len(seq) - 1)]))
        r = RING + 4 * (n % NR)
        credit = min(credit + BUD, BUD + 1)
        for T in range(2):
            a = acc_of(jn) + 4 * T; w = wreg(2 * wk + T)
            e("v_mfma_f32_16x16x32_bf16 v[%d:%d], v[%d:%d], v[%d:%d], %s" %
              (a, a + 3, w, w + 3, r, r + 3, "0" if ks == 0 else "v[%d:%d]" % (a, a + 3)))
            if T == 0 and n + AHEAD < len(seq): rd(n + AHEAD)
            used = 0
            while side and side[0][0] <= n and credit >= 1 and used < 1 + T:
                c_ = emit(side.pop(0)[2]); credit -= c_; used += c_
    stamp()
    while side and side[0][0] < ready(len(jobs) - 1): emit(side.pop(0)[2])
    e("s_nop 7")
    for _, _, x in side: emit(x)
    lab("L2_fin")
    if DIAG: e("s_waitcnt vmcnt(0)")
    dump_stamps("s[14:15]", "s17", 1 << 20, 140)
    if "enc" in OPT:
        k = int(OPT["enc"])
        if k < 0:
            e("s_mov_b64 exec, -1")
            e("v_mov_b32 v142, %d" % (WS_DBG + 4 * (-k - 1)))
            e("global_load_dword v143, v142, s[14:15]")
            e("s_waitcnt vmcnt(0)")
            e("v_readfirstlane_b32 s44, v143")
        else:
            e("s_mov_b32 s44, s%d" % (64 + 2 * k))
        lab("L2_spin")
        e("s_memrealtime s[46:47]")
        e("s_waitcnt lgkmcnt(0)")
        e("s_sub_u32 s46, s46, s44")
        e("s_cmp_lt_u32 s46, 6000")
        e("s_cbranch_scc1 L2_spin")
    lab("L2_end")
    e("s_endpgm")

header()
k1()
k2()
out.append('.section .rodata,"a"')
kdesc("gstp_bin_kernel", 64, 96 if DIAG else 32)
kdesc("gstp_main_kernel", 256, 96 if DIAG else 64)
open(sys.argv[1], "w").write("\n".join(out) + "\n")
```

```python
import sys
NAME = "gather_scatter__tensor_product_equiv_equiformer__graph"
OPT = dict(a.split('=') for a in sys.argv[2:]) if len(sys.argv) > 2 else {}
def opt(k, d): return type(d)(OPT.get(k, d))

N = 10000; E = 320000
NB = opt("nb", 256)
G = 250; CH = 1280
WS_REC = 0
WS_TAB = 4 << 20
WS_WF = 5 << 20
WS_DBG = 8 << 20
U = 10
DK = 3
OOB = 0x7F000000
NPH = opt("nph", 6)
PHMUL = {5: 0x8312, 6: 0x9d49, 7: 0xb780, 8: 0xd1b7}[NPH]
L_COEF = 0; COEF_STRIDE = 640
L_OFFS = 25728; OFFS_STRIDE = 256
L_WT = 36864
L_F = 37888
L_CNT = L_F; L_ST = L_F + 2048; L_SLOT = L_ST + 2048
L_F0 = L_F; L_F1 = L_F + 3 * 8192
LDS_MAIN = L_F + 122880
R0 = 8 - NPH
DIAG = opt("diag", 0)
FL = {"": "", "sc1": " sc1", "nt": " nt", "sc01": " sc0 sc1"}
SFL = FL[opt("sfl", "sc1")]
KFL = FL[opt("kfl", "sc1")]

out = []
def e(s): out.append("    " + s)
def lab(s): out.append(s + ":")

def header():
    ref = open("cdna_kernels/%s.s.ref" % NAME).read().split("\n")
    for l in ref:
        if l.startswith("; Override"): break
        out.append(l)
    out.append("; @launch grid=(%d,1,1) block=(512,1,1) lds=%d" % (NB, LDS_MAIN))
    out.append('.amdgcn_target "amdgcn-amd-amdhsa--gfx950"')
    out.append(".text")

def kstart(name):
    out.append(".globl %s" % name)
    out.append(".p2align 8")
    out.append(".type %s,@function" % name)
    lab(name)

def kdesc(name, vgpr, sgpr):
    out.append(".p2align 6")
    out.append(".amdhsa_kernel %s" % name)
    out.append("  .amdhsa_next_free_vgpr %d" % vgpr)
    out.append("  .amdhsa_next_free_sgpr %d" % sgpr)
    out.append("  .amdhsa_accum_offset %d" % ((vgpr + 3) // 4 * 4))
    out.append("  .amdhsa_group_segment_fixed_size 0")
    out.append("  .amdhsa_kernarg_size 96")
    out.append("  .amdhsa_user_sgpr_count 2")
    out.append("  .amdhsa_user_sgpr_kernarg_segment_ptr 1")
    out.append("  .amdhsa_system_sgpr_workgroup_id_x 1")
    out.append(".end_amdhsa_kernel")

nstamp = [0]
FINE = opt("fine", 0)
def fstamp():
    if FINE: stamp(True)
def stamp(f=False):
    if not DIAG: return
    if FINE and nstamp[0] >= 12: return
    k = nstamp[0]; nstamp[0] += 1
    e("s_memrealtime s[%d:%d]" % (64 + 2 * k, 65 + 2 * k))
    if k == 0: e("s_memtime s[92:93]")
    if k == opt("ca", 3): e("s_memtime s[88:89]")
    if k == opt("cb", 4): e("s_memtime s[94:95]")
    e("s_waitcnt lgkmcnt(0)")
def dump_stamps(ws, swave, base, vt):
    if not DIAG: return
    e("s_memtime s[90:91]")
    stamp()
    e("s_mov_b64 exec, -1")
    e("v_mov_b32 v%d, 0" % vt)
    e("s_sub_u32 s90, s90, s92")
    e("v_writelane_b32 v%d, s90, 14" % vt)
    e("s_sub_u32 s94, s94, s88")
    e("v_writelane_b32 v%d, s94, 13" % vt)
    for k in range(nstamp[0]):
        e("v_writelane_b32 v%d, s%d, %d" % (vt, 64 + 2 * k, k))
    e("s_lshl_b32 s62, s2, 3")
    e("s_add_u32 s62, s62, %s" % swave)
    e("s_lshl_b32 s62, s62, 6")
    e("s_add_u32 s62, s62, %d" % (WS_DBG + base))
    e("v_mbcnt_lo_u32_b32 v%d, -1, 0" % (vt + 1))
    e("v_lshl_add_u32 v%d, v%d, 2, s62" % (vt + 1, vt + 1))
    e("s_mov_b64 exec, 0xffff")
    e("global_store_dword v%d, v%d, %s" % (vt + 1, vt, ws))
    nstamp[0] = 0

def wave_scan(v, rows_only=False):
    for sh in (1, 2, 4, 8):
        e("s_nop 1")
        e("v_add_u32_dpp %s, %s, %s row_shr:%d row_mask:0xf bank_mask:0xf bound_ctrl:0" % (v, v, v, sh))
    if rows_only: return
    e("s_nop 1")
    e("v_add_u32_dpp %s, %s, %s row_bcast:15 row_mask:0xa bank_mask:0xf" % (v, v, v))
    e("s_nop 1")
    e("v_add_u32_dpp %s, %s, %s row_bcast:31 row_mask:0xc bank_mask:0xf" % (v, v, v))

def unpack(dst, idx, base):
    r = base + idx // 2
    if idx % 2 == 0: e("v_lshlrev_b32 %s, 16, v%d" % (dst, r))
    else: e("v_and_b32 %s, 0xffff0000, v%d" % (dst, r))

ACC = 0; LB = [160, 192]; BT = [224, 228]; AF = [232, 236]; VO = 240
VCA = 248; RB = 249; REM = 250; PEND = 251; TID = 252; VOA = 253; PSEL = 254
SM = 28
def rec(i): return 160 + 4 * i
def kad(i): return 200 + i
T0 = 210
MSK = 20
def msk(i): return "s[%d:%d]" % (MSK + 2 * i, MSK + 2 * i + 1)

def lds_init():
    z = 224; a = 232
    for k in range(7): e("v_mov_b32 v%d, 0" % (z + k + (1 if k == 6 else 0)))
    e("v_mov_b32 v%d, -1" % (z + 6))
    e("v_and_b32 v%d, 63, v%d" % (a, TID))
    e("s_lshl_b32 s4, s17, 11")
    e("s_add_u32 s4, s4, %d" % L_SLOT)
    e("v_lshl_add_u32 v%d, v%d, 4, s4" % (a, a))
    e("v_add_u32 v%d, 32768, v%d" % (a + 3, a))
    e("v_lshlrev_b32 v%d, 2, v%d" % (a + 1, TID))
    for k in range(5):
        e("ds_write_b128 v%d, v[%d:%d] offset:%d" % (a if k < 2 else a + 3, z + 4, z + 7, 16384 * (k if k < 2 else k - 2)))
    e("ds_write_b32 v%d, v%d offset:%d" % (a + 1, z, L_CNT))

def k2():
    kstart(NAME + "_kernel")
    e("s_cmp_ge_u32 s2, %d" % NB)
    e("s_cbranch_scc1 L2_end")
    e("s_load_dwordx16 s[20:35], s[0:1], 0")
    e("s_load_dwordx2 s[12:13], s[0:1], 72")
    e("s_load_dwordx4 s[36:39], s[0:1], 80")
    stamp()
    t = T0
    P_CNT = 0; P_BASE = 1024; P_STG = 2048; L_NON = L_WT + 64
    e("v_mov_b32 v%d, v0" % TID)
    e("v_lshrrev_b32 v%d, 6, v0" % t)
    e("s_and_b32 s4, s2, 7")
    e("s_lshr_b32 s5, s2, 3")
    if NB == 256:
        e("s_lshl_b32 s16, s4, 5")
        e("s_add_u32 s16, s16, s5")
    else:
        e("s_mul_i32 s16, s4, 31")
        e("s_min_u32 s4, s4, 2")
        e("s_add_u32 s16, s16, s4")
        e("s_add_u32 s16, s16, s5")
    e("v_readfirstlane_b32 s17, v%d" % t)
    e("s_mov_b32 s18, 0x05040100")
    e("s_mov_b32 s19, 0x07060302")
    e("s_cmp_ge_u32 s17, 5")
    e("s_cbranch_scc1 L1_help")
    e("s_cmp_ge_u32 s2, %d" % G)
    e("s_cbranch_scc1 L1_idle")
    e("s_mul_i32 s4, s2, %d" % (CH * 4))
    e("s_mul_i32 s5, s2, %d" % (CH * 6))
    e("s_mul_i32 s6, s2, %d" % (CH * 2))
    e("v_lshl_add_u32 v1, v0, 4, s4")
    e("v_mul_u32_u24 v2, 24, v0")
    e("v_add_u32 v2, s5, v2")
    e("v_lshl_add_u32 v3, v0, 3, s6")
    e("v_lshlrev_b32 v4, 2, v0")
    e("v_mov_b32 v5, 0")
    e("ds_write_b32 v4, v5 offset:%d" % P_CNT)
    e("v_and_b32 v4, 63, v0")
    e("v_lshlrev_b32 v4, 4, v4")
    e("v_mov_b32 v66, %d" % (2 * ((1 << 26) // 5)))
    e("s_mov_b32 s7, 0x%x" % PHMUL)
    e("s_waitcnt lgkmcnt(0)")
    e("global_load_dwordx4 v[8:11], v1, s[28:29]")
    e("global_load_dwordx4 v[12:15], v1, s[26:27]")
    e("global_load_dwordx4 v[16:19], v2, s[22:23]")
    e("global_load_dwordx2 v[20:21], v2, s[22:23] offset:16")
    e("global_load_dwordx2 v[22:23], v3, s[24:25]")
    e("v_mov_b32 v5, 1")
    e("s_barrier")
    lds_init()
    e("s_waitcnt vmcnt(4)")
    for k in range(4):
        if NB == 256:
            e("v_mul_u32_u24 v%d, 429497, v%d" % (24 + k, 8 + k))
            e("v_lshrrev_b32 v%d, 24, v%d" % (24 + k, 24 + k))
        else:
            e("v_mul_u32_u24 v%d, 0xcccd, v%d" % (24 + k, 8 + k))
            e("v_lshrrev_b32 v%d, 21, v%d" % (24 + k, 24 + k))
        e("v_lshlrev_b32 v%d, 2, v%d" % (68 + k, 24 + k))
        e("ds_add_rtn_u32 v%d, v%d, v5 offset:%d" % (28 + k, 68 + k, P_CNT))
    for k in range(4):
        if NB == 256:
            e("v_mul_u32_u24 v6, 625, v%d" % (24 + k))
            e("v_add_u32 v6, 15, v6")
            e("v_lshrrev_b32 v6, 4, v6")
        else:
            e("v_mul_u32_u24 v6, 40, v%d" % (24 + k))
        e("v_sub_u32 v%d, v%d, v6" % (8 + k, 8 + k))
    def keyw(k):
        e("v_mad_u32_u24 v6, v%d, s7, v66" % (12 + k))
        e("v_mul_u32_u24 v7, %d, v%d" % ((1 << 26) // 5 + 1, 8 + k))
        e("v_and_b32 v7, 0x3ffffff, v7")
        e("v_sub_u32 v6, v6, v7")
        e("v_ashrrev_i32 v6, 26, v6")
        e("v_med3_i32 v6, v6, 0, %d" % (NPH - 1))
        e("v_lshl_add_u32 v6, v%d, 3, v6" % (8 + k))
        e("v_lshl_add_u32 v6, v%d, 10, v6" % (12 + k))
        e("v_lshlrev_b32 v%d, 2, v6" % (34 + 4 * k))
    def coefs(k):
        unpack("v48", k, 22)
        for j in range(3):
            unpack("v%d" % (49 + j), 3 * k + j, 16)
        for j in range(3):
            e("v_mul_f32 v%d, v48, v%d" % (49 + j, 49 + j))
        e("v_cvt_pk_bf16_f32 v%d, v48, v49" % (32 + 4 * k))
        e("v_cvt_pk_bf16_f32 v%d, v50, v51" % (33 + 4 * k))
    e("s_waitcnt vmcnt(3)")
    keyw(0); keyw(1)
    e("s_waitcnt lgkmcnt(0)")
    e("s_barrier")
    e("ds_read_b128 v[52:55], v4 offset:%d" % P_CNT)
    keyw(2)
    e("s_waitcnt lgkmcnt(0)")
    e("v_add_u32 v57, v52, v53")
    e("v_add_u32 v58, v57, v54")
    e("v_add_u32 v59, v58, v55")
    e("v_mov_b32 v60, v59")
    e("s_waitcnt vmcnt(0)")
    save = out[:]; del out[:]
    keyw(3); coefs(0)
    fill = out[:]; out[:] = save
    for sh in ("row_shr:1 row_mask:0xf bank_mask:0xf bound_ctrl:0", "row_shr:2 row_mask:0xf bank_mask:0xf bound_ctrl:0",
               "row_shr:4 row_mask:0xf bank_mask:0xf bound_ctrl:0", "row_shr:8 row_mask:0xf bank_mask:0xf bound_ctrl:0",
               "row_bcast:15 row_mask:0xa bank_mask:0xf", "row_bcast:31 row_mask:0xc bank_mask:0xf"):
        out.append(fill.pop(0)); out.append(fill.pop(0))
        e("v_add_u32_dpp v60, v60, v60 %s" % sh)
    e("v_sub_u32 v60, v60, v59")
    e("v_add_u32 v61, v60, v52")
    e("v_add_u32 v62, v60, v57")
    e("v_add_u32 v63, v60, v58")
    e("ds_write_b128 v4, v[60:63] offset:%d" % P_BASE)
    for k in range(4):
        e("ds_read_b32 v%d, v%d offset:%d" % (24 + k, 68 + k, P_BASE))
    out.extend(fill)
    coefs(1); coefs(2); coefs(3)
    e("s_waitcnt lgkmcnt(0)")
    for k in range(4):
        e("v_add_u32 v%d, v%d, v%d" % (24 + k, 24 + k, 28 + k))
        e("v_mul_u32_u24 v%d, 12, v%d" % (24 + k, 24 + k))
        e("v_add_u32 v%d, %d, v%d" % (24 + k, P_STG, 24 + k))
        e("ds_write2_b32 v%d, v%d, v%d offset0:0 offset1:1" % (24 + k, 32 + 4 * k, 33 + 4 * k))
        e("ds_write_b32 v%d, v%d offset:8" % (24 + k, 34 + 4 * k))
    e("v_lshlrev_b32 v6, 4, v0")
    e("s_mul_i32 s4, s2, %d" % (CH * 12))
    e("s_add_u32 s4, s4, %d" % WS_REC)
    e("v_add_u32 v7, s4, v6")
    e("v_add_u32 v8, 5120, v7")
    e("v_add_u32 v9, 10240, v7")
    e("v_mov_b32 v10, 0")
    e("s_waitcnt lgkmcnt(0)")
    e("s_barrier")
    for k in range(3):
        e("ds_read_b128 v[%d:%d], v6 offset:%d" % (12 + 4 * k, 15 + 4 * k, P_STG + 5120 * k))
    e("ds_read_b64 v[26:27], v10 offset:%d" % L_NON)
    for k in range(3):
        e("s_waitcnt lgkmcnt(%d)" % (3 - k))
        e("global_store_dwordx4 v%d, v[%d:%d], s[38:39] sc1" % (7 + k, 12 + 4 * k, 15 + 4 * k))
    e("s_waitcnt lgkmcnt(0)")
    e("v_lshlrev_b32 v27, 22, v27")
    for k in range(4):
        e("v_lshl_or_b32 v%d, v%d, 11, v%d" % (32 + 2 * k, 52 + k, 60 + k))
        e("v_or_b32 v%d, v27, v%d" % (32 + 2 * k, 32 + 2 * k))
        e("v_mov_b32 v%d, v26" % (33 + 2 * k))
    e("s_lshl_b32 s4, s2, 11")
    e("s_add_u32 s4, s4, %d" % WS_TAB)
    e("v_lshl_add_u32 v7, v4, 1, s4")
    e("s_cmp_lg_u32 s17, 0")
    e("s_waitcnt vmcnt(0)")
    e("s_barrier")
    e("s_cbranch_scc1 L1_done")
    e("global_store_dwordx4 v7, v[32:35], s[38:39] sc1")
    e("global_store_dwordx4 v7, v[36:39], s[38:39] offset:16 sc1")
    e("s_branch L1_done")
    lab("L1_idle")
    lds_init()
    e("s_waitcnt lgkmcnt(0)")
    for _ in range(4): e("s_barrier")
    e("s_branch L1_done")
    lab("L1_help")
    e("v_and_b32 v1, 63, v0")
    e("s_cmp_eq_u32 s17, 6")
    e("s_cbranch_scc1 L1_pref")
    e("s_cmp_eq_u32 s17, 7")
    e("s_cbranch_scc1 L1_non")
    e("s_cmp_ge_u32 s2, 160")
    e("s_cbranch_scc1 L1_idle")
    e("s_mul_i32 s4, s2, 1639")
    e("s_lshr_b32 s4, s4, 16")
    e("s_mul_i32 s5, s4, 40")
    e("s_sub_u32 s5, s2, s5")
    e("s_and_b32 s6, s5, 1")
    e("s_lshr_b32 s5, s5, 1")
    e("s_waitcnt lgkmcnt(0)")
    e("s_cmp_lt_u32 s5, 8")
    e("s_cselect_b64 s[40:41], s[32:33], s[34:35]")
    e("s_cselect_b32 s7, 0, 8")
    e("s_sub_u32 s7, s5, s7")
    e("s_lshl_b32 s7, s7, 13")
    e("s_lshl_b32 s4, s4, 6")
    e("s_add_u32 s7, s7, s4")
    e("s_lshl_b32 s6, s6, 3")
    e("s_add_u32 s7, s7, s6")
    e("v_lshrrev_b32 v2, 4, v1")
    e("v_bfe_u32 v3, v1, 2, 2")
    e("v_and_b32 v6, 3, v1")
    e("v_lshlrev_b32 v4, 11, v2")
    e("v_lshl_add_u32 v4, v3, 4, v4")
    e("v_lshl_add_u32 v4, v6, 1, v4")
    e("v_add_u32 v4, s7, v4")
    e("s_lshl_b32 s5, s5, 6")
    e("v_lshl_add_u32 v5, v2, 4, s5")
    e("global_load_dwordx4 v[16:19], v5, s[30:31]")
    for i in range(8):
        e("global_load_ushort v%d, v4, s[40:41] offset:%d" % (8 + i, 256 * i))
    e("s_barrier")
    lds_init()
    e("s_waitcnt lgkmcnt(0)")
    e("s_barrier")
    e("s_waitcnt vmcnt(0)")
    for i in range(8):
        e("v_lshlrev_b32 v%d, 16, v%d" % (8 + i, 8 + i))
        unpack("v20", i, 16)
        e("v_mul_f32 v%d, v20, v%d" % (8 + i, 8 + i))
    for i in range(4):
        e("v_cvt_pk_bf16_f32 v%d, v%d, v%d" % (24 + i, 8 + 2 * i, 9 + 2 * i))
    e("s_lshl_b32 s4, s2, 10")
    e("s_add_u32 s4, s4, %d" % WS_WF)
    e("v_lshl_add_u32 v7, v1, 4, s4")
    e("global_store_dwordx4 v7, v[24:27], s[38:39] sc1")
    e("s_barrier")
    e("s_waitcnt vmcnt(0)")
    e("s_barrier")
    e("s_branch L1_done")
    lab("L1_pref")
    e("s_min_u32 s4, s2, %d" % (G - 1))
    e("s_mul_i32 s4, s4, 40960")
    e("v_lshl_add_u32 v2, v1, 7, s4")
    lds_init()
    e("s_waitcnt lgkmcnt(0)")
    e("s_barrier")
    if opt("k1pf", 1):
        for k in range(5):
            e("global_load_dword v3, v2, s[20:21]")
            if k < 4: e("v_add_u32 v2, 8192, v2")
    for _ in range(3): e("s_barrier")
    e("s_branch L1_done")
    lab("L1_non")
    e("v_mov_b32 v2, 0")
    e("s_cmp_lg_u32 s2, 0")
    e("s_cbranch_scc1 L1_non1")
    e("s_memrealtime s[4:5]")
    e("s_waitcnt lgkmcnt(0)")
    e("s_and_b32 s5, s5, 0x3ff")
    e("s_bitset1_b32 s5, 31")
    e("v_mov_b32 v4, s4")
    e("v_mov_b32 v5, s5")
    e("s_mov_b64 exec, 1")
    e("global_store_dwordx2 v2, v[4:5], s[36:37] sc1")
    e("s_mov_b64 exec, -1")
    lab("L1_non1")
    lds_init()
    e("s_waitcnt lgkmcnt(0)")
    e("s_barrier")
    e("s_barrier")
    e("s_mov_b32 s6, %d" % (1 << 20))
    lab("L1_npoll")
    e("global_load_dwordx2 v[4:5], v2, s[36:37] sc1")
    e("s_waitcnt vmcnt(0)")
    e("v_readfirstlane_b32 s5, v5")
    e("s_sub_u32 s6, s6, 1")
    e("s_cbranch_scc1 L1_non2")
    e("s_cmp_eq_u32 s5, 0")
    e("s_cbranch_scc1 L1_npoll")
    lab("L1_non2")
    e("v_and_b32 v5, 0x3ff, v5")
    e("ds_write_b64 v2, v[4:5] offset:%d" % L_NON)
    e("s_waitcnt lgkmcnt(0)")
    e("s_barrier")
    e("s_barrier")
    lab("L1_done")
    stamp()
    e("s_mov_b64 s[8:9], s[20:21]")
    e("s_mov_b64 s[14:15], s[38:39]")
    e("v_mov_b32 v%d, 0" % t)
    e("ds_read_b64 v[%d:%d], v%d offset:%d" % (t + 8, t + 9, t, L_NON))
    e("v_lshrrev_b32 v%d, 1, v%d" % (t + 1, TID))
    e("v_min_u32 v%d, %d, v%d" % (t + 1, G - 1, t + 1))
    e("s_lshl_b32 s4, s16, 3")
    e("s_add_u32 s4, s4, %d" % WS_TAB)
    e("v_lshl_add_u32 v%d, v%d, 11, s4" % (t + 2, t + 1))
    e("global_load_dwordx2 v[%d:%d], v%d, s[14:15] sc1" % (t + 6, t + 7, t + 2))
    par = t + 4
    e("v_and_b32 v%d, 1, v%d" % (par, TID))
    e("v_mul_u32_u24 v%d, %d, v%d" % (t + 1, CH, t + 1))
    e("v_cmp_gt_u32 vcc, %d, v%d" % (2 * G, TID))
    e("s_mov_b64 s[50:51], vcc")
    e("s_or_b32 s9, s9, 0x00100000")
    e("s_mov_b32 s10, %d" % (N * 1024))
    e("s_mov_b32 s11, 0x00800000")
    e("s_mov_b32 s44, 0")
    e("s_mov_b32 s45, 0")
    e("s_mov_b32 s6, %d" % (1 << 20))
    NZ = 0
    e("s_waitcnt lgkmcnt(0)")
    lab("L2_poll")
    e("s_waitcnt vmcnt(0)")
    e("v_lshrrev_b32 v%d, 22, v%d" % (t + 3, t + 6))
    e("v_cmp_ne_u32 vcc, v%d, v%d" % (t + 7, t + 8))
    e("v_cmp_ne_u32 s[4:5], v%d, v%d" % (t + 3, t + 9))
    e("s_or_b64 vcc, vcc, s[4:5]")
    e("s_cbranch_scc0 L2_got")
    e("global_load_dwordx2 v[%d:%d], v%d, s[14:15] sc1" % (t + 6, t + 7, t + 2))
    e("s_sub_u32 s6, s6, 1")
    e("s_cbranch_scc0 L2_poll")
    e("s_waitcnt vmcnt(0)")
    e("v_mov_b32 v%d, 0" % (t + 6))
    lab("L2_got")
    e("s_setprio 3")
    stamp()
    e("v_and_b32 v%d, 0x7ff, v%d" % (t + 2, t + 6))
    e("v_bfe_u32 v%d, v%d, 11, 11" % (REM, t + 6))
    e("v_add3_u32 v%d, v%d, v%d, v%d" % (t + 1, t + 1, t + 2, par))
    e("v_cndmask_b32 v%d, 0, v%d, s[50:51]" % (REM, REM))
    e("v_mul_u32_u24 v%d, 12, v%d" % (RB, t + 1))
    e("v_sub_u32 v%d, v%d, v%d" % (REM, REM, par))
    NS = 4
    lab("L2_batch")
    for i in range(U):
        e("v_cmpx_lt_i32 %s, %d, v%d" % (msk(i), 2 * i, REM))
        if i >= NS:
            e("s_mov_b32 s42, %d" % i)
            e("s_cbranch_execz L2_ld")
        e("global_load_dwordx3 v[%d:%d], v%d, s[14:15] offset:%d sc1" % (rec(i), rec(i) + 2, RB, 24 * i))
    e("s_mov_b32 s42, %d" % U)
    lab("L2_ld")
    e("s_mov_b64 exec, -1")
    fstamp()
    e("s_or_b32 s4, s44, s45")
    e("s_cbranch_scc1 L2_noz")
    e("s_nop 1")
    for r in range(16 * NZ, 160, 16):
        e("v_mfma_f32_32x32x16_bf16 v[%d:%d], v[224:227], v[224:227], 0" % (r, r + 15))
    lab("L2_noz")
    def stage(name, body):
        for i in range(U):
            if i >= NS:
                e("s_cmp_le_u32 s42, %d" % i)
                e("s_cbranch_scc1 L2_%s" % name)
            e("s_mov_b64 exec, %s" % msk(i))
            body(i)
        lab("L2_%s" % name)
    tab = {(0, 0): 0, (1, 1): 1, (1, 2): 2, (1, 3): 3,
           (4, 0): 1, (5, 1): 0, (6, 3): 2, (7, 2): 3,
           (8, 0): 2, (9, 2): 0, (10, 1): 3, (11, 3): 1,
           (12, 0): 3, (13, 3): 0, (14, 2): 1, (15, 1): 2}
    e("v_mov_b32 v%d, 64" % PSEL)
    for p_ in range(4):
        m_ = 0
        for (m, q), v in tab.items():
            if v == p_: m_ |= 1 << (16 * q + m)
        e("s_mov_b32 exec_lo, 0x%x" % (m_ & 0xffffffff))
        e("s_mov_b32 exec_hi, 0x%x" % (m_ >> 32))
        e("v_mov_b32 v%d, %d" % (PSEL, 16 * p_))
    e("s_mov_b64 exec, -1")
    va = 255; vo = 244; vb = 245; vf = 246; D0 = AF[0]
    e("v_and_b32 v%d, 63, v%d" % (vo, TID))
    e("s_mul_i32 s4, s17, %d" % (5 * 2048))
    e("s_add_u32 s4, s4, %d" % L_SLOT)
    e("v_lshl_add_u32 v%d, v%d, 4, s4" % (va, vo))
    e("v_lshlrev_b32 v%d, 2, v%d" % (vo, vo))
    e("v_and_b32 v%d, 28, v%d" % (vb, vo))
    e("s_mul_i32 s48, s17, %d" % (5 * OFFS_STRIDE))
    e("s_mul_i32 s49, s17, %d" % (5 * COEF_STRIDE))
    e("v_add_u32 v%d, s48, v%d" % (vo, vo))
    e("s_lshl_b32 s5, s17, 2")
    e("v_mov_b32 v%d, s5" % vf)
    e("v_cmp_lt_i32 vcc, %d, v%d" % (2 * U, REM))
    e("s_cmp_lg_u64 vcc, 0")
    e("s_cselect_b32 s43, 2, 0")
    one = t + 1
    e("v_mov_b32 v%d, 1" % one)
    e("v_and_b32 v%d, 63, v%d" % (t, TID))
    e("v_lshlrev_b32 v%d, 5, v%d" % (t, t))
    e("v_cmp_gt_u32 vcc, %d, v%d" % (40 * 32, t))
    e("s_mov_b64 s[46:47], vcc")
    e("v_mov_b32 v%d, 0" % PEND)
    e("s_waitcnt lgkmcnt(0)")
    e("s_barrier")
    fstamp()
    e("s_waitcnt vmcnt(0)")
    fstamp()
    def b_at(i):
        e("v_and_b32 v%d, 0xffc, v%d" % (kad(i), rec(i) + 2))
        e("ds_add_rtn_u32 v%d, v%d, v%d offset:%d" % (rec(i) + 3, kad(i), one, L_CNT))
    stage("at", b_at)
    e("s_mov_b64 exec, s[46:47]")
    e("s_waitcnt lgkmcnt(0)")
    e("s_barrier")
    stamp()
    cc = 212
    e("ds_read_b128 v[%d:%d], v%d offset:%d" % (cc, cc + 3, t, L_CNT))
    e("ds_read_b128 v[%d:%d], v%d offset:%d" % (cc + 4, cc + 7, t, L_CNT + 16))
    lim = 220; tmp = 221; en = 222; nb_ = 223
    f = 224; fo = 232
    e("s_waitcnt lgkmcnt(0)")
    e("v_add3_u32 v%d, v%d, v%d, v%d" % (lim, cc, cc + 1, cc + 2))
    k = 3
    while k < NPH:
        if k + 1 < NPH:
            e("v_add3_u32 v%d, v%d, v%d, v%d" % (lim, lim, cc + k, cc + k + 1)); k += 2
        else:
            e("v_add_u32 v%d, v%d, v%d" % (lim, lim, cc + k)); k += 1
    e("v_sub_u32 v%d, 64, v%d" % (lim, lim))
    e("v_max_i32 v%d, 0, v%d" % (lim, lim))
    e("v_and_b32 v%d, -8, v%d" % (tmp, lim))
    e("v_min_u32 v%d, %d, v%d" % (f, 8 * R0, tmp))
    for k in range(1, NPH):
        e("v_add_u32 v%d, v%d, v%d" % (lim, lim, cc + k - 1))
        e("v_add_u32 v%d, v%d, v%d" % (en, f + k - 1, cc + k - 1))
        e("v_and_b32 v%d, -8, v%d" % (tmp, lim))
        e("v_min_u32 v%d, %d, v%d" % (tmp, 8 * (R0 + k), tmp))
        e("v_max_u32 v%d, v%d, v%d" % (f + k, tmp, en))
    e("ds_write_b128 v%d, v[%d:%d] offset:%d" % (t, f, f + 3, L_ST))
    e("ds_write_b128 v%d, v[%d:%d] offset:%d" % (t, f + 4, f + 7, L_ST + 16))
    st = lambda i: 232 + i
    def b_st(i):
        e("ds_read_b32 v%d, v%d offset:%d" % (st(i), kad(i), L_ST))
        e("v_and_b32 v%d, 0xfe0, v%d" % (kad(i), kad(i)))
        e("v_lshlrev_b32 v%d, 6, v%d" % (kad(i), kad(i)))
    stage("st", b_st)
    e("s_waitcnt lgkmcnt(0)")
    fstamp()
    def b_pl(i):
        e("v_add_u32 v%d, v%d, v%d" % (st(i), st(i), rec(i) + 3))
        e("v_min_u32 v%d, 64, v%d" % (st(i), st(i)))
        e("v_lshl_add_u32 v%d, v%d, 4, v%d" % (kad(i), st(i), kad(i)))
        e("v_lshrrev_b32 v%d, 6, v%d" % (st(i), st(i)))
        e("ds_write_b96 v%d, v[%d:%d] offset:%d" % (kad(i), rec(i), rec(i) + 2, L_SLOT))
        e("v_lshl_or_b32 v%d, v%d, %d, v%d" % (PEND, st(i), i, PEND))
    stage("pl", b_pl)
    e("s_mov_b64 exec, -1")
    e("v_cmp_ne_u32 vcc, 0, v%d" % PEND)
    e("s_cmp_lg_u64 vcc, 0")
    e("s_addc_u32 s4, s43, 0")
    e("v_mov_b32 v%d, s4" % (t + 2))
    e("ds_write_b32 v%d, v%d offset:%d" % (vf, t + 2, L_WT))
    e("s_waitcnt lgkmcnt(0)")
    e("s_barrier")
    stamp()
    for u in range(5):
        e("ds_read_b32 v%d, v%d offset:%d" % (D0 + u, va, 2048 * u + 8))
    e("ds_read_b32 v238, v%d offset:%d" % (vb, L_WT))
    vb = 238
    for r in range(LB[0], LB[0] + 32, 2): e("v_mov_b64 v[%d:%d], 0" % (r, r + 1))
    for u in range(5):
        e("s_waitcnt lgkmcnt(5)")
        e("v_lshrrev_b32 v%d, 12, v%d" % (D0 + u, D0 + u))
        e("v_lshlrev_b32 v%d, 10, v%d" % (D0 + u, D0 + u))
        e("v_cmp_gt_u32 s[%d:%d], s10, v%d" % (SM + 2 * u, SM + 2 * u + 1, D0 + u))
        if opt("small", 0): e("v_and_b32 v%d, 0xffc00, v%d" % (D0 + u, D0 + u))
        e("ds_write_b32 v%d, v%d offset:%d" % (vo, D0 + u, L_OFFS + OFFS_STRIDE * u))
    e("s_or_b64 s[4:5], s[%d:%d], s[%d:%d]" % (SM, SM + 1, SM + 2, SM + 3))
    for u in range(2, 5):
        e("s_or_b64 s[4:5], s[4:5], s[%d:%d]" % (SM + 2 * u, SM + 2 * u + 1))
    e("s_bitset1_b32 s5, 24")
    e("s_ff1_i32_b64 s6, s[4:5]")
    e("s_and_b32 s6, s6, 0x38")
    for u in range(5):
        e("s_lshr_b64 s[%d:%d], s[%d:%d], s6" % (SM + 2 * u, SM + 2 * u + 1, SM + 2 * u, SM + 2 * u + 1))
    e("s_lshl_b32 s7, s6, 2")
    e("s_add_u32 s7, s7, s48")
    e("v_mov_b32 v%d, s7" % VOA)
    e("s_mul_i32 s7, s6, 10")
    e("s_add_u32 s7, s7, s49")
    e("v_add_u32 v%d, s7, v%d" % (VCA, PSEL))
    e("s_lshr_b32 s6, s6, 3")
    e("s_sub_u32 s40, 8, s6")
    e("s_cmp_lt_u32 s17, 4")
    e("s_addc_u32 s41, s6, 0")
    def ooff(g): return L_OFFS + (g % 5) * OFFS_STRIDE + (g // 5) * 32
    def coff(g): return L_COEF + (g % 5) * COEF_STRIDE + (g // 5) * 80
    def rdoff(g, r=VO):
        e("ds_read_b128 v[%d:%d], v%d offset:%d" % (r, r + 3, VOA, ooff(g)))
        e("ds_read_b128 v[%d:%d], v%d offset:%d" % (r + 4, r + 7, VOA, ooff(g) + 16))
    NC = [38, 39]
    lid = [0]
    def count(u, buf):
        m = SM + 2 * u
        e("s_and_b32 s%d, s%d, 0xff" % (NC[buf], m))
        e("s_bcnt1_i32_b32 s%d, s%d" % (NC[buf], NC[buf]))
        e("s_lshr_b64 s[%d:%d], s[%d:%d], 8" % (m, m + 1, m, m + 1))
    def ladder(buf, wait=True, r=VO):
        n = lid[0]; lid[0] += 1
        for i in range(8):
            e("s_cmp_le_u32 s%d, %d" % (NC[buf], i))
            e("s_cbranch_scc1 L2_w%d_%d" % (n, i if wait else 8))
            e("buffer_load_dwordx4 v[%d:%d], v%d, s[8:11], 0 offen" %
              (LB[buf] + 4 * i, LB[buf] + 4 * i + 3, r + i))
        if wait:
            e("s_branch L2_w%d_8" % n)
            for i in range(8):
                lab("L2_w%d_%d" % (n, i))
                e("s_waitcnt vmcnt(%d)" % i)
        lab("L2_w%d_8" % n)
        if wait: e("s_waitcnt vmcnt(8)")
    rdoff(0)
    count(0, 0)
    count(1, 1)
    e("s_waitcnt lgkmcnt(0)")
    fstamp()
    ladder(0, False)
    rdoff(1)
    for r in range(LB[1], LB[1] + 32, 2): e("v_mov_b64 v[%d:%d], 0" % (r, r + 1))
    e("v_and_b32 v239, 1, v%d" % vb)
    e("v_cmp_ne_u32 vcc, 0, v239")
    e("s_or_b32 s44, vcc_lo, vcc_hi")
    e("v_cmp_lt_u32 vcc, 1, v%d" % vb)
    e("s_or_b32 s45, vcc_lo, vcc_hi")
    CF = 224
    for u in range(5):
        e("ds_read_b64 v[%d:%d], v%d offset:%d" % (CF + 2 * u, CF + 2 * u + 1, va, 2048 * u))
    sa = 234; sb = 235; kp = 236; sd = 237; wa = 238; rc = 239
    e("v_mov_b32 v%d, s18" % sa)
    e("v_mov_b32 v%d, s19" % sb)
    e("v_bfe_u32 v%d, v%d, 3, 3" % (wa, TID))
    e("v_mul_u32_u24 v%d, 80, v%d" % (wa, wa))
    e("v_bfe_u32 v%d, v%d, 1, 2" % (kp, TID))
    e("v_lshl_add_u32 v%d, v%d, 2, v%d" % (wa, kp, wa))
    e("v_add_u32 v%d, s49, v%d" % (wa, wa))
    e("s_mov_b32 s6, 0xaaaaaaaa")
    e("s_mov_b32 s7, 0xaaaaaaaa")
    e("s_mov_b64 exec, s[6:7]")
    e("v_mov_b32 v%d, 0x01000504" % sa)
    e("v_mov_b32 v%d, 0x03020706" % sb)
    e("v_add_u32 v%d, 32, v%d" % (wa, wa))
    e("s_mov_b64 exec, -1")
    e("s_waitcnt lgkmcnt(5)")
    n1 = lid[0]
    ladder(1, False)
    e("s_waitcnt lgkmcnt(0)")
    for u in range(5):
        lo = CF + 2 * u; hi = lo + 1
        e("v_cndmask_b32 v%d, v%d, v%d, s[6:7]" % (sd, hi, lo))
        e("v_cndmask_b32 v%d, v%d, v%d, s[6:7]" % (kp, lo, hi))
        e("s_nop 0")
        e("v_mov_b32_dpp v%d, v%d quad_perm:[1,0,3,2] row_mask:0xf bank_mask:0xf" % (rc, sd))
        e("v_perm_b32 v%d, v%d, v%d, v%d" % (lo, rc, kp, sa))
        e("v_perm_b32 v%d, v%d, v%d, v%d" % (hi, rc, kp, sb))
        e("ds_write2_b32 v%d, v%d, v%d offset0:0 offset1:4" % (wa, lo, hi))
        if u < 4: e("v_add_u32 v%d, %d, v%d" % (wa, COEF_STRIDE, wa))
    e("v_and_b32 v%d, 63, v%d" % (rc, TID))
    e("v_mul_u32_u24 v%d, 80, v%d" % (rc, rc))
    e("v_add_u32 v%d, s49, v%d" % (rc, rc))
    e("s_waitcnt lgkmcnt(0)")
    for r in range(BT[0], BT[0] + 8, 2): e("v_mov_b64 v[%d:%d], 0" % (r, r + 1))
    e("s_mov_b64 exec, s[46:47]")
    e("ds_write_b128 v%d, v[%d:%d] offset:%d" % (rc, BT[0], BT[0] + 3, L_COEF + 64))
    e("s_mov_b64 exec, -1")
    e("ds_read_b128 v[%d:%d], v%d offset:%d" % (AF[0], AF[0] + 3, VCA, coff(0)))
    e("s_barrier")
    for i in range(8):
        e("s_cmp_le_u32 s%d, %d" % (NC[1], i))
        e("s_cbranch_scc1 L2_f%d" % i)
    e("s_branch L2_f8")
    for i in range(9):
        lab("L2_f%d" % i)
        e("s_waitcnt vmcnt(%d)" % i)
    e("s_waitcnt lgkmcnt(0)")
    fstamp()
    X = opt("x", "")
    VAR = opt("var", 1)
    out.append(".p2align 6")
    lab("L2_sweep")
    for g in range(10):
        u = g % 5; buf = g & 1; L = LB[buf]; A = AF[buf]
        u2 = (g + 2) % 5
        rdoff(g + 2)
        e("ds_read_b128 v[%d:%d], v%d offset:%d" % (AF[buf ^ 1], AF[buf ^ 1] + 3, VCA, coff(g + 1)))
        def body(np_):
            def P(j):
                if "P" in X: return
                d = j >> 1; s = "s19" if j & 1 else "s18"
                for tt in range(np_):
                    e("v_perm_b32 v%d, v%d, v%d, %s" % (BT[j & 1] + tt, L + 4 * (2 * tt + 1) + d, L + 4 * (2 * tt) + d, s))
            def M(j):
                if "M" in X: return
                a = ACC + 32 * u + 4 * j
                if np_ == 2:
                    e("v_mfma_f32_16x16x16_bf16 v[%d:%d], v[%d:%d], v[%d:%d], v[%d:%d]" %
                      (a, a + 3, A, A + 1, BT[j & 1], BT[j & 1] + 1, a, a + 3))
                else:
                    e("v_mfma_f32_16x16x32_bf16 v[%d:%d], v[%d:%d], v[%d:%d], v[%d:%d]" %
                      (a, a + 3, A, A + 3, BT[j & 1], BT[j & 1] + 3, a, a + 3))
            P(0); P(1); M(0)
            for j in range(2, 8):
                P(j); M(j - 1)
            e("s_nop 0")
            M(7)
        if VAR:
            e("s_cmp_gt_u32 s%d, 6" % NC[buf])
            e("s_cbranch_scc1 L2_v4_%d" % g)
            e("s_cmp_gt_u32 s%d, 4" % NC[buf])
            e("s_cbranch_scc1 L2_v3_%d" % g)
            e("s_cmp_eq_u32 s%d, 0" % NC[buf])
            e("s_cbranch_scc1 L2_skip%d" % g)
            body(2)
            e("s_branch L2_skip%d" % g)
            lab("L2_v3_%d" % g)
            body(3)
            e("s_branch L2_skip%d" % g)
            lab("L2_v4_%d" % g)
            body(4)
        else:
            e("s_cmp_eq_u32 s%d, 0" % NC[buf])
            e("s_cbranch_scc1 L2_skip%d" % g)
            body(4)
        lab("L2_skip%d" % g)
        count(u2, buf)
        if g == 4:
            e("s_sub_u32 s40, s40, 1")
        if g == 9:
            e("v_add_u32 v%d, 160, v%d" % (VCA, VCA))
            e("v_add_u32 v%d, 64, v%d" % (VOA, VOA))
            e("s_sub_u32 s40, s40, 1")
        e("s_waitcnt lgkmcnt(0)")
        ladder(buf)
        if g in (4, 9):
            e("s_add_u32 s41, s41, 1")
            e("s_cmp_ge_u32 s41, 4"); e("s_cbranch_scc0 L2_pr%d" % g); e("s_setprio 2")
            e("s_cmp_ge_u32 s41, 6"); e("s_cbranch_scc0 L2_pr%d" % g); e("s_setprio 1")
            e("s_cmp_ge_u32 s41, 8"); e("s_cbranch_scc0 L2_pr%d" % g); e("s_setprio 0")
            lab("L2_pr%d" % g)
            e("s_cmp_lg_u32 s40, 0")
            e("s_cbranch_scc0 L2_swept" if g == 4 else "s_cbranch_scc1 L2_sweep")
    lab("L2_swept")
    e("s_or_b32 s6, s44, s45")
    e("s_cbranch_scc0 L2_epi")
    e("s_barrier")
    lds_init()
    e("s_cmp_lg_u32 s44, 0")
    e("s_cbranch_scc1 L2_pass")
    e("v_add_u32 v%d, %d, v%d" % (RB, 24 * U, RB))
    e("v_add_u32 v%d, %d, v%d" % (REM, -2 * U, REM))
    e("s_branch L2_batch")
    lab("L2_pass")
    for i in range(U):
        e("v_and_b32 v%d, %d, v%d" % (t, 1 << i, PEND))
        e("v_cmp_ne_u32 %s, 0, v%d" % (msk(i), t))
        e("s_mov_b64 exec, %s" % msk(i))
        e("global_load_dwordx3 v[%d:%d], v%d, s[14:15] offset:%d sc1" % (rec(i), rec(i) + 2, RB, 24 * i))
        e("s_mov_b64 exec, -1")
    e("s_mov_b32 s42, %d" % U)
    e("s_branch L2_ld")
    lab("L2_epi")
    stamp()
    e("s_setprio 0")
    LC = 245; lane = 253
    e("v_and_b32 v%d, 63, v%d" % (lane, TID))
    e("v_lshlrev_b32 v%d, 4, v%d" % (LC, lane))
    def wreg(f_): return 160 + 4 * f_ if f_ < 20 else 4 * (f_ - 20)
    e("s_sub_u32 s4, s17, 4")
    e("s_mul_i32 s4, s4, 40960")
    e("s_add_u32 s4, s4, %d" % (WS_WF + 4096))
    e("s_add_u32 s46, s14, s4")
    e("s_addc_u32 s47, s15, 0")
    wl = [0]
    def wload(lo, hi):
        n = wl[0]; wl[0] += 1
        e("s_cmp_lt_u32 s17, 4")
        e("s_cbranch_scc1 L2_nw%d" % n)
        for f_ in range(lo, hi):
            if f_ and f_ % 8 == 0:
                e("s_add_u32 s46, s46, 8192")
                e("s_addc_u32 s47, s47, 0")
            e("global_load_dwordx4 v[%d:%d], v%d, s[46:47] offset:%d sc1" % (wreg(f_), wreg(f_) + 3, LC, (f_ % 8) * 1024 - 4096))
        lab("L2_nw%d" % n)
    WLM = opt('wl', 1)
    wload(0, 8 if WLM else 4)
    LA = 240; TS = 241; LBB = 242; SG = 243; SG2 = 244; ADR = 246; TMP = 247
    e("v_and_b32 v%d, 3, v%d" % (SG, lane))
    e("v_bfe_u32 v%d, v%d, 2, 2" % (ADR, lane))
    e("v_lshlrev_b32 v%d, 8, v%d" % (LA, SG))
    e("v_lshl_add_u32 v%d, v%d, 10, v%d" % (LA, ADR, LA))
    e("v_and_b32 v%d, 1, v%d" % (ADR, ADR))
    e("v_mul_u32_u24 v%d, 12, v%d" % (ADR, ADR))
    e("v_or_b32 v%d, v%d, v%d" % (SG, SG, ADR))
    e("v_lshlrev_b32 v%d, 4, v%d" % (SG, SG))
    e("v_mov_b32 v%d, v%d" % (SG2, SG))
    e("v_add_u32 v%d, %d, v%d" % (LBB, L_F0 + 16384, LA))
    e("v_mov_b32 v%d, 8192" % TS)
    e("v_mov_b32 v%d, v%d" % (TMP, LA))
    e("v_add_u32 v%d, %d, v%d" % (LA, L_F0, LA))
    for gp in range(1, 4):
        lo = 0xffff0000 if gp == 1 else 0
        hi = {1: 0, 2: 0x0000ffff, 3: 0xffff0000}[gp]
        e("s_mov_b32 exec_lo, 0x%x" % lo)
        e("s_mov_b32 exec_hi, 0x%x" % hi)
        e("v_add_u32 v%d, %d, v%d" % (LA, L_F1 + (gp - 1) * 24576, TMP))
        e("v_add_u32 v%d, %d, v%d" % (LBB, L_F1 + (7 if gp == 3 else 6) * 12288, TMP))
        e("v_mov_b32 v%d, 12288" % TS)
        if gp == 2: e("v_xor_b32 v%d, 128, v%d" % (SG2, SG2))
    e("s_mov_b64 exec, -1")
    e("s_mul_i32 s4, s17, 5")
    e("s_mov_b32 s48, 0xffff0000")
    e("s_mov_b32 s49, -1")
    TA0 = 248; TA1 = 252
    after = {0: (8, 14), 1: (14, 20), 2: (20, 28), 3: (28, 36), 4: (36, 40)} if WLM else {0: (4, 8), 1: (8, 12), 2: (12, 16), 3: (16, 20)}
    for u in range(5):
        A = ACC + 32 * u
        e("s_lshr_b32 s5, s4, 4")
        e("s_and_b32 s6, s4, 15")
        e("s_lshl_b32 s6, s6, 4")
        e("s_cmp_lt_u32 s4, 32")
        e("s_cselect_b64 s[50:51], -1, 0")
        e("v_mad_u32_u24 v%d, v%d, s5, v%d" % (ADR, TS, LA))
        e("v_cndmask_b32 v%d, v%d, v%d, s[50:51]" % (ADR, LBB, ADR))
        e("v_cndmask_b32 v%d, v%d, v%d, s[50:51]" % (TMP, SG2, SG))
        e("v_xor_b32 v%d, s6, v%d" % (TMP, TMP))
        e("v_add_u32 v%d, v%d, v%d" % (ADR, ADR, TMP))
        for dd in range(4):
            e("v_cvt_pk_bf16_f32 v%d, v%d, v%d" % (TA0 + dd, A + 8 * dd, A + 8 * dd + 4))
        e("ds_write_b128 v%d, v[%d:%d]" % (ADR, TA0, TA0 + 3))
        for dd in range(4):
            e("v_cvt_pk_bf16_f32 v%d, v%d, v%d" % (TA1 + dd, A + 8 * dd + 1, A + 8 * dd + 5))
        e("ds_write_b128 v%d, v[%d:%d] offset:4096" % (ADR, TA1, TA1 + 3))
        for j in range(8):
            e("v_sub_f32 v%d, v%d, v%d" % (A + 4 * j + 2, A + 4 * j + 2, A + 4 * j + 3))
        for dd in range(4):
            e("v_cvt_pk_bf16_f32 v%d, v%d, v%d" % (A + dd, A + 8 * dd + 2, A + 8 * dd + 6))
        e("s_mov_b64 exec, s[48:49]")
        e("ds_write_b128 v%d, v[%d:%d] offset:8192" % (ADR, A, A + 3))
        e("s_mov_b64 exec, -1")
        e("s_add_u32 s4, s4, 1")
        if WLM and u >= 2: e("s_waitcnt lgkmcnt(6)")
        if u in after: wload(*after[u])
    e("s_waitcnt lgkmcnt(0)")
    e("s_cmp_lt_u32 s17, 4")
    e("s_cbranch_scc0 L2_gemm")
    stamp()
    e("s_barrier")
    if DIAG:
        e("s_branch L2_fin")
        if not FINE: nstamp[0] -= 1
    else:
        e("s_endpgm")
    lab("L2_gemm")
    RA = [240, 241, 242, 243]
    OA = 244; OAX = 248
    e("v_lshrrev_b32 v%d, 8, v%d" % (TMP, LC))
    e("v_bfe_u32 v%d, v%d, 4, 4" % (ADR, LC))
    e("v_xor_b32 v%d, v%d, v%d" % (RA[0], ADR, TMP))
    e("v_lshlrev_b32 v%d, 4, v%d" % (RA[0], RA[0]))
    e("v_lshl_add_u32 v%d, v%d, 8, v%d" % (RA[0], TMP, RA[0]))
    e("v_xor_b32 v%d, 0xc0, v%d" % (RA[1], RA[0]))
    e("v_add_u32 v%d, %d, v%d" % (RA[2], L_F + 65536, RA[0]))
    e("v_add_u32 v%d, %d, v%d" % (RA[3], L_F + 65536, RA[1]))
    e("v_add_u32 v%d, %d, v%d" % (RA[0], L_F, RA[0]))
    e("v_add_u32 v%d, %d, v%d" % (RA[1], L_F, RA[1]))
    e("v_lshlrev_b32 v%d, 10, v%d" % (OA, ADR))
    e("v_lshl_add_u32 v%d, v%d, 4, v%d" % (OA, TMP, OA))
    e("v_mov_b32 v%d, v%d" % (OAX, OA))
    e("s_mov_b32 s52, 0xff00ff00")
    e("s_mov_b32 s53, 0xff00ff00")
    e("s_mov_b64 exec, s[52:53]")
    e("v_add_u32 v%d, %d, v%d" % (OAX, -8192 + 256, OAX))
    e("s_mov_b64 exec, -1")
    if NB == 256:
        e("s_mul_i32 s5, s16, 625")
        e("s_add_u32 s6, s5, %d" % (625 + 15))
        e("s_add_u32 s5, s5, 15")
        e("s_lshr_b32 s5, s5, 4")
        e("s_lshr_b32 s6, s6, 4")
        e("s_sub_u32 s7, s6, s5")
    else:
        e("s_mul_i32 s5, s16, 40")
        e("s_mov_b32 s7, 40")
    e("s_cmp_eq_u32 s7, 40")
    e("s_cselect_b32 s54, -1, 0x7f7f7f7f")
    e("s_and_b32 s52, s54, 0x00ff00ff")
    e("s_mov_b32 s53, s52")
    e("s_mov_b32 s55, s54")
    e("s_lshl_b32 s5, s5, 10")
    e("s_lshl_b32 s6, s17, 6")
    e("s_add_u32 s5, s5, s6")
    e("s_sub_u32 s5, s5, 256")
    e("s_add_u32 s20, s12, s5")
    e("s_addc_u32 s21, s13, 0")
    e("s_add_u32 s22, s20, 16384")
    e("s_addc_u32 s23, s21, 0")
    e("s_add_u32 s24, s20, 32768")
    e("s_addc_u32 s25, s21, 0")
    stamp()
    e("s_barrier")
    stamp()
    jobs = [("g", tau, tau * 8192, 0, 8, 0) for tau in range(3)]
    for tau in range(2):
        for i in range(3): jobs.append(("o", tau, 24576 + (2 * i + tau) * 12288, 8, 12, i + 1))
    jobs.append(("x", 2, 24576 + 6 * 12288, 8, 12, 1))
    jobs.append(("y", 2, 24576 + 7 * 12288, 8, 12, 3))
    GA = [80, 88, 96]
    AC = [104, 112]; RING = 120; NR = 8; AHEAD = opt("ahead", 6)
    PK = [152, 156]
    def acc_of(jn): return GA[jn] if jn < 3 else AC[jn & 1]
    seq = []; jstart = []
    for jn, (kind, tau, off, k0, nk, part) in enumerate(jobs):
        jstart.append(len(seq))
        for ks in range(nk): seq.append((jn, k0 + ks, off + ks * 1024, ks))
    jstart.append(len(seq))
    nl = [0]; rdq = {}
    def rd(n):
        jn, wk, off, ks = seq[n]
        hi = off >= 65536
        r = RING + 4 * (n % NR)
        e("ds_read_b128 v[%d:%d], v%d offset:%d" % (r, r + 3, RA[(2 if hi else 0) + (ks & 1)], off - (65536 if hi else 0)))
        rdq[n] = nl[0]; nl[0] += 1
    def fin(jn):
        kind, tau, off, k0, nk, part = jobs[jn]
        a = acc_of(jn); g = GA[tau]; p = PK[jn & 1]; c = []
        sb = "s[%d:%d]" % (20 + 2 * tau, 21 + 2 * tau)
        if kind != "g":
            c += ["v_mul_f32 v%d, v%d, v%d" % (a + r, a + r, g + r) for r in range(8)]
        c += ["v_cvt_pk_bf16_f32 v%d, v%d, v%d" % (p + r, a + 2 * r, a + 2 * r + 1) for r in range(4)]
        stt = "global_store_dwordx4 v%d, v[%d:%d], %s offset:%d%s" % (OAX if kind == "x" else OA, p, p + 3, sb, 256 * part, SFL)
        if tau == 2:
            c.append(["s_mov_b64 exec, %s" % ("s[54:55]" if kind == "x" else "s[52:53]"), stt, "s_mov_b64 exec, -1"])
        else:
            c.append(stt)
        return c
    def gate(tau):
        g = GA[tau]; c = []
        c += ["v_mul_f32 v%d, 0xbfb8aa3b, v%d" % (g + r, g + r) for r in range(8)]
        c += ["v_exp_f32 v%d, v%d" % (g + r, g + r) for r in range(8)]
        c += ["v_add_f32 v%d, 1.0, v%d" % (g + r, g + r) for r in range(8)]
        c += ["v_rcp_f32 v%d, v%d" % (g + r, g + r) for r in range(8)]
        if tau == 2:
            c += ["v_mov_b32_dpp v%d, v%d row_shr:8 row_mask:0xf bank_mask:0xc" % (g + r, g + r) for r in range(8)]
        return c
    INF = 10 ** 6
    side = []
    for f_ in range(20, 20 if WLM else 40):
        it = []
        if f_ % 8 == 0: it += ["s_add_u32 s46, s46, 8192", "s_addc_u32 s47, s47, 0"]
        it.append("global_load_dwordx4 v[%d:%d], v%d, s[46:47] offset:%d sc1" % (wreg(f_), wreg(f_) + 3, LC, (f_ % 8) * 1024 - 4096))
        side.append((0, jstart[3] - 8, it))
    ready = lambda jn: jstart[jn + 1] + 2
    def add(items, lo, dl): side.extend((lo, dl, x) for x in items)
    add(fin(0), ready(0), INF); add(gate(0), ready(0), INF)
    add(fin(1), ready(1), INF); add(fin(2), ready(2), INF)
    g1 = gate(1); g2 = gate(2)
    for jn in range(3, len(jobs)):
        dl = jstart[jn + 2] if jn + 2 < len(jobs) else INF
        add(fin(jn), ready(jn), dl)
        if jn in (3, 4): add(g1[16 * (jn - 3):16 * (jn - 2)], 0, INF)
        if jn in (5, 6, 7): add(g2[14 * (jn - 5):14 * (jn - 4)], 0, INF)
    if opt("noside", 0): side = [x for x in side if x[0] >= ready(len(jobs) - 1)]
    vm = []
    def emit(x):
        cost = 0
        for y in (x if isinstance(x, list) else [x]):
            e(y); cost += 2 if y.startswith(("v_exp", "v_rcp")) else 1
            if y.startswith("global_"): vm.append(y)
        return cost
    def wait_frag(f_):
        if WLM: n = 39 - f_ + len(vm)
        elif f_ < 20: n = 19 - f_ + len(vm)
        else:
            pos = [k for k, y in enumerate(vm) if y.startswith("global_load")][f_ - 20]
            n = len(vm) - 1 - pos
        e("s_waitcnt vmcnt(%d)" % n)
    for n in range(AHEAD): rd(n)
    wdone = -1; credit = 0.0
    BUD = float(opt("bud", 3.0))
    for n in range(len(seq)):
        jn, wk, off, ks = seq[n]
        while any(dl <= n for _, dl, _ in side): emit(side.pop(0)[2])
        if wk > wdone:
            wait_frag(2 * wk + 3); wdone = wk + 1
        if n % 2 == 0:
            e("s_waitcnt lgkmcnt(%d)" % (nl[0] - 1 - rdq[min(n + 1, len(seq) - 1)]))
        r = RING + 4 * (n % NR)
        credit = min(credit + BUD, BUD + 1)
        for T in range(2):
            a = acc_of(jn) + 4 * T; w = wreg(2 * wk + T)
            e("v_mfma_f32_16x16x32_bf16 v[%d:%d], v[%d:%d], v[%d:%d], %s" %
              (a, a + 3, w, w + 3, r, r + 3, "0" if ks == 0 else "v[%d:%d]" % (a, a + 3)))
            if T == 0 and n + AHEAD < len(seq): rd(n + AHEAD)
            used = 0
            while side and side[0][0] <= n and credit >= 1 and used < 1 + T:
                c_ = emit(side.pop(0)[2]); credit -= c_; used += c_
    stamp()
    while side and side[0][0] < ready(len(jobs) - 1): emit(side.pop(0)[2])
    e("s_nop 7")
    for _, _, x in side: emit(x)
    lab("L2_fin")
    if DIAG: e("s_waitcnt vmcnt(0)")
    dump_stamps("s[14:15]", "s17", 1 << 20, 140)
    if "enc" in OPT:
        k = int(OPT["enc"])
        if k < 0:
            e("s_mov_b64 exec, -1")
            e("v_mov_b32 v142, %d" % (WS_DBG + 4 * (-k - 1)))
            e("global_load_dword v143, v142, s[14:15]")
            e("s_waitcnt vmcnt(0)")
            e("v_readfirstlane_b32 s44, v143")
        else:
            e("s_mov_b32 s44, s%d" % (64 + 2 * k))
        lab("L2_spin")
        e("s_memrealtime s[46:47]")
        e("s_waitcnt lgkmcnt(0)")
        e("s_sub_u32 s46, s46, s44")
        e("s_cmp_lt_u32 s46, 6000")
        e("s_cbranch_scc1 L2_spin")
    lab("L2_end")
    e("s_endpgm")

header()
k2()
out.append('.section .rodata,"a"')
kdesc(NAME + "_kernel", 256, 100 if DIAG else 64)
open(sys.argv[1], "w").write("\n".join(out) + "\n")
```

```python
import sys
NAME = "gather_scatter__tensor_product_equiv_equiformer__graph"
OPT = dict(a.split('=') for a in sys.argv[2:]) if len(sys.argv) > 2 else {}
def opt(k, d): return type(d)(OPT.get(k, d))

N = 10000; E = 320000
NB = opt("nb", 256)
G = 250; CH = 1280
WS_REC = 0
WS_TAB = 6 << 20
WS_WF = 7 << 20
WS_WFL = (7 << 20) + (512 << 10)
WS_DBG = 8 << 20
U = 10
DK = 3
OOB = 0x7F000000
NPH = opt("nph", 6)
PHMUL = {5: 0x8312, 6: 0x9d49, 7: 0xb780, 8: 0xd1b7}[NPH]
L_COEF = 0; COEF_STRIDE = 640
L_OFFS = 25728; OFFS_STRIDE = 256
L_WT = 36864
L_F = 37888
L_CNT = L_F; L_ST = L_F + 2048; L_SLOT = L_ST + 2048
L_F0 = L_F; L_F1 = L_F + 3 * 8192
LDS_MAIN = L_F + 122880
R0 = 8 - NPH
DIAG = opt("diag", 0)
FL = {"": "", "sc1": " sc1", "nt": " nt", "sc01": " sc0 sc1"}
SFL = FL[opt("sfl", "sc1")]
KFL = FL[opt("kfl", "sc1")]

out = []
def e(s): out.append("    " + s)
def lab(s): out.append(s + ":")

def header():
    ref = open("cdna_kernels/%s.s.ref" % NAME).read().split("\n")
    for l in ref:
        if l.startswith("; Override"): break
        out.append(l)
    out.append("; @launch grid=(%d,1,1) block=(512,1,1) lds=%d" % (NB, LDS_MAIN))
    out.append('.amdgcn_target "amdgcn-amd-amdhsa--gfx950"')
    out.append(".text")

def kstart(name):
    out.append(".globl %s" % name)
    out.append(".p2align 8")
    out.append(".type %s,@function" % name)
    lab(name)

def kdesc(name, vgpr, sgpr):
    out.append(".p2align 6")
    out.append(".amdhsa_kernel %s" % name)
    out.append("  .amdhsa_next_free_vgpr %d" % vgpr)
    out.append("  .amdhsa_next_free_sgpr %d" % sgpr)
    out.append("  .amdhsa_accum_offset %d" % ((vgpr + 3) // 4 * 4))
    out.append("  .amdhsa_group_segment_fixed_size 0")
    out.append("  .amdhsa_kernarg_size 96")
    out.append("  .amdhsa_user_sgpr_count 2")
    out.append("  .amdhsa_user_sgpr_kernarg_segment_ptr 1")
    out.append("  .amdhsa_system_sgpr_workgroup_id_x 1")
    out.append(".end_amdhsa_kernel")

nstamp = [0]
FINE = opt("fine", 0)
def fstamp():
    if FINE: stamp(True)
def stamp(f=False):
    if not DIAG: return
    if FINE and nstamp[0] >= 12: return
    k = nstamp[0]; nstamp[0] += 1
    e("s_memrealtime s[%d:%d]" % (64 + 2 * k, 65 + 2 * k))
    if k == 0: e("s_memtime s[92:93]")
    if k == opt("ca", 3): e("s_memtime s[88:89]")
    if k == opt("cb", 4): e("s_memtime s[94:95]")
    e("s_waitcnt lgkmcnt(0)")
def dump_stamps(ws, swave, base, vt):
    if not DIAG: return
    e("s_memtime s[90:91]")
    stamp()
    e("s_mov_b64 exec, -1")
    e("v_mov_b32 v%d, 0" % vt)
    e("s_sub_u32 s90, s90, s92")
    e("v_writelane_b32 v%d, s90, 14" % vt)
    e("s_sub_u32 s94, s94, s88")
    e("v_writelane_b32 v%d, s94, 13" % vt)
    for k in range(nstamp[0]):
        e("v_writelane_b32 v%d, s%d, %d" % (vt, 64 + 2 * k, k))
    e("s_lshl_b32 s62, s2, 3")
    e("s_add_u32 s62, s62, %s" % swave)
    e("s_lshl_b32 s62, s62, 6")
    e("s_add_u32 s62, s62, %d" % (WS_DBG + base))
    e("v_mbcnt_lo_u32_b32 v%d, -1, 0" % (vt + 1))
    e("v_lshl_add_u32 v%d, v%d, 2, s62" % (vt + 1, vt + 1))
    e("s_mov_b64 exec, 0xffff")
    e("global_store_dword v%d, v%d, %s" % (vt + 1, vt, ws))
    nstamp[0] = 0

def wave_scan(v, rows_only=False):
    for sh in (1, 2, 4, 8):
        e("s_nop 1")
        e("v_add_u32_dpp %s, %s, %s row_shr:%d row_mask:0xf bank_mask:0xf bound_ctrl:0" % (v, v, v, sh))
    if rows_only: return
    e("s_nop 1")
    e("v_add_u32_dpp %s, %s, %s row_bcast:15 row_mask:0xa bank_mask:0xf" % (v, v, v))
    e("s_nop 1")
    e("v_add_u32_dpp %s, %s, %s row_bcast:31 row_mask:0xc bank_mask:0xf" % (v, v, v))

def unpack(dst, idx, base):
    r = base + idx // 2
    if idx % 2 == 0: e("v_lshlrev_b32 %s, 16, v%d" % (dst, r))
    else: e("v_and_b32 %s, 0xffff0000, v%d" % (dst, r))

ACC = 0; LB = [160, 192]; BT = [224, 228]; AF = [232, 236]; VO = 240
VCA = 248; RB = 249; REM = 250; PEND = 251; TID = 252; VOA = 253; PSEL = 254
SM = 28
def rec(i): return 160 + 4 * i
def kad(i): return 200 + i
T0 = 210
MSK = 20
def msk(i): return "s[%d:%d]" % (MSK + 2 * i, MSK + 2 * i + 1)

def lds_init():
    z = 224; a = 232
    for k in range(7): e("v_mov_b32 v%d, 0" % (z + k + (1 if k == 6 else 0)))
    e("v_mov_b32 v%d, -1" % (z + 6))
    e("v_and_b32 v%d, 63, v%d" % (a, TID))
    e("s_lshl_b32 s4, s17, 11")
    e("s_add_u32 s4, s4, %d" % L_SLOT)
    e("v_lshl_add_u32 v%d, v%d, 4, s4" % (a, a))
    e("v_add_u32 v%d, 32768, v%d" % (a + 3, a))
    e("v_lshlrev_b32 v%d, 2, v%d" % (a + 1, TID))
    for k in range(5):
        e("ds_write_b128 v%d, v[%d:%d] offset:%d" % (a if k < 2 else a + 3, z + 4, z + 7, 16384 * (k if k < 2 else k - 2)))
    e("ds_write_b32 v%d, v%d offset:%d" % (a + 1, z, L_CNT))

def k2():
    kstart(NAME + "_kernel")
    e("s_cmp_ge_u32 s2, %d" % NB)
    e("s_cbranch_scc1 L2_end")
    e("s_load_dwordx16 s[20:35], s[0:1], 0")
    e("s_load_dwordx2 s[12:13], s[0:1], 72")
    e("s_load_dwordx4 s[36:39], s[0:1], 80")
    stamp()
    t = T0
    P_CNT = 0; P_BASE = 1024; P_STG = 2048; L_NON = L_WT + 64
    e("v_mov_b32 v%d, v0" % TID)
    e("v_lshrrev_b32 v%d, 6, v0" % t)
    e("s_and_b32 s4, s2, 7")
    e("s_lshr_b32 s5, s2, 3")
    if NB == 256:
        e("s_lshl_b32 s16, s4, 5")
        e("s_add_u32 s16, s16, s5")
    else:
        e("s_mul_i32 s16, s4, 31")
        e("s_min_u32 s4, s4, 2")
        e("s_add_u32 s16, s16, s4")
        e("s_add_u32 s16, s16, s5")
    e("v_readfirstlane_b32 s17, v%d" % t)
    e("s_mov_b32 s18, 0x05040100")
    e("s_mov_b32 s19, 0x07060302")
    e("s_cmp_ge_u32 s17, 5")
    e("s_cbranch_scc1 L1_help")
    e("s_cmp_ge_u32 s2, %d" % G)
    e("s_cbranch_scc1 L1_idle")
    e("s_mul_i32 s4, s2, %d" % (CH * 4))
    e("s_mul_i32 s5, s2, %d" % (CH * 6))
    e("s_mul_i32 s6, s2, %d" % (CH * 2))
    e("v_lshl_add_u32 v1, v0, 4, s4")
    e("v_mul_u32_u24 v2, 24, v0")
    e("v_add_u32 v2, s5, v2")
    e("v_lshl_add_u32 v3, v0, 3, s6")
    e("v_lshlrev_b32 v4, 2, v0")
    e("v_mov_b32 v5, 0")
    e("ds_write_b32 v4, v5 offset:%d" % P_CNT)
    e("v_and_b32 v4, 63, v0")
    e("v_lshlrev_b32 v4, 4, v4")
    e("v_mov_b32 v66, %d" % (2 * ((1 << 26) // 5)))
    e("s_mov_b32 s7, 0x%x" % PHMUL)
    e("s_waitcnt lgkmcnt(0)")
    e("global_load_dwordx4 v[8:11], v1, s[28:29]")
    e("global_load_dwordx4 v[12:15], v1, s[26:27]")
    e("global_load_dwordx4 v[16:19], v2, s[22:23]")
    e("global_load_dwordx2 v[20:21], v2, s[22:23] offset:16")
    e("global_load_dwordx2 v[22:23], v3, s[24:25]")
    e("v_mov_b32 v5, 1")
    e("s_barrier")
    lds_init()
    e("s_waitcnt vmcnt(4)")
    for k in range(4):
        if NB == 256:
            e("v_mul_u32_u24 v%d, 429497, v%d" % (24 + k, 8 + k))
            e("v_lshrrev_b32 v%d, 24, v%d" % (24 + k, 24 + k))
        else:
            e("v_mul_u32_u24 v%d, 0xcccd, v%d" % (24 + k, 8 + k))
            e("v_lshrrev_b32 v%d, 21, v%d" % (24 + k, 24 + k))
        e("v_lshlrev_b32 v%d, 2, v%d" % (68 + k, 24 + k))
        e("ds_add_rtn_u32 v%d, v%d, v5 offset:%d" % (28 + k, 68 + k, P_CNT))
    for k in range(4):
        if NB == 256:
            e("v_mul_u32_u24 v6, 625, v%d" % (24 + k))
            e("v_add_u32 v6, 15, v6")
            e("v_lshrrev_b32 v6, 4, v6")
        else:
            e("v_mul_u32_u24 v6, 40, v%d" % (24 + k))
        e("v_sub_u32 v%d, v%d, v6" % (8 + k, 8 + k))
    def keyw(k):
        e("v_mad_u32_u24 v6, v%d, s7, v66" % (12 + k))
        e("v_mul_u32_u24 v7, %d, v%d" % ((1 << 26) // 5 + 1, 8 + k))
        e("v_and_b32 v7, 0x3ffffff, v7")
        e("v_sub_u32 v6, v6, v7")
        e("v_ashrrev_i32 v6, 26, v6")
        e("v_med3_i32 v6, v6, 0, %d" % (NPH - 1))
        e("v_lshl_add_u32 v6, v%d, 3, v6" % (8 + k))
        e("v_lshl_add_u32 v6, v%d, 9, v6" % (12 + k))
        e("v_lshlrev_b32 v%d, 2, v6" % (34 + 4 * k))
    def coefs(k):
        unpack("v48", k, 22)
        for j in range(3):
            unpack("v%d" % (49 + j), 3 * k + j, 16)
        for j in range(3):
            e("v_mul_f32 v%d, v48, v%d" % (49 + j, 49 + j))
        e("v_cvt_pk_bf16_f32 v%d, v48, v49" % (32 + 4 * k))
        e("v_cvt_pk_bf16_f32 v%d, v50, v51" % (33 + 4 * k))
    e("s_waitcnt vmcnt(3)")
    keyw(0); keyw(1)
    e("s_waitcnt lgkmcnt(0)")
    e("s_barrier")
    e("ds_read_b128 v[52:55], v4 offset:%d" % P_CNT)
    keyw(2)
    e("s_waitcnt lgkmcnt(0)")
    e("v_add_u32 v57, v52, v53")
    e("v_add_u32 v58, v57, v54")
    e("v_add_u32 v59, v58, v55")
    e("v_mov_b32 v60, v59")
    e("s_waitcnt vmcnt(0)")
    save = out[:]; del out[:]
    keyw(3); coefs(0)
    fill = out[:]; out[:] = save
    for sh in ("row_shr:1 row_mask:0xf bank_mask:0xf bound_ctrl:0", "row_shr:2 row_mask:0xf bank_mask:0xf bound_ctrl:0",
               "row_shr:4 row_mask:0xf bank_mask:0xf bound_ctrl:0", "row_shr:8 row_mask:0xf bank_mask:0xf bound_ctrl:0",
               "row_bcast:15 row_mask:0xa bank_mask:0xf", "row_bcast:31 row_mask:0xc bank_mask:0xf"):
        out.append(fill.pop(0)); out.append(fill.pop(0))
        e("v_add_u32_dpp v60, v60, v60 %s" % sh)
    e("v_sub_u32 v60, v60, v59")
    e("v_add_u32 v61, v60, v52")
    e("v_add_u32 v62, v60, v57")
    e("v_add_u32 v63, v60, v58")
    e("ds_write_b128 v4, v[60:63] offset:%d" % P_BASE)
    for k in range(4):
        e("ds_read_b32 v%d, v%d offset:%d" % (24 + k, 68 + k, P_BASE))
    out.extend(fill)
    coefs(1); coefs(2); coefs(3)
    e("s_waitcnt lgkmcnt(0)")
    for k in range(4):
        e("v_add_lshl_u32 v%d, v%d, v%d, 4" % (24 + k, 24 + k, 28 + k))
        e("ds_write_b96 v%d, v[%d:%d] offset:%d" % (24 + k, 32 + 4 * k, 34 + 4 * k, P_STG))
    e("v_lshlrev_b32 v6, 4, v0")
    e("s_mul_i32 s4, s2, %d" % (CH * 16))
    e("s_add_u32 s4, s4, %d" % WS_REC)
    e("v_add_u32 v7, s4, v6")
    e("v_add_u32 v8, 5120, v7")
    e("v_add_u32 v9, 10240, v7")
    e("v_add_u32 v10, 15360, v7")
    e("v_mov_b32 v11, 0")
    for k in range(4):
        e("v_lshl_or_b32 v%d, v%d, 11, v%d" % (60 + k, 52 + k, 60 + k))
    e("s_lshl_b32 s4, s2, 11")
    e("s_add_u32 s4, s4, %d" % WS_TAB)
    e("v_lshl_add_u32 v5, v4, 1, s4")
    e("s_cmp_lg_u32 s17, 0")
    e("s_waitcnt lgkmcnt(0)")
    e("s_barrier")
    e("ds_read_b64 v[30:31], v11 offset:%d" % L_NON)
    for k in range(4):
        e("ds_read_b96 v[%d:%d], v6 offset:%d" % (12 + 4 * k, 14 + 4 * k, P_STG + 5120 * k))
    e("s_waitcnt lgkmcnt(4)")
    e("s_cbranch_scc1 L1_notab")
    for k in range(4):
        e("v_lshl_or_b32 v%d, v31, 22, v%d" % (32 + 2 * k, 60 + k))
        e("v_mov_b32 v%d, v30" % (33 + 2 * k))
    e("global_store_dwordx4 v5, v[32:35], s[38:39] sc1")
    e("global_store_dwordx4 v5, v[36:39], s[38:39] offset:16 sc1")
    lab("L1_notab")
    for k in range(4):
        e("v_mov_b32 v%d, v30" % (15 + 4 * k))
        e("s_waitcnt lgkmcnt(%d)" % (3 - k))
        e("v_lshl_or_b32 v%d, v31, 25, v%d" % (14 + 4 * k, 14 + 4 * k))
        e("global_store_dwordx4 v%d, v[%d:%d], s[38:39] sc1" % (7 + k, 12 + 4 * k, 15 + 4 * k))
    e("s_branch L1_done")
    lab("L1_idle")
    lds_init()
    e("s_waitcnt lgkmcnt(0)")
    for _ in range(3): e("s_barrier")
    e("s_branch L1_done")
    lab("L1_help")
    e("v_and_b32 v1, 63, v0")
    e("s_cmp_eq_u32 s17, 6")
    e("s_cbranch_scc1 L1_pref")
    e("s_cmp_eq_u32 s17, 7")
    e("s_cbranch_scc1 L1_non")
    e("s_cmp_ge_u32 s2, 160")
    e("s_cbranch_scc1 L1_idle")
    e("s_mul_i32 s4, s2, 1639")
    e("s_lshr_b32 s4, s4, 16")
    e("s_mul_i32 s5, s4, 40")
    e("s_sub_u32 s5, s2, s5")
    e("s_and_b32 s6, s5, 1")
    e("s_lshr_b32 s5, s5, 1")
    e("s_waitcnt lgkmcnt(0)")
    e("s_cmp_lt_u32 s5, 8")
    e("s_cselect_b64 s[40:41], s[32:33], s[34:35]")
    e("s_cselect_b32 s7, 0, 8")
    e("s_sub_u32 s7, s5, s7")
    e("s_lshl_b32 s7, s7, 13")
    e("s_lshl_b32 s4, s4, 6")
    e("s_add_u32 s7, s7, s4")
    e("s_lshl_b32 s6, s6, 3")
    e("s_add_u32 s7, s7, s6")
    e("v_lshrrev_b32 v2, 4, v1")
    e("v_bfe_u32 v3, v1, 2, 2")
    e("v_and_b32 v6, 3, v1")
    e("v_lshlrev_b32 v4, 11, v2")
    e("v_lshl_add_u32 v4, v3, 4, v4")
    e("v_lshl_add_u32 v4, v6, 1, v4")
    e("v_add_u32 v4, s7, v4")
    e("s_lshl_b32 s5, s5, 6")
    e("v_lshl_add_u32 v5, v2, 4, s5")
    e("global_load_dwordx4 v[16:19], v5, s[30:31]")
    for i in range(8):
        e("global_load_ushort v%d, v4, s[40:41] offset:%d" % (8 + i, 256 * i))
    e("s_barrier")
    lds_init()
    e("s_waitcnt lgkmcnt(0)")
    e("s_barrier")
    e("s_waitcnt vmcnt(0)")
    for i in range(8):
        e("v_lshlrev_b32 v%d, 16, v%d" % (8 + i, 8 + i))
        unpack("v20", i, 16)
        e("v_mul_f32 v%d, v20, v%d" % (8 + i, 8 + i))
    for i in range(4):
        e("v_cvt_pk_bf16_f32 v%d, v%d, v%d" % (24 + i, 8 + 2 * i, 9 + 2 * i))
    e("s_lshl_b32 s4, s2, 10")
    e("s_add_u32 s4, s4, %d" % WS_WF)
    e("v_lshl_add_u32 v7, v1, 4, s4")
    e("global_store_dwordx4 v7, v[24:27], s[38:39] sc1")
    e("v_mov_b32 v11, 0")
    e("s_lshl_b32 s4, s2, 3")
    e("s_add_u32 s4, s4, %d" % WS_WFL)
    e("v_mov_b32 v8, s4")
    e("s_barrier")
    e("ds_read_b64 v[30:31], v11 offset:%d" % L_NON)
    e("s_waitcnt vmcnt(0) lgkmcnt(0)")
    e("s_mov_b64 exec, 1")
    e("global_store_dwordx2 v8, v[30:31], s[38:39] sc1")
    e("s_mov_b64 exec, -1")
    e("s_branch L1_done")
    lab("L1_pref")
    e("s_min_u32 s4, s2, %d" % (G - 1))
    e("s_mul_i32 s4, s4, 40960")
    e("v_lshl_add_u32 v2, v1, 7, s4")
    lds_init()
    e("s_waitcnt lgkmcnt(0)")
    e("s_barrier")
    if opt("k1pf", 1):
        for k in range(5):
            e("global_load_dword v3, v2, s[20:21]")
            if k < 4: e("v_add_u32 v2, 8192, v2")
    for _ in range(2): e("s_barrier")
    e("s_branch L1_done")
    lab("L1_non")
    e("v_mov_b32 v2, 0")
    e("s_cmp_ge_u32 s2, %d" % opt("nno", 8))
    e("s_cbranch_scc1 L1_non1")
    e("s_memrealtime s[4:5]")
    e("s_waitcnt lgkmcnt(0)")
    e("s_and_b32 s5, s5, 0x3ff")
    e("s_bitset1_b32 s5, 31")
    e("v_mov_b32 v8, s4")
    e("v_mov_b32 v9, s5")
    e("v_mov_b32 v10, 0")
    e("v_mov_b32 v11, 0")
    e("s_mov_b64 exec, 1")
    e("global_atomic_cmpswap_x2 v2, v[8:11], s[36:37] sc1")
    e("s_mov_b64 exec, -1")
    lab("L1_non1")
    e("s_waitcnt lgkmcnt(0)")
    e("global_load_dwordx2 v[6:7], v2, s[36:37] sc1")
    e("s_barrier")
    lds_init()
    e("s_mov_b32 s6, %d" % (1 << 20))
    e("s_waitcnt vmcnt(0)")
    e("v_readfirstlane_b32 s5, v7")
    e("s_cmp_lg_u32 s5, 0")
    e("s_cbranch_scc1 L1_non3")
    e("global_load_dwordx2 v[6:7], v2, s[36:37] sc1")
    lab("L1_non3")
    e("s_waitcnt lgkmcnt(0)")
    e("s_barrier")
    lab("L1_npoll")
    e("s_waitcnt vmcnt(0)")
    e("v_readfirstlane_b32 s5, v7")
    e("s_cmp_lg_u32 s5, 0")
    e("s_cbranch_scc1 L1_non2")
    e("global_load_dwordx2 v[6:7], v2, s[36:37] sc1")
    e("s_sub_u32 s6, s6, 1")
    e("s_cbranch_scc0 L1_npoll")
    e("s_waitcnt vmcnt(0)")
    lab("L1_non2")
    e("v_and_b32 v7, 0x3ff, v7")
    e("ds_write_b64 v2, v[6:7] offset:%d" % L_NON)
    e("s_waitcnt lgkmcnt(0)")
    e("s_barrier")
    lab("L1_done")
    if opt("pace", 1):
        e("s_cmp_eq_u32 s17, 6")
        e("s_cbranch_scc1 L1_d2")
        e("s_waitcnt vmcnt(0)")
        lab("L1_d2")
        e("s_barrier")
    stamp()
    e("s_mov_b64 s[8:9], s[20:21]")
    e("s_mov_b64 s[14:15], s[38:39]")
    e("v_mov_b32 v%d, 0" % t)
    e("ds_read_b64 v[%d:%d], v%d offset:%d" % (t + 8, t + 9, t, L_NON))
    e("v_lshrrev_b32 v%d, 1, v%d" % (t + 1, TID))
    e("v_min_u32 v%d, %d, v%d" % (t + 1, G - 1, t + 1))
    e("s_lshl_b32 s4, s16, 3")
    e("s_add_u32 s4, s4, %d" % WS_TAB)
    e("v_lshl_add_u32 v%d, v%d, 11, s4" % (t + 2, t + 1))
    e("global_load_dwordx2 v[%d:%d], v%d, s[14:15] sc1" % (t + 6, t + 7, t + 2))
    par = t + 4
    e("v_and_b32 v%d, 1, v%d" % (par, TID))
    e("v_mul_u32_u24 v%d, %d, v%d" % (t + 1, CH, t + 1))
    e("v_cmp_gt_u32 vcc, %d, v%d" % (2 * G, TID))
    e("s_mov_b64 s[50:51], vcc")
    e("s_or_b32 s9, s9, 0x00100000")
    e("s_mov_b32 s10, %d" % (N * 1024))
    e("s_mov_b32 s11, 0x00800000")
    e("s_mov_b32 s44, 0")
    e("s_mov_b32 s45, 0")
    e("s_mov_b32 s6, %d" % (1 << 20))
    NZ = 0
    e("s_waitcnt lgkmcnt(0)")
    e("v_readfirstlane_b32 s56, v%d" % (t + 8))
    e("v_readfirstlane_b32 s58, v%d" % (t + 9))
    e("s_lshl_b32 s57, s58, 25")
    lab("L2_poll")
    e("s_waitcnt vmcnt(0)")
    e("v_lshrrev_b32 v%d, 22, v%d" % (t + 3, t + 6))
    e("v_cmp_ne_u32 vcc, v%d, v%d" % (t + 7, t + 8))
    e("v_cmp_ne_u32 s[4:5], v%d, v%d" % (t + 3, t + 9))
    e("s_or_b64 vcc, vcc, s[4:5]")
    e("s_cbranch_scc0 L2_got")
    if opt("psl", 0): e("s_sleep %d" % opt("psl", 0))
    e("s_mov_b64 exec, vcc")
    e("global_load_dwordx2 v[%d:%d], v%d, s[14:15] sc1" % (t + 6, t + 7, t + 2))
    e("s_mov_b64 exec, -1")
    e("s_sub_u32 s6, s6, 1")
    e("s_cbranch_scc0 L2_poll")
    e("s_waitcnt vmcnt(0)")
    e("v_mov_b32 v%d, 0" % (t + 6))
    lab("L2_got")
    e("s_setprio 3")
    stamp()
    e("v_and_b32 v%d, 0x7ff, v%d" % (t + 2, t + 6))
    e("v_bfe_u32 v%d, v%d, 11, 11" % (REM, t + 6))
    e("v_add3_u32 v%d, v%d, v%d, v%d" % (t + 1, t + 1, t + 2, par))
    e("v_cndmask_b32 v%d, 0, v%d, s[50:51]" % (REM, REM))
    e("v_lshlrev_b32 v%d, 4, v%d" % (RB, t + 1))
    e("v_sub_u32 v%d, v%d, v%d" % (REM, REM, par))
    NS = 4
    lab("L2_batch")
    for i in range(U):
        e("v_cmpx_lt_i32 %s, %d, v%d" % (msk(i), 2 * i, REM))
        if i >= NS:
            e("s_mov_b32 s42, %d" % i)
            e("s_cbranch_execz L2_ld")
        e("global_load_dwordx4 v[%d:%d], v%d, s[14:15] offset:%d sc1" % (rec(i), rec(i) + 3, RB, 32 * i))
    e("s_mov_b32 s42, %d" % U)
    lab("L2_ld")
    e("s_mov_b64 exec, -1")
    fstamp()
    wf = 242
    e("v_and_b32 v247, 63, v%d" % TID)
    e("v_min_u32 v247, 39, v247")
    e("s_and_b32 s4, s17, 3")
    e("s_mul_i32 s4, s4, 320")
    e("s_add_u32 s4, s4, %d" % WS_WFL)
    e("v_lshl_add_u32 v247, v247, 3, s4")
    e("global_load_dwordx2 v[%d:%d], v247, s[14:15] sc1" % (wf, wf + 1))
    e("s_or_b32 s4, s44, s45")
    e("s_cbranch_scc1 L2_noz")
    e("s_nop 1")
    for r in range(16 * NZ, 160, 16):
        e("v_mfma_f32_32x32x16_bf16 v[%d:%d], v[224:227], v[224:227], 0" % (r, r + 15))
    lab("L2_noz")
    def stage(name, body):
        for i in range(U):
            if i >= NS:
                e("s_cmp_le_u32 s42, %d" % i)
                e("s_cbranch_scc1 L2_%s" % name)
            e("s_mov_b64 exec, %s" % msk(i))
            body(i)
        lab("L2_%s" % name)
    tab = {(0, 0): 0, (1, 1): 1, (1, 2): 2, (1, 3): 3,
           (4, 0): 1, (5, 1): 0, (6, 3): 2, (7, 2): 3,
           (8, 0): 2, (9, 2): 0, (10, 1): 3, (11, 3): 1,
           (12, 0): 3, (13, 3): 0, (14, 2): 1, (15, 1): 2}
    e("v_mov_b32 v%d, 64" % PSEL)
    for p_ in range(4):
        m_ = 0
        for (m, q), v in tab.items():
            if v == p_: m_ |= 1 << (16 * q + m)
        e("s_mov_b32 exec_lo, 0x%x" % (m_ & 0xffffffff))
        e("s_mov_b32 exec_hi, 0x%x" % (m_ >> 32))
        e("v_mov_b32 v%d, %d" % (PSEL, 16 * p_))
    e("s_mov_b64 exec, -1")
    va = 255; vo = 244; vb = 245; vf = 246; D0 = AF[0]
    e("v_and_b32 v%d, 63, v%d" % (vo, TID))
    e("s_mul_i32 s4, s17, %d" % (5 * 2048))
    e("s_add_u32 s4, s4, %d" % L_SLOT)
    e("v_lshl_add_u32 v%d, v%d, 4, s4" % (va, vo))
    e("v_lshlrev_b32 v%d, 2, v%d" % (vo, vo))
    e("v_and_b32 v%d, 28, v%d" % (vb, vo))
    e("s_mul_i32 s48, s17, %d" % (5 * OFFS_STRIDE))
    e("s_mul_i32 s49, s17, %d" % (5 * COEF_STRIDE))
    e("v_add_u32 v%d, s48, v%d" % (vo, vo))
    e("s_lshl_b32 s5, s17, 2")
    e("v_mov_b32 v%d, s5" % vf)
    e("v_cmp_lt_i32 vcc, %d, v%d" % (2 * U, REM))
    e("s_cmp_lg_u64 vcc, 0")
    e("s_cselect_b32 s43, 2, 0")
    one = t + 1
    e("v_mov_b32 v%d, 1" % one)
    e("v_and_b32 v%d, 63, v%d" % (t, TID))
    e("v_lshlrev_b32 v%d, 5, v%d" % (t, t))
    e("v_cmp_gt_u32 vcc, %d, v%d" % (40 * 32, t))
    e("s_mov_b64 s[46:47], vcc")
    e("v_mov_b32 v%d, 0" % PEND)
    e("s_mov_b32 s6, %d" % (1 << 20))
    bad = t + 2
    lab("L2_chk")
    e("s_waitcnt vmcnt(0)")
    e("v_xor_b32 v%d, s56, v%d" % (bad, wf))
    e("v_xor_b32 v%d, s58, v%d" % (wf + 1, wf + 1))
    e("v_or_b32 v%d, v%d, v%d" % (bad, bad, wf + 1))
    def b_ck(i):
        e("v_xor_b32 v%d, s57, v%d" % (rec(i) + 2, rec(i) + 2))
        e("v_xor_b32 v%d, s56, v%d" % (rec(i) + 3, rec(i) + 3))
        e("v_lshrrev_b32 v%d, 25, v%d" % (t + 3, rec(i) + 2))
        e("v_or3_b32 v%d, v%d, v%d, v%d" % (bad, bad, t + 3, rec(i) + 3))
    stage("ck", b_ck)
    e("s_mov_b64 exec, -1")
    e("v_cmp_ne_u32 vcc, 0, v%d" % bad)
    e("s_cmp_eq_u64 vcc, 0")
    e("s_cbranch_scc1 L2_ok")
    e("s_sub_u32 s6, s6, 1")
    e("s_cbranch_scc1 L2_end")
    if opt("rsl", 0): e("s_sleep %d" % opt("rsl", 0))
    stage("rl", lambda i: e("global_load_dwordx4 v[%d:%d], v%d, s[14:15] offset:%d sc1" % (rec(i), rec(i) + 3, RB, 32 * i)))
    e("s_mov_b64 exec, -1")
    e("global_load_dwordx2 v[%d:%d], v247, s[14:15] sc1" % (wf, wf + 1))
    e("s_branch L2_chk")
    lab("L2_ok")
    fstamp()
    def b_at(i):
        e("v_and_b32 v%d, 0x7fc, v%d" % (kad(i), rec(i) + 2))
        e("ds_add_rtn_u32 v%d, v%d, v%d offset:%d" % (rec(i) + 3, kad(i), one, L_CNT))
    stage("at", b_at)
    e("s_mov_b64 exec, s[46:47]")
    e("s_waitcnt lgkmcnt(0)")
    e("s_barrier")
    stamp()
    cc = 212
    e("ds_read_b128 v[%d:%d], v%d offset:%d" % (cc, cc + 3, t, L_CNT))
    e("ds_read_b128 v[%d:%d], v%d offset:%d" % (cc + 4, cc + 7, t, L_CNT + 16))
    lim = 220; tmp = 221; en = 222; nb_ = 223
    f = 224; fo = 232
    e("s_waitcnt lgkmcnt(0)")
    e("v_add3_u32 v%d, v%d, v%d, v%d" % (lim, cc, cc + 1, cc + 2))
    k = 3
    while k < NPH:
        if k + 1 < NPH:
            e("v_add3_u32 v%d, v%d, v%d, v%d" % (lim, lim, cc + k, cc + k + 1)); k += 2
        else:
            e("v_add_u32 v%d, v%d, v%d" % (lim, lim, cc + k)); k += 1
    e("v_sub_u32 v%d, 64, v%d" % (lim, lim))
    e("v_max_i32 v%d, 0, v%d" % (lim, lim))
    e("v_and_b32 v%d, -8, v%d" % (tmp, lim))
    e("v_min_u32 v%d, %d, v%d" % (f, 8 * R0, tmp))
    for k in range(1, NPH):
        e("v_add_u32 v%d, v%d, v%d" % (lim, lim, cc + k - 1))
        e("v_add_u32 v%d, v%d, v%d" % (en, f + k - 1, cc + k - 1))
        e("v_and_b32 v%d, -8, v%d" % (tmp, lim))
        e("v_min_u32 v%d, %d, v%d" % (tmp, 8 * (R0 + k), tmp))
        e("v_max_u32 v%d, v%d, v%d" % (f + k, tmp, en))
    e("ds_write_b128 v%d, v[%d:%d] offset:%d" % (t, f, f + 3, L_ST))
    e("ds_write_b128 v%d, v[%d:%d] offset:%d" % (t, f + 4, f + 7, L_ST + 16))
    st = lambda i: 232 + i
    def b_st(i):
        e("ds_read_b32 v%d, v%d offset:%d" % (st(i), kad(i), L_ST))
        e("v_and_b32 v%d, 0x7e0, v%d" % (kad(i), kad(i)))
        e("v_lshlrev_b32 v%d, 6, v%d" % (kad(i), kad(i)))
    stage("st", b_st)
    e("s_waitcnt lgkmcnt(0)")
    fstamp()
    def b_pl(i):
        e("v_add_u32 v%d, v%d, v%d" % (st(i), st(i), rec(i) + 3))
        e("v_min_u32 v%d, 64, v%d" % (st(i), st(i)))
        e("v_lshl_add_u32 v%d, v%d, 4, v%d" % (kad(i), st(i), kad(i)))
        e("v_lshrrev_b32 v%d, 6, v%d" % (st(i), st(i)))
        e("ds_write_b96 v%d, v[%d:%d] offset:%d" % (kad(i), rec(i), rec(i) + 2, L_SLOT))
        e("v_lshl_or_b32 v%d, v%d, %d, v%d" % (PEND, st(i), i, PEND))
    stage("pl", b_pl)
    e("s_mov_b64 exec, -1")
    e("v_cmp_ne_u32 vcc, 0, v%d" % PEND)
    e("s_cmp_lg_u64 vcc, 0")
    e("s_addc_u32 s4, s43, 0")
    e("v_mov_b32 v%d, s4" % (t + 2))
    e("ds_write_b32 v%d, v%d offset:%d" % (vf, t + 2, L_WT))
    e("s_waitcnt lgkmcnt(0)")
    e("s_barrier")
    stamp()
    for u in range(5):
        e("ds_read_b32 v%d, v%d offset:%d" % (D0 + u, va, 2048 * u + 8))
    e("ds_read_b32 v238, v%d offset:%d" % (vb, L_WT))
    vb = 238
    for r in range(LB[0], LB[0] + 32, 2): e("v_mov_b64 v[%d:%d], 0" % (r, r + 1))
    for u in range(5):
        e("s_waitcnt lgkmcnt(5)")
        e("v_lshrrev_b32 v%d, 11, v%d" % (D0 + u, D0 + u))
        e("v_lshlrev_b32 v%d, 10, v%d" % (D0 + u, D0 + u))
        e("v_cmp_gt_u32 s[%d:%d], s10, v%d" % (SM + 2 * u, SM + 2 * u + 1, D0 + u))
        if opt("small", 0): e("v_and_b32 v%d, 0xffc00, v%d" % (D0 + u, D0 + u))
        e("ds_write_b32 v%d, v%d offset:%d" % (vo, D0 + u, L_OFFS + OFFS_STRIDE * u))
    e("s_or_b64 s[4:5], s[%d:%d], s[%d:%d]" % (SM, SM + 1, SM + 2, SM + 3))
    for u in range(2, 5):
        e("s_or_b64 s[4:5], s[4:5], s[%d:%d]" % (SM + 2 * u, SM + 2 * u + 1))
    e("s_bitset1_b32 s5, 24")
    e("s_ff1_i32_b64 s6, s[4:5]")
    e("s_and_b32 s6, s6, 0x38")
    for u in range(5):
        e("s_lshr_b64 s[%d:%d], s[%d:%d], s6" % (SM + 2 * u, SM + 2 * u + 1, SM + 2 * u, SM + 2 * u + 1))
    e("s_lshl_b32 s7, s6, 2")
    e("s_add_u32 s7, s7, s48")
    e("v_mov_b32 v%d, s7" % VOA)
    e("s_mul_i32 s7, s6, 10")
    e("s_add_u32 s7, s7, s49")
    e("v_add_u32 v%d, s7, v%d" % (VCA, PSEL))
    e("s_lshr_b32 s6, s6, 3")
    e("s_sub_u32 s40, 8, s6")
    e("s_cmp_lt_u32 s17, 4")
    e("s_addc_u32 s41, s6, 0")
    def ooff(g): return L_OFFS + (g % 5) * OFFS_STRIDE + (g // 5) * 32
    def coff(g): return L_COEF + (g % 5) * COEF_STRIDE + (g // 5) * 80
    def rdoff(g, r=VO):
        e("ds_read_b128 v[%d:%d], v%d offset:%d" % (r, r + 3, VOA, ooff(g)))
        e("ds_read_b128 v[%d:%d], v%d offset:%d" % (r + 4, r + 7, VOA, ooff(g) + 16))
    NC = [38, 39]
    lid = [0]
    def count(u, buf):
        m = SM + 2 * u
        e("s_and_b32 s%d, s%d, 0xff" % (NC[buf], m))
        e("s_bcnt1_i32_b32 s%d, s%d" % (NC[buf], NC[buf]))
        e("s_lshr_b64 s[%d:%d], s[%d:%d], 8" % (m, m + 1, m, m + 1))
    def ladder(buf, wait=True, r=VO):
        n = lid[0]; lid[0] += 1
        for i in range(8):
            e("s_cmp_le_u32 s%d, %d" % (NC[buf], i))
            e("s_cbranch_scc1 L2_w%d_%d" % (n, i if wait else 8))
            e("buffer_load_dwordx4 v[%d:%d], v%d, s[8:11], 0 offen" %
              (LB[buf] + 4 * i, LB[buf] + 4 * i + 3, r + i))
        if wait:
            e("s_branch L2_w%d_8" % n)
            for i in range(8):
                lab("L2_w%d_%d" % (n, i))
                e("s_waitcnt vmcnt(%d)" % i)
        lab("L2_w%d_8" % n)
        if wait: e("s_waitcnt vmcnt(8)")
    rdoff(0)
    count(0, 0)
    count(1, 1)
    e("s_waitcnt lgkmcnt(0)")
    fstamp()
    ladder(0, False)
    rdoff(1)
    for r in range(LB[1], LB[1] + 32, 2): e("v_mov_b64 v[%d:%d], 0" % (r, r + 1))
    e("v_and_b32 v239, 1, v%d" % vb)
    e("v_cmp_ne_u32 vcc, 0, v239")
    e("s_or_b32 s44, vcc_lo, vcc_hi")
    e("v_cmp_lt_u32 vcc, 1, v%d" % vb)
    e("s_or_b32 s45, vcc_lo, vcc_hi")
    CF = 224
    for u in range(5):
        e("ds_read_b64 v[%d:%d], v%d offset:%d" % (CF + 2 * u, CF + 2 * u + 1, va, 2048 * u))
    sa = 234; sb = 235; kp = 236; sd = 237; wa = 238; rc = 239
    e("v_mov_b32 v%d, s18" % sa)
    e("v_mov_b32 v%d, s19" % sb)
    e("v_bfe_u32 v%d, v%d, 3, 3" % (wa, TID))
    e("v_mul_u32_u24 v%d, 80, v%d" % (wa, wa))
    e("v_bfe_u32 v%d, v%d, 1, 2" % (kp, TID))
    e("v_lshl_add_u32 v%d, v%d, 2, v%d" % (wa, kp, wa))
    e("v_add_u32 v%d, s49, v%d" % (wa, wa))
    e("s_mov_b32 s6, 0xaaaaaaaa")
    e("s_mov_b32 s7, 0xaaaaaaaa")
    e("s_mov_b64 exec, s[6:7]")
    e("v_mov_b32 v%d, 0x01000504" % sa)
    e("v_mov_b32 v%d, 0x03020706" % sb)
    e("v_add_u32 v%d, 32, v%d" % (wa, wa))
    e("s_mov_b64 exec, -1")
    e("s_waitcnt lgkmcnt(5)")
    n1 = lid[0]
    ladder(1, False)
    e("s_waitcnt lgkmcnt(0)")
    for u in range(5):
        lo = CF + 2 * u; hi = lo + 1
        e("v_cndmask_b32 v%d, v%d, v%d, s[6:7]" % (sd, hi, lo))
        e("v_cndmask_b32 v%d, v%d, v%d, s[6:7]" % (kp, lo, hi))
        e("s_nop 0")
        e("v_mov_b32_dpp v%d, v%d quad_perm:[1,0,3,2] row_mask:0xf bank_mask:0xf" % (rc, sd))
        e("v_perm_b32 v%d, v%d, v%d, v%d" % (lo, rc, kp, sa))
        e("v_perm_b32 v%d, v%d, v%d, v%d" % (hi, rc, kp, sb))
        e("ds_write2_b32 v%d, v%d, v%d offset0:0 offset1:4" % (wa, lo, hi))
        if u < 4: e("v_add_u32 v%d, %d, v%d" % (wa, COEF_STRIDE, wa))
    e("v_and_b32 v%d, 63, v%d" % (rc, TID))
    e("v_mul_u32_u24 v%d, 80, v%d" % (rc, rc))
    e("v_add_u32 v%d, s49, v%d" % (rc, rc))
    e("s_waitcnt lgkmcnt(0)")
    for r in range(BT[0], BT[0] + 8, 2): e("v_mov_b64 v[%d:%d], 0" % (r, r + 1))
    e("s_mov_b64 exec, s[46:47]")
    e("ds_write_b128 v%d, v[%d:%d] offset:%d" % (rc, BT[0], BT[0] + 3, L_COEF + 64))
    e("s_mov_b64 exec, -1")
    e("ds_read_b128 v[%d:%d], v%d offset:%d" % (AF[0], AF[0] + 3, VCA, coff(0)))
    e("s_barrier")
    for i in range(8):
        e("s_cmp_le_u32 s%d, %d" % (NC[1], i))
        e("s_cbranch_scc1 L2_f%d" % i)
    e("s_branch L2_f8")
    for i in range(9):
        lab("L2_f%d" % i)
        e("s_waitcnt vmcnt(%d)" % i)
    e("s_waitcnt lgkmcnt(0)")
    fstamp()
    X = opt("x", "")
    VAR = opt("var", 1)
    out.append(".p2align 6")
    lab("L2_sweep")
    for g in range(10):
        u = g % 5; buf = g & 1; L = LB[buf]; A = AF[buf]
        u2 = (g + 2) % 5
        rdoff(g + 2)
        e("ds_read_b128 v[%d:%d], v%d offset:%d" % (AF[buf ^ 1], AF[buf ^ 1] + 3, VCA, coff(g + 1)))
        def body(np_):
            def P(j):
                if "P" in X: return
                d = j >> 1; s = "s19" if j & 1 else "s18"
                for tt in range(np_):
                    e("v_perm_b32 v%d, v%d, v%d, %s" % (BT[j & 1] + tt, L + 4 * (2 * tt + 1) + d, L + 4 * (2 * tt) + d, s))
            def M(j):
                if "M" in X: return
                a = ACC + 32 * u + 4 * j
                if np_ == 2:
                    e("v_mfma_f32_16x16x16_bf16 v[%d:%d], v[%d:%d], v[%d:%d], v[%d:%d]" %
                      (a, a + 3, A, A + 1, BT[j & 1], BT[j & 1] + 1, a, a + 3))
                else:
                    e("v_mfma_f32_16x16x32_bf16 v[%d:%d], v[%d:%d], v[%d:%d], v[%d:%d]" %
                      (a, a + 3, A, A + 3, BT[j & 1], BT[j & 1] + 3, a, a + 3))
            P(0); P(1); M(0)
            for j in range(2, 8):
                P(j); M(j - 1)
            e("s_nop 0")
            M(7)
        if VAR:
            e("s_cmp_gt_u32 s%d, 6" % NC[buf])
            e("s_cbranch_scc1 L2_v4_%d" % g)
            e("s_cmp_gt_u32 s%d, 4" % NC[buf])
            e("s_cbranch_scc1 L2_v3_%d" % g)
            e("s_cmp_eq_u32 s%d, 0" % NC[buf])
            e("s_cbranch_scc1 L2_skip%d" % g)
            body(2)
            e("s_branch L2_skip%d" % g)
            lab("L2_v3_%d" % g)
            body(3)
            e("s_branch L2_skip%d" % g)
            lab("L2_v4_%d" % g)
            body(4)
        else:
            e("s_cmp_eq_u32 s%d, 0" % NC[buf])
            e("s_cbranch_scc1 L2_skip%d" % g)
            body(4)
        lab("L2_skip%d" % g)
        count(u2, buf)
        if g == 4:
            e("s_sub_u32 s40, s40, 1")
        if g == 9:
            e("v_add_u32 v%d, 160, v%d" % (VCA, VCA))
            e("v_add_u32 v%d, 64, v%d" % (VOA, VOA))
            e("s_sub_u32 s40, s40, 1")
        e("s_waitcnt lgkmcnt(0)")
        ladder(buf)
        if g in (4, 9):
            e("s_add_u32 s41, s41, 1")
            e("s_cmp_ge_u32 s41, 4"); e("s_cbranch_scc0 L2_pr%d" % g); e("s_setprio 2")
            e("s_cmp_ge_u32 s41, 6"); e("s_cbranch_scc0 L2_pr%d" % g); e("s_setprio 1")
            e("s_cmp_ge_u32 s41, 8"); e("s_cbranch_scc0 L2_pr%d" % g); e("s_setprio 0")
            lab("L2_pr%d" % g)
            e("s_cmp_lg_u32 s40, 0")
            e("s_cbranch_scc0 L2_swept" if g == 4 else "s_cbranch_scc1 L2_sweep")
    lab("L2_swept")
    e("s_or_b32 s6, s44, s45")
    e("s_cbranch_scc0 L2_epi")
    e("s_barrier")
    lds_init()
    e("s_waitcnt lgkmcnt(0)")
    e("s_barrier")
    e("s_cmp_lg_u32 s44, 0")
    e("s_cbranch_scc1 L2_pass")
    e("v_add_u32 v%d, %d, v%d" % (RB, 32 * U, RB))
    e("v_add_u32 v%d, %d, v%d" % (REM, -2 * U, REM))
    e("s_branch L2_batch")
    lab("L2_pass")
    for i in range(U):
        e("v_and_b32 v%d, %d, v%d" % (t, 1 << i, PEND))
        e("v_cmp_ne_u32 %s, 0, v%d" % (msk(i), t))
        e("s_mov_b64 exec, %s" % msk(i))
        e("global_load_dwordx4 v[%d:%d], v%d, s[14:15] offset:%d sc1" % (rec(i), rec(i) + 3, RB, 32 * i))
        e("s_mov_b64 exec, -1")
    e("s_mov_b32 s42, %d" % U)
    e("s_branch L2_ld")
    lab("L2_epi")
    stamp()
    e("s_setprio 0")
    LC = 245; lane = 253
    e("v_and_b32 v%d, 63, v%d" % (lane, TID))
    e("v_lshlrev_b32 v%d, 4, v%d" % (LC, lane))
    def wreg(f_): return 160 + 4 * f_ if f_ < 20 else 4 * (f_ - 20)
    e("s_sub_u32 s4, s17, 4")
    e("s_mul_i32 s4, s4, 40960")
    e("s_add_u32 s4, s4, %d" % (WS_WF + 4096))
    e("s_add_u32 s46, s14, s4")
    e("s_addc_u32 s47, s15, 0")
    wl = [0]
    def wload(lo, hi):
        n = wl[0]; wl[0] += 1
        e("s_cmp_lt_u32 s17, 4")
        e("s_cbranch_scc1 L2_nw%d" % n)
        for f_ in range(lo, hi):
            if f_ and f_ % 8 == 0:
                e("s_add_u32 s46, s46, 8192")
                e("s_addc_u32 s47, s47, 0")
            e("global_load_dwordx4 v[%d:%d], v%d, s[46:47] offset:%d sc1" % (wreg(f_), wreg(f_) + 3, LC, (f_ % 8) * 1024 - 4096))
        lab("L2_nw%d" % n)
    WLM = opt('wl', 1)
    wload(0, 8 if WLM else 4)
    LA = 240; TS = 241; LBB = 242; SG = 243; SG2 = 244; ADR = 246; TMP = 247
    e("v_and_b32 v%d, 3, v%d" % (SG, lane))
    e("v_bfe_u32 v%d, v%d, 2, 2" % (ADR, lane))
    e("v_lshlrev_b32 v%d, 8, v%d" % (LA, SG))
    e("v_lshl_add_u32 v%d, v%d, 10, v%d" % (LA, ADR, LA))
    e("v_and_b32 v%d, 1, v%d" % (ADR, ADR))
    e("v_mul_u32_u24 v%d, 12, v%d" % (ADR, ADR))
    e("v_or_b32 v%d, v%d, v%d" % (SG, SG, ADR))
    e("v_lshlrev_b32 v%d, 4, v%d" % (SG, SG))
    e("v_mov_b32 v%d, v%d" % (SG2, SG))
    e("v_add_u32 v%d, %d, v%d" % (LBB, L_F0 + 16384, LA))
    e("v_mov_b32 v%d, 8192" % TS)
    e("v_mov_b32 v%d, v%d" % (TMP, LA))
    e("v_add_u32 v%d, %d, v%d" % (LA, L_F0, LA))
    for gp in range(1, 4):
        lo = 0xffff0000 if gp == 1 else 0
        hi = {1: 0, 2: 0x0000ffff, 3: 0xffff0000}[gp]
        e("s_mov_b32 exec_lo, 0x%x" % lo)
        e("s_mov_b32 exec_hi, 0x%x" % hi)
        e("v_add_u32 v%d, %d, v%d" % (LA, L_F1 + (gp - 1) * 24576, TMP))
        e("v_add_u32 v%d, %d, v%d" % (LBB, L_F1 + (7 if gp == 3 else 6) * 12288, TMP))
        e("v_mov_b32 v%d, 12288" % TS)
        if gp == 2: e("v_xor_b32 v%d, 128, v%d" % (SG2, SG2))
    e("s_mov_b64 exec, -1")
    e("s_mul_i32 s4, s17, 5")
    e("s_mov_b32 s48, 0xffff0000")
    e("s_mov_b32 s49, -1")
    TA0 = 248; TA1 = 252
    after = {0: (8, 14), 1: (14, 20), 2: (20, 28), 3: (28, 36), 4: (36, 40)} if WLM else {0: (4, 8), 1: (8, 12), 2: (12, 16), 3: (16, 20)}
    for u in range(5):
        A = ACC + 32 * u
        e("s_lshr_b32 s5, s4, 4")
        e("s_and_b32 s6, s4, 15")
        e("s_lshl_b32 s6, s6, 4")
        e("s_cmp_lt_u32 s4, 32")
        e("s_cselect_b64 s[50:51], -1, 0")
        e("v_mad_u32_u24 v%d, v%d, s5, v%d" % (ADR, TS, LA))
        e("v_cndmask_b32 v%d, v%d, v%d, s[50:51]" % (ADR, LBB, ADR))
        e("v_cndmask_b32 v%d, v%d, v%d, s[50:51]" % (TMP, SG2, SG))
        e("v_xor_b32 v%d, s6, v%d" % (TMP, TMP))
        e("v_add_u32 v%d, v%d, v%d" % (ADR, ADR, TMP))
        for dd in range(4):
            e("v_cvt_pk_bf16_f32 v%d, v%d, v%d" % (TA0 + dd, A + 8 * dd, A + 8 * dd + 4))
        e("ds_write_b128 v%d, v[%d:%d]" % (ADR, TA0, TA0 + 3))
        for dd in range(4):
            e("v_cvt_pk_bf16_f32 v%d, v%d, v%d" % (TA1 + dd, A + 8 * dd + 1, A + 8 * dd + 5))
        e("ds_write_b128 v%d, v[%d:%d] offset:4096" % (ADR, TA1, TA1 + 3))
        for j in range(8):
            e("v_sub_f32 v%d, v%d, v%d" % (A + 4 * j + 2, A + 4 * j + 2, A + 4 * j + 3))
        for dd in range(4):
            e("v_cvt_pk_bf16_f32 v%d, v%d, v%d" % (A + dd, A + 8 * dd + 2, A + 8 * dd + 6))
        e("s_mov_b64 exec, s[48:49]")
        e("ds_write_b128 v%d, v[%d:%d] offset:8192" % (ADR, A, A + 3))
        e("s_mov_b64 exec, -1")
        e("s_add_u32 s4, s4, 1")
        if WLM and u >= 2: e("s_waitcnt lgkmcnt(6)")
        if u in after: wload(*after[u])
    e("s_waitcnt lgkmcnt(0)")
    e("s_cmp_lt_u32 s17, 4")
    e("s_cbranch_scc0 L2_gemm")
    stamp()
    e("s_barrier")
    if DIAG:
        e("s_branch L2_fin")
        if not FINE: nstamp[0] -= 1
    else:
        e("s_endpgm")
    lab("L2_gemm")
    RA = [240, 241, 242, 243]
    OA = 244; OAX = 248
    e("v_lshrrev_b32 v%d, 8, v%d" % (TMP, LC))
    e("v_bfe_u32 v%d, v%d, 4, 4" % (ADR, LC))
    e("v_xor_b32 v%d, v%d, v%d" % (RA[0], ADR, TMP))
    e("v_lshlrev_b32 v%d, 4, v%d" % (RA[0], RA[0]))
    e("v_lshl_add_u32 v%d, v%d, 8, v%d" % (RA[0], TMP, RA[0]))
    e("v_xor_b32 v%d, 0xc0, v%d" % (RA[1], RA[0]))
    e("v_add_u32 v%d, %d, v%d" % (RA[2], L_F + 65536, RA[0]))
    e("v_add_u32 v%d, %d, v%d" % (RA[3], L_F + 65536, RA[1]))
    e("v_add_u32 v%d, %d, v%d" % (RA[0], L_F, RA[0]))
    e("v_add_u32 v%d, %d, v%d" % (RA[1], L_F, RA[1]))
    e("v_lshlrev_b32 v%d, 10, v%d" % (OA, ADR))
    e("v_lshl_add_u32 v%d, v%d, 4, v%d" % (OA, TMP, OA))
    e("v_mov_b32 v%d, v%d" % (OAX, OA))
    e("s_mov_b32 s52, 0xff00ff00")
    e("s_mov_b32 s53, 0xff00ff00")
    e("s_mov_b64 exec, s[52:53]")
    e("v_add_u32 v%d, %d, v%d" % (OAX, -8192 + 256, OAX))
    e("s_mov_b64 exec, -1")
    if NB == 256:
        e("s_mul_i32 s5, s16, 625")
        e("s_add_u32 s6, s5, %d" % (625 + 15))
        e("s_add_u32 s5, s5, 15")
        e("s_lshr_b32 s5, s5, 4")
        e("s_lshr_b32 s6, s6, 4")
        e("s_sub_u32 s7, s6, s5")
    else:
        e("s_mul_i32 s5, s16, 40")
        e("s_mov_b32 s7, 40")
    e("s_cmp_eq_u32 s7, 40")
    e("s_cselect_b32 s54, -1, 0x7f7f7f7f")
    e("s_and_b32 s52, s54, 0x00ff00ff")
    e("s_mov_b32 s53, s52")
    e("s_mov_b32 s55, s54")
    e("s_lshl_b32 s5, s5, 10")
    e("s_lshl_b32 s6, s17, 6")
    e("s_add_u32 s5, s5, s6")
    e("s_sub_u32 s5, s5, 256")
    e("s_add_u32 s20, s12, s5")
    e("s_addc_u32 s21, s13, 0")
    e("s_add_u32 s22, s20, 16384")
    e("s_addc_u32 s23, s21, 0")
    e("s_add_u32 s24, s20, 32768")
    e("s_addc_u32 s25, s21, 0")
    stamp()
    e("s_barrier")
    stamp()
    jobs = [("g", tau, tau * 8192, 0, 8, 0) for tau in range(3)]
    for tau in range(2):
        for i in range(3): jobs.append(("o", tau, 24576 + (2 * i + tau) * 12288, 8, 12, i + 1))
    jobs.append(("x", 2, 24576 + 6 * 12288, 8, 12, 1))
    jobs.append(("y", 2, 24576 + 7 * 12288, 8, 12, 3))
    GA = [80, 88, 96]
    AC = [104, 112]; RING = 120; NR = 8; AHEAD = opt("ahead", 6)
    PK = [152, 156]
    def acc_of(jn): return GA[jn] if jn < 3 else AC[jn & 1]
    seq = []; jstart = []
    for jn, (kind, tau, off, k0, nk, part) in enumerate(jobs):
        jstart.append(len(seq))
        for ks in range(nk): seq.append((jn, k0 + ks, off + ks * 1024, ks))
    jstart.append(len(seq))
    nl = [0]; rdq = {}
    def rd(n):
        jn, wk, off, ks = seq[n]
        hi = off >= 65536
        r = RING + 4 * (n % NR)
        e("ds_read_b128 v[%d:%d], v%d offset:%d" % (r, r + 3, RA[(2 if hi else 0) + (ks & 1)], off - (65536 if hi else 0)))
        rdq[n] = nl[0]; nl[0] += 1
    def fin(jn):
        kind, tau, off, k0, nk, part = jobs[jn]
        a = acc_of(jn); g = GA[tau]; p = PK[jn & 1]; c = []
        sb = "s[%d:%d]" % (20 + 2 * tau, 21 + 2 * tau)
        if kind != "g":
            c += ["v_mul_f32 v%d, v%d, v%d" % (a + r, a + r, g + r) for r in range(8)]
        c += ["v_cvt_pk_bf16_f32 v%d, v%d, v%d" % (p + r, a + 2 * r, a + 2 * r + 1) for r in range(4)]
        stt = "global_store_dwordx4 v%d, v[%d:%d], %s offset:%d%s" % (OAX if kind == "x" else OA, p, p + 3, sb, 256 * part, SFL)
        if tau == 2:
            c.append(["s_mov_b64 exec, %s" % ("s[54:55]" if kind == "x" else "s[52:53]"), stt, "s_mov_b64 exec, -1"])
        else:
            c.append(stt)
        return c
    def gate(tau):
        g = GA[tau]; c = []
        c += ["v_mul_f32 v%d, 0xbfb8aa3b, v%d" % (g + r, g + r) for r in range(8)]
        c += ["v_exp_f32 v%d, v%d" % (g + r, g + r) for r in range(8)]
        c += ["v_add_f32 v%d, 1.0, v%d" % (g + r, g + r) for r in range(8)]
        c += ["v_rcp_f32 v%d, v%d" % (g + r, g + r) for r in range(8)]
        if tau == 2:
            c += ["v_mov_b32_dpp v%d, v%d row_shr:8 row_mask:0xf bank_mask:0xc" % (g + r, g + r) for r in range(8)]
        return c
    INF = 10 ** 6
    side = []
    for f_ in range(20, 20 if WLM else 40):
        it = []
        if f_ % 8 == 0: it += ["s_add_u32 s46, s46, 8192", "s_addc_u32 s47, s47, 0"]
        it.append("global_load_dwordx4 v[%d:%d], v%d, s[46:47] offset:%d sc1" % (wreg(f_), wreg(f_) + 3, LC, (f_ % 8) * 1024 - 4096))
        side.append((0, jstart[3] - 8, it))
    ready = lambda jn: jstart[jn + 1] + 2
    def add(items, lo, dl): side.extend((lo, dl, x) for x in items)
    add(fin(0), ready(0), INF); add(gate(0), ready(0), INF)
    add(fin(1), ready(1), INF); add(fin(2), ready(2), INF)
    g1 = gate(1); g2 = gate(2)
    for jn in range(3, len(jobs)):
        dl = jstart[jn + 2] if jn + 2 < len(jobs) else INF
        add(fin(jn), ready(jn), dl)
        if jn in (3, 4): add(g1[16 * (jn - 3):16 * (jn - 2)], 0, INF)
        if jn in (5, 6, 7): add(g2[14 * (jn - 5):14 * (jn - 4)], 0, INF)
    if opt("noside", 0): side = [x for x in side if x[0] >= ready(len(jobs) - 1)]
    vm = []
    def emit(x):
        cost = 0
        for y in (x if isinstance(x, list) else [x]):
            e(y); cost += 2 if y.startswith(("v_exp", "v_rcp")) else 1
            if y.startswith("global_"): vm.append(y)
        return cost
    def wait_frag(f_):
        if WLM: n = 39 - f_ + len(vm)
        elif f_ < 20: n = 19 - f_ + len(vm)
        else:
            pos = [k for k, y in enumerate(vm) if y.startswith("global_load")][f_ - 20]
            n = len(vm) - 1 - pos
        e("s_waitcnt vmcnt(%d)" % n)
    for n in range(AHEAD): rd(n)
    wdone = -1; credit = 0.0
    BUD = float(opt("bud", 3.0))
    for n in range(len(seq)):
        jn, wk, off, ks = seq[n]
        while any(dl <= n for _, dl, _ in side): emit(side.pop(0)[2])
        if wk > wdone:
            wait_frag(2 * wk + 3); wdone = wk + 1
        if n % 2 == 0:
            e("s_waitcnt lgkmcnt(%d)" % (nl[0] - 1 - rdq[min(n + 1, len(seq) - 1)]))
        r = RING + 4 * (n % NR)
        credit = min(credit + BUD, BUD + 1)
        for T in range(2):
            a = acc_of(jn) + 4 * T; w = wreg(2 * wk + T)
            e("v_mfma_f32_16x16x32_bf16 v[%d:%d], v[%d:%d], v[%d:%d], %s" %
              (a, a + 3, w, w + 3, r, r + 3, "0" if ks == 0 else "v[%d:%d]" % (a, a + 3)))
            if T == 0 and n + AHEAD < len(seq): rd(n + AHEAD)
            used = 0
            while side and side[0][0] <= n and credit >= 1 and used < 1 + T:
                c_ = emit(side.pop(0)[2]); credit -= c_; used += c_
    stamp()
    while side and side[0][0] < ready(len(jobs) - 1): emit(side.pop(0)[2])
    e("s_nop 7")
    for _, _, x in side: emit(x)
    lab("L2_fin")
    if DIAG: e("s_waitcnt vmcnt(0)")
    dump_stamps("s[14:15]", "s17", 1 << 20, 140)
    if "enc" in OPT:
        k = int(OPT["enc"])
        if k < 0:
            e("s_mov_b64 exec, -1")
            e("v_mov_b32 v142, %d" % (WS_DBG + 4 * (-k - 1)))
            e("global_load_dword v143, v142, s[14:15]")
            e("s_waitcnt vmcnt(0)")
            e("v_readfirstlane_b32 s44, v143")
        else:
            e("s_mov_b32 s44, s%d" % (64 + 2 * k))
        lab("L2_spin")
        e("s_memrealtime s[46:47]")
        e("s_waitcnt lgkmcnt(0)")
        e("s_sub_u32 s46, s46, s44")
        e("s_cmp_lt_u32 s46, 6000")
        e("s_cbranch_scc1 L2_spin")
    lab("L2_end")
    e("s_endpgm")

header()
k2()
out.append('.section .rodata,"a"')
kdesc(NAME + "_kernel", 256, 100 if DIAG else 64)
open(sys.argv[1], "w").write("\n".join(out) + "\n")
```

```python
import sys
NAME = "gather_scatter__tensor_product_equiv_equiformer__graph"
OPT = dict(a.split('=') for a in sys.argv[2:]) if len(sys.argv) > 2 else {}
def opt(k, d): return type(d)(OPT.get(k, d))

N = 10000; E = 320000
NB = opt("nb", 256)
G = 250; CH = 1280
WS_REC = 0
WS_TAB = 6 << 20
WS_WF = 7 << 20
WS_WFL = (7 << 20) + (512 << 10)
WS_DBG = 8 << 20
U = 10
DK = 3
OOB = 0x7F000000
NPH = opt("nph", 6)
PHMUL = {5: 0x8312, 6: 0x9d49, 7: 0xb780, 8: 0xd1b7}[NPH]
L_COEF = 0; COEF_STRIDE = 640
L_OFFS = 25728; OFFS_STRIDE = 256
L_WT = 36864
L_F = 37888
L_CNT = L_F; L_ST = L_F + 2048; L_SLOT = L_ST + 2048
L_F0 = L_F; L_F1 = L_F + 3 * 8192
LDS_MAIN = L_F + 122880
R0 = 8 - NPH
DIAG = opt("diag", 0)
FL = {"": "", "sc1": " sc1", "nt": " nt", "sc01": " sc0 sc1"}
SFL = FL[opt("sfl", "sc1")]
KFL = FL[opt("kfl", "sc1")]

out = []
def e(s): out.append("    " + s)
def lab(s): out.append(s + ":")

def header():
    ref = open("cdna_kernels/%s.s.ref" % NAME).read().split("\n")
    for l in ref:
        if l.startswith("; Override"): break
        out.append(l)
    out.append("; @launch grid=(%d,1,1) block=(512,1,1) lds=%d" % (NB, LDS_MAIN))
    out.append('.amdgcn_target "amdgcn-amd-amdhsa--gfx950"')
    out.append(".text")

def kstart(name):
    out.append(".globl %s" % name)
    out.append(".p2align 8")
    out.append(".type %s,@function" % name)
    lab(name)

def kdesc(name, vgpr, sgpr):
    out.append(".p2align 6")
    out.append(".amdhsa_kernel %s" % name)
    out.append("  .amdhsa_next_free_vgpr %d" % vgpr)
    out.append("  .amdhsa_next_free_sgpr %d" % sgpr)
    out.append("  .amdhsa_accum_offset %d" % ((vgpr + 3) // 4 * 4))
    out.append("  .amdhsa_group_segment_fixed_size 0")
    out.append("  .amdhsa_kernarg_size 96")
    out.append("  .amdhsa_user_sgpr_count 2")
    out.append("  .amdhsa_user_sgpr_kernarg_segment_ptr 1")
    out.append("  .amdhsa_system_sgpr_workgroup_id_x 1")
    out.append(".end_amdhsa_kernel")

nstamp = [0]
FINE = opt("fine", 0)
def fstamp():
    if FINE == 1: stamp(True)
def pstamp():
    if FINE == 2: stamp(True)
def stamp(f=False):
    if not DIAG: return
    if FINE and nstamp[0] >= 12: return
    k = nstamp[0]; nstamp[0] += 1
    e("s_memrealtime s[%d:%d]" % (64 + 2 * k, 65 + 2 * k))
    if k == 0: e("s_memtime s[92:93]")
    if k == opt("ca", 3): e("s_memtime s[88:89]")
    if k == opt("cb", 4): e("s_memtime s[94:95]")
    e("s_waitcnt lgkmcnt(0)")
def dump_stamps(ws, swave, base, vt):
    if not DIAG: return
    e("s_memtime s[90:91]")
    stamp()
    e("s_mov_b64 exec, -1")
    e("v_mov_b32 v%d, 0" % vt)
    e("s_sub_u32 s90, s90, s92")
    e("v_writelane_b32 v%d, s90, 14" % vt)
    e("s_sub_u32 s94, s94, s88")
    e("v_writelane_b32 v%d, s94, 13" % vt)
    e("s_sub_u32 s97, %d, s97" % (1 << 20))
    e("s_sub_u32 s98, %d, s98" % (1 << 20))
    e("s_lshl_b32 s98, s98, 16")
    e("s_or_b32 s97, s97, s98")
    e("v_writelane_b32 v%d, s97, 15" % vt)
    for k in range(nstamp[0]):
        e("v_writelane_b32 v%d, s%d, %d" % (vt, 64 + 2 * k, k))
    e("s_lshl_b32 s96, s2, 3")
    e("s_add_u32 s96, s96, %s" % swave)
    e("s_lshl_b32 s96, s96, 6")
    e("s_add_u32 s96, s96, %d" % (WS_DBG + base))
    e("v_mbcnt_lo_u32_b32 v%d, -1, 0" % (vt + 1))
    e("v_lshl_add_u32 v%d, v%d, 2, s96" % (vt + 1, vt + 1))
    e("s_mov_b64 exec, 0xffff")
    e("global_store_dword v%d, v%d, %s" % (vt + 1, vt, ws))
    nstamp[0] = 0

def wave_scan(v, rows_only=False):
    for sh in (1, 2, 4, 8):
        e("s_nop 1")
        e("v_add_u32_dpp %s, %s, %s row_shr:%d row_mask:0xf bank_mask:0xf bound_ctrl:0" % (v, v, v, sh))
    if rows_only: return
    e("s_nop 1")
    e("v_add_u32_dpp %s, %s, %s row_bcast:15 row_mask:0xa bank_mask:0xf" % (v, v, v))
    e("s_nop 1")
    e("v_add_u32_dpp %s, %s, %s row_bcast:31 row_mask:0xc bank_mask:0xf" % (v, v, v))

def unpack(dst, idx, base):
    r = base + idx // 2
    if idx % 2 == 0: e("v_lshlrev_b32 %s, 16, v%d" % (dst, r))
    else: e("v_and_b32 %s, 0xffff0000, v%d" % (dst, r))

ACC = 0; LB = [160, 192]; BT = [224, 228]; AF = [232, 236]; VO = 240
VCA = 248; RB = 249; REM = 250; PEND = 251; TID = 252; VOA = 253; PSEL = 254
SM = 28
def rec(i): return 160 + 4 * i
def kad(i): return 200 + i
T0 = 210
MSK = 20
def msk(i): return "s[%d:%d]" % (MSK + 2 * i, MSK + 2 * i + 1)

def lds_init():
    z = 224; a = 232
    for k in range(7): e("v_mov_b32 v%d, 0" % (z + k + (1 if k == 6 else 0)))
    e("v_mov_b32 v%d, -1" % (z + 6))
    e("v_and_b32 v%d, 63, v%d" % (a, TID))
    e("s_lshl_b32 s4, s17, 11")
    e("s_add_u32 s4, s4, %d" % L_SLOT)
    e("v_lshl_add_u32 v%d, v%d, 4, s4" % (a, a))
    e("v_add_u32 v%d, 32768, v%d" % (a + 3, a))
    e("v_lshlrev_b32 v%d, 2, v%d" % (a + 1, TID))
    for k in range(5):
        e("ds_write_b128 v%d, v[%d:%d] offset:%d" % (a if k < 2 else a + 3, z + 4, z + 7, 16384 * (k if k < 2 else k - 2)))
    e("ds_write_b32 v%d, v%d offset:%d" % (a + 1, z, L_CNT))

def k2():
    kstart(NAME + "_kernel")
    e("s_cmp_ge_u32 s2, %d" % NB)
    e("s_cbranch_scc1 L2_end")
    e("s_load_dwordx16 s[20:35], s[0:1], 0")
    e("s_load_dwordx2 s[12:13], s[0:1], 72")
    e("s_load_dwordx4 s[36:39], s[0:1], 80")
    e("s_memrealtime s[60:61]")
    CPF = opt("cpf", 1)
    if CPF:
        e("s_getpc_b64 s[4:5]")
        lab("L0_pc")
        e("s_lshr_b32 s6, s2, 3")
        e("s_mul_i32 s6, s6, 768")
        e("s_sub_u32 s7, s6, L0_pc-%s_kernel" % NAME)
        e("s_ashr_i32 s6, s7, 31")
        e("s_add_u32 s4, s4, s7")
        e("s_addc_u32 s5, s5, s6")
        e("v_lshlrev_b32 v2, 7, v0")
        e("v_mov_b32 v3, s5")
        e("v_add_co_u32 v2, vcc, s4, v2")
        e("s_nop 1")
        e("v_addc_co_u32 v3, vcc, 0, v3, vcc")
        e("v_cmp_gt_u32 vcc, 6, v0")
        e("s_and_saveexec_b64 s[4:5], vcc")
        e("s_cbranch_execz L0_nc")
        e("global_load_dword v223, v[2:3], off")
        lab("L0_nc")
        e("s_mov_b64 exec, -1")
    stamp()
    t = T0
    P_CNT = 0; P_BASE = 1024; P_STG = 2048; L_NON = L_WT + 64; L_TB = L_OFFS
    JUNK = 223
    e("v_mov_b32 v%d, v0" % TID)
    e("v_lshrrev_b32 v1, 6, v0")
    e("v_and_b32 v4, 63, v0")
    e("s_and_b32 s4, s2, 7")
    e("s_lshr_b32 s5, s2, 3")
    e("v_readfirstlane_b32 s17, v1")
    if NB == 256:
        e("s_lshl_b32 s16, s4, 5")
        e("s_add_u32 s16, s16, s5")
    else:
        e("s_mul_i32 s16, s4, 31")
        e("s_min_u32 s4, s4, 2")
        e("s_add_u32 s16, s16, s4")
        e("s_add_u32 s16, s16, s5")
    e("s_min_u32 s3, s2, %d" % (G - 1))
    e("s_mul_i32 s4, s3, 320")
    e("s_mul_i32 s5, s17, 40")
    e("s_add_u32 s4, s4, s5")
    e("v_add_u32 v5, s4, v4")
    e("v_lshlrev_b32 v1, 4, v5")
    e("v_mul_u32_u24 v2, 24, v5")
    e("v_lshlrev_b32 v3, 3, v5")
    e("v_lshlrev_b32 v72, 6, v5")
    e("v_and_b32 v6, 255, v0")
    e("v_lshlrev_b32 v6, 2, v6")
    e("v_mov_b32 v73, 0")
    e("ds_write_b32 v6, v73 offset:%d" % P_CNT)
    e("s_mov_b32 s46, -1")
    e("s_mov_b32 s47, 0xff")
    e("v_mov_b32 v66, %d" % (2 * ((1 << 26) // 5)))
    e("s_mov_b32 s7, 0x%x" % PHMUL)
    e("v_mov_b32 v5, 1")
    e("s_mov_b64 exec, s[46:47]")
    e("s_waitcnt lgkmcnt(0)")
    e("global_load_dwordx4 v[8:11], v1, s[28:29]")
    e("s_mov_b64 exec, -1")
    e("s_cmp_lg_u32 s17, 7")
    e("s_cbranch_scc1 L1_a")
    e("s_cmp_lt_u32 s2, %d" % (NB - 6))
    e("s_cbranch_scc1 L1_a")
    e("s_and_b32 s61, s61, 0x3ff")
    e("s_bitset1_b32 s61, 31")
    e("v_mov_b32 v76, s60")
    e("v_mov_b32 v77, s61")
    e("v_mov_b32 v78, 0")
    e("v_mov_b32 v79, 0")
    e("s_mov_b64 exec, 1")
    e("global_atomic_cmpswap_x2 v73, v[76:79], s[36:37] sc1")
    e("s_mov_b64 exec, -1")
    lab("L1_a")
    e("s_barrier")
    e("s_mov_b64 exec, s[46:47]")
    e("global_load_dwordx4 v[12:15], v1, s[26:27]")
    e("global_load_dwordx4 v[16:19], v2, s[22:23]")
    e("global_load_dwordx2 v[20:21], v2, s[22:23] offset:16")
    e("global_load_dwordx2 v[22:23], v3, s[24:25]")
    e("s_mov_b64 exec, -1")
    pstamp()
    lds_init()
    e("v_lshlrev_b32 v4, 4, v4")
    e("s_mov_b32 s18, 0x05040100")
    e("s_mov_b32 s19, 0x07060302")
    e("s_mov_b64 exec, s[46:47]")
    e("s_waitcnt vmcnt(4)")
    pstamp()
    for k in range(4):
        if NB == 256:
            e("v_mul_u32_u24 v%d, 429497, v%d" % (24 + k, 8 + k))
            e("v_lshrrev_b32 v%d, 24, v%d" % (24 + k, 24 + k))
        else:
            e("v_mul_u32_u24 v%d, 0xcccd, v%d" % (24 + k, 8 + k))
            e("v_lshrrev_b32 v%d, 21, v%d" % (24 + k, 24 + k))
        e("v_lshlrev_b32 v%d, 2, v%d" % (68 + k, 24 + k))
        e("ds_add_rtn_u32 v%d, v%d, v5 offset:%d" % (28 + k, 68 + k, P_CNT))
    for k in range(4):
        if NB == 256:
            e("v_mul_u32_u24 v6, 625, v%d" % (24 + k))
            e("v_add_u32 v6, 15, v6")
            e("v_lshrrev_b32 v6, 4, v6")
        else:
            e("v_mul_u32_u24 v6, 40, v%d" % (24 + k))
        e("v_sub_u32 v%d, v%d, v6" % (8 + k, 8 + k))
    def keyw(k):
        e("v_mad_u32_u24 v6, v%d, s7, v66" % (12 + k))
        e("v_mul_u32_u24 v7, %d, v%d" % ((1 << 26) // 5 + 1, 8 + k))
        e("v_and_b32 v7, 0x3ffffff, v7")
        e("v_sub_u32 v6, v6, v7")
        e("v_ashrrev_i32 v6, 26, v6")
        e("v_med3_i32 v6, v6, 0, %d" % (NPH - 1))
        e("v_lshl_add_u32 v6, v%d, 3, v6" % (8 + k))
        e("v_lshl_add_u32 v6, v%d, 9, v6" % (12 + k))
        e("v_lshlrev_b32 v%d, 2, v6" % (34 + 4 * k))
    def coefs(k):
        unpack("v48", k, 22)
        for j in range(3):
            unpack("v%d" % (49 + j), 3 * k + j, 16)
        for j in range(3):
            e("v_mul_f32 v%d, v48, v%d" % (49 + j, 49 + j))
        e("v_cvt_pk_bf16_f32 v%d, v48, v49" % (32 + 4 * k))
        e("v_cvt_pk_bf16_f32 v%d, v50, v51" % (33 + 4 * k))
    e("s_mov_b64 exec, -1")
    e("s_waitcnt lgkmcnt(0)")
    pstamp()
    e("s_barrier")
    pstamp()
    e("ds_read_b128 v[52:55], v4 offset:%d" % P_CNT)
    e("s_cmp_lg_u32 s17, 7")
    e("s_cbranch_scc1 L1_nt")
    e("global_load_dwordx2 v[74:75], v73, s[36:37] sc1")
    lab("L1_nt")
    e("s_waitcnt lgkmcnt(0)")
    e("v_add_u32 v57, v52, v53")
    e("v_add_u32 v58, v57, v54")
    e("v_add_u32 v59, v58, v55")
    e("v_mov_b32 v60, v59")
    wave_scan("v60")
    e("v_sub_u32 v60, v60, v59")
    e("v_add_u32 v61, v60, v52")
    e("v_add_u32 v62, v60, v57")
    e("v_add_u32 v63, v60, v58")
    e("ds_write_b128 v4, v[60:63] offset:%d" % P_BASE)
    e("s_mov_b64 exec, s[46:47]")
    for k in range(4):
        e("ds_read_b32 v%d, v%d offset:%d" % (24 + k, 68 + k, P_BASE))
    e("s_mov_b64 exec, -1")
    e("s_cmp_eq_u32 s17, 7")
    e("s_cbranch_scc1 L1_w1")
    e("s_waitcnt vmcnt(0)")
    lab("L1_w1")
    e("s_waitcnt vmcnt(1)")
    e("s_cmp_eq_u32 s17, 3")
    e("s_cselect_b32 s59, s2, 160")
    e("s_min_u32 s59, s59, 160")
    e("s_cmp_ge_u32 s59, 160")
    e("s_cbranch_scc1 L1_b")
    e("s_mul_i32 s4, s2, 1639")
    e("s_lshr_b32 s4, s4, 16")
    e("s_mul_i32 s5, s4, 40")
    e("s_sub_u32 s5, s2, s5")
    e("s_and_b32 s6, s5, 1")
    e("s_lshr_b32 s5, s5, 1")
    e("s_cmp_lt_u32 s5, 8")
    e("s_cselect_b64 s[40:41], s[32:33], s[34:35]")
    e("s_cselect_b32 s42, 0, 8")
    e("s_sub_u32 s42, s5, s42")
    e("s_lshl_b32 s42, s42, 13")
    e("s_lshl_b32 s4, s4, 6")
    e("s_add_u32 s42, s42, s4")
    e("s_lshl_b32 s6, s6, 3")
    e("s_add_u32 s42, s42, s6")
    e("v_lshrrev_b32 v80, 8, v4")
    e("v_bfe_u32 v81, v4, 6, 2")
    e("v_bfe_u32 v82, v4, 4, 2")
    e("v_lshlrev_b32 v83, 11, v80")
    e("v_lshl_add_u32 v83, v81, 4, v83")
    e("v_lshl_add_u32 v83, v82, 1, v83")
    e("v_add_u32 v83, s42, v83")
    e("s_lshl_b32 s5, s5, 6")
    e("v_lshl_add_u32 v80, v80, 4, s5")
    e("global_load_dwordx4 v[96:99], v80, s[30:31]")
    for i in range(8):
        e("global_load_ushort v%d, v83, s[40:41] offset:%d" % (88 + i, 256 * i))
    lab("L1_b")
    e("s_mov_b64 exec, s[46:47]")
    if opt("k1pf", 1): e("global_load_dword v%d, v72, s[20:21]" % JUNK)
    def tagtab():
        e("s_mov_b64 exec, -1")
        e("s_cmp_lg_u32 s17, 7")
        e("s_cbranch_scc1 L1_c")
        e("s_mov_b32 s6, %d" % (1 << 20))
        e("s_waitcnt vmcnt(%d)" % opt("k1pf", 1))
        lab("L1_npoll")
        e("v_readfirstlane_b32 s5, v75")
        e("s_cmp_lg_u32 s5, 0")
        e("s_cbranch_scc1 L1_non2")
        e("global_load_dwordx2 v[74:75], v73, s[36:37] sc1")
        e("s_sub_u32 s6, s6, 1")
        e("s_waitcnt vmcnt(0)")
        e("s_cbranch_scc0 L1_npoll")
        lab("L1_non2")
        e("v_readfirstlane_b32 s4, v74")
        e("s_and_b32 s5, s5, 0x3ff")
        e("v_mov_b32 v74, s4")
        e("v_mov_b32 v75, s5")
        e("ds_write_b64 v73, v[74:75] offset:%d" % L_NON)
        e("s_cmp_ge_u32 s2, %d" % G)
        e("s_cbranch_scc1 L1_c")
        for k in range(4):
            e("v_lshl_or_b32 v%d, v%d, 11, v%d" % (60 + k, 52 + k, 60 + k))
            e("v_lshl_or_b32 v%d, v75, 22, v%d" % (76 + 2 * k, 60 + k))
            e("v_mov_b32 v%d, v74" % (77 + 2 * k))
        e("s_lshl_b32 s4, s2, 11")
        e("s_add_u32 s4, s4, %d" % WS_TAB)
        e("v_lshl_add_u32 v5, v4, 1, s4")
        e("global_store_dwordx4 v5, v[76:79], s[38:39] sc1")
        e("global_store_dwordx4 v5, v[80:83], s[38:39] offset:16 sc1")
        lab("L1_c")
        e("s_mov_b64 exec, s[46:47]")
    for k in range(4):
        keyw(k); coefs(k)
        if k == 0: e("s_waitcnt lgkmcnt(0)")
        e("v_add_lshl_u32 v%d, v%d, v%d, 4" % (24 + k, 24 + k, 28 + k))
        e("ds_write_b96 v%d, v[%d:%d] offset:%d" % (24 + k, 32 + 4 * k, 34 + 4 * k, P_STG))
        if k == opt("tk", 1): tagtab()
    e("s_mov_b64 exec, -1")
    e("v_lshlrev_b32 v6, 4, v0")
    e("s_mul_i32 s4, s2, %d" % (CH * 16))
    e("s_add_u32 s40, s38, s4")
    e("s_addc_u32 s41, s39, 0")
    e("s_mov_b64 s[8:9], s[20:21]")
    e("s_mov_b64 s[14:15], s[38:39]")
    e("s_mov_b64 s[62:63], s[20:21]")
    e("s_waitcnt lgkmcnt(0)")
    pstamp()
    e("s_barrier")
    pstamp()
    e("ds_read_b64 v[74:75], v73 offset:%d" % L_NON)
    e("s_cmp_ge_u32 s17, 4")
    e("s_cbranch_scc1 L1_d")
    e("s_cmp_ge_u32 s2, %d" % G)
    e("s_cbranch_scc1 L1_d")
    for k in range(5):
        e("ds_read_b96 v[%d:%d], v6 offset:%d" % (12 + 4 * k, 14 + 4 * k, P_STG + 4096 * k))
    e("v_add_u32 v7, 8192, v6")
    e("v_add_u32 v8, 16384, v6")
    for k in range(5):
        e("s_waitcnt lgkmcnt(%d)" % (4 - k))
        e("v_mov_b32 v%d, v74" % (15 + 4 * k))
        e("v_lshl_or_b32 v%d, v75, 25, v%d" % (14 + 4 * k, 14 + 4 * k))
        a_, o_ = [(6, 0), (7, -4096), (7, 0), (8, -4096), (8, 0)][k]
        e("global_store_dwordx4 v%d, v[%d:%d], s[40:41] offset:%d sc1" % (a_, 12 + 4 * k, 15 + 4 * k, o_))
    e("s_cmp_ge_u32 s59, 160")
    e("s_cbranch_scc1 L1_d")
    e("s_waitcnt vmcnt(%d)" % (5 + opt("k1pf", 1)))
    for i in range(8):
        e("v_lshlrev_b32 v%d, 16, v%d" % (88 + i, 88 + i))
        unpack("v84", i, 96)
        e("v_mul_f32 v%d, v84, v%d" % (88 + i, 88 + i))
    for i in range(4):
        e("v_cvt_pk_bf16_f32 v%d, v%d, v%d" % (204 + i, 88 + 2 * i, 89 + 2 * i))
    e("s_lshl_b32 s4, s2, 10")
    e("s_add_u32 s4, s4, %d" % WS_WF)
    e("v_add_u32 v7, s4, v4")
    e("global_store_dwordx4 v7, v[204:207], s[38:39] sc1")
    lab("L1_d")
    stamp()
    e("s_waitcnt lgkmcnt(0)")
    e("v_readfirstlane_b32 s56, v74")
    e("v_readfirstlane_b32 s58, v75")
    e("v_add_u32 v%d, %d, v72" % (JUNK - 1, N * 512))
    e("s_lshl_b32 s57, s58, 25")
    par = t + 4
    e("v_lshrrev_b32 v%d, 1, v%d" % (t + 1, TID))
    e("v_lshlrev_b32 v%d, 2, v%d" % (t + 5, t + 1))
    e("v_and_b32 v%d, 1, v%d" % (par, TID))
    e("v_mul_u32_u24 v%d, %d, v%d" % (t + 1, CH, t + 1))
    e("s_or_b32 s9, s9, 0x00100000")
    e("s_mov_b32 s10, %d" % (N * 1024))
    e("s_mov_b32 s11, 0x00800000")
    def zero_acc():
        for r in range(144, -16, -16):
            e("v_mfma_f32_32x32x16_bf16 v[%d:%d], v[224:227], v[224:227], 0" % (r, r + 15))
    ZL = 0
    e("s_cmp_ge_u32 s17, 4")
    e("s_cbranch_scc1 L1_p")
    e("s_nop 4")
    zero_acc()
    if opt("pace", 1): e("s_waitcnt vmcnt(0)")
    pstamp()
    if FINE == 2: nstamp[0] -= 1
    e("s_branch L1_e")
    lab("L1_p")
    e("v_add_u32 v%d, -256, v%d" % (t, TID))
    e("v_min_u32 v%d, %d, v%d" % (t + 2, G - 1, t))
    e("s_lshl_b32 s4, s16, 3")
    e("s_add_u32 s4, s4, %d" % WS_TAB)
    e("v_lshl_add_u32 v%d, v%d, 11, s4" % (t + 2, t + 2))
    e("s_mov_b32 s6, %d" % (1 << 20))
    e("global_load_dwordx2 v[%d:%d], v%d, s[14:15] sc1" % (t + 6, t + 7, t + 2))
    zero_acc()
    e("s_branch L2_poll1")
    lab("L2_poll")
    e("global_load_dwordx2 v[%d:%d], v%d, s[14:15] sc1" % (t + 6, t + 7, t + 2))
    lab("L2_poll1")
    e("s_waitcnt vmcnt(0)")
    e("v_lshrrev_b32 v%d, 22, v%d" % (t + 3, t + 6))
    e("v_cmp_ne_u32 vcc, s56, v%d" % (t + 7))
    e("v_cmp_ne_u32 s[4:5], s58, v%d" % (t + 3))
    e("s_or_b64 exec, vcc, s[4:5]")
    e("s_cbranch_scc0 L2_got")
    if opt("psl", 0): e("s_sleep %d" % opt("psl", 0))
    e("s_sub_u32 s6, s6, 1")
    e("s_cbranch_scc0 L2_poll")
    e("v_mov_b32 v%d, 0" % (t + 6))
    lab("L2_got")
    pstamp()
    if DIAG: e("s_mov_b32 s98, s6")
    e("s_mov_b64 exec, -1")
    e("v_cmp_gt_u32 vcc, %d, v%d" % (G, t))
    e("v_lshlrev_b32 v%d, 2, v%d" % (t, t))
    e("s_nop 0")
    e("v_cndmask_b32 v%d, 0, v%d, vcc" % (t + 6, t + 6))
    e("ds_write_b32 v%d, v%d offset:%d" % (t, t + 6, L_TB))
    e("s_waitcnt lgkmcnt(0)")
    lab("L1_e")
    e("s_barrier")
    e("ds_read_b32 v%d, v%d offset:%d" % (t + 6, t + 5, L_TB))
    e("s_setprio 3")
    e("s_mov_b32 s44, 0")
    e("s_waitcnt lgkmcnt(0)")
    stamp()
    e("v_and_b32 v%d, 0x7ff, v%d" % (t + 2, t + 6))
    e("v_bfe_u32 v%d, v%d, 11, 11" % (REM, t + 6))
    e("v_add3_u32 v%d, v%d, v%d, v%d" % (t + 1, t + 1, t + 2, par))
    e("v_sub_u32 v%d, v%d, v%d" % (REM, REM, par))
    e("v_lshlrev_b32 v%d, 4, v%d" % (RB, t + 1))
    NS = 4
    RFL = FL[opt("rfl", "")]
    lab("L2_batch")
    for i in range(U):
        e("v_cmpx_lt_i32 %s, %d, v%d" % (msk(i), 2 * i, REM))
        if i >= NS:
            e("s_mov_b32 s42, %d" % i)
            e("s_cbranch_execz L2_ld")
        e("global_load_dwordx4 v[%d:%d], v%d, s[14:15] offset:%d%s" % (rec(i), rec(i) + 3, RB, 32 * i, RFL))
    e("s_mov_b32 s42, %d" % U)
    lab("L2_ld")
    e("s_mov_b64 exec, -1")
    fstamp()
    if ZL:
        e("s_cmp_gt_u32 s59, 160")
        e("s_cbranch_scc1 L2_noz")
        e("s_nop 2")
        zero_acc()
        lab("L2_noz")
    def stage(name, body):
        for i in range(U):
            if i >= NS:
                e("s_cmp_le_u32 s42, %d" % i)
                e("s_cbranch_scc1 L2_%s" % name)
            e("s_mov_b64 exec, %s" % msk(i))
            body(i)
        lab("L2_%s" % name)
    tab = {(0, 0): 0, (1, 1): 1, (1, 2): 2, (1, 3): 3,
           (4, 0): 1, (5, 1): 0, (6, 3): 2, (7, 2): 3,
           (8, 0): 2, (9, 2): 0, (10, 1): 3, (11, 3): 1,
           (12, 0): 3, (13, 3): 0, (14, 2): 1, (15, 1): 2}
    e("v_mov_b32 v%d, 64" % PSEL)
    for p_ in range(4):
        m_ = 0
        for (m, q), v in tab.items():
            if v == p_: m_ |= 1 << (16 * q + m)
        e("s_mov_b32 exec_lo, 0x%x" % (m_ & 0xffffffff))
        e("s_mov_b32 exec_hi, 0x%x" % (m_ >> 32))
        e("v_mov_b32 v%d, %d" % (PSEL, 16 * p_))
    e("s_mov_b64 exec, -1")
    va = 255; vo = 244; vb = 245; vf = 246; D0 = AF[0]
    e("v_and_b32 v%d, 63, v%d" % (vo, TID))
    e("s_mul_i32 s4, s17, %d" % (5 * 2048))
    e("s_add_u32 s4, s4, %d" % L_SLOT)
    e("v_lshl_add_u32 v%d, v%d, 4, s4" % (va, vo))
    e("v_lshlrev_b32 v%d, 2, v%d" % (vo, vo))
    e("v_and_b32 v%d, 28, v%d" % (vb, vo))
    e("s_mul_i32 s48, s17, %d" % (5 * OFFS_STRIDE))
    e("s_mul_i32 s49, s17, %d" % (5 * COEF_STRIDE))
    e("v_add_u32 v%d, s48, v%d" % (vo, vo))
    e("s_lshl_b32 s5, s17, 2")
    e("v_mov_b32 v%d, s5" % vf)
    e("v_cmp_lt_i32 vcc, %d, v%d" % (2 * U, REM))
    e("s_cmp_lg_u64 vcc, 0")
    e("s_cselect_b32 s43, 2, 0")
    one = t + 1
    e("v_mov_b32 v%d, 1" % one)
    e("v_and_b32 v%d, 63, v%d" % (t, TID))
    e("v_lshlrev_b32 v%d, 5, v%d" % (t, t))
    e("v_mov_b32 v%d, 0" % PEND)
    e("s_mov_b32 s6, %d" % (1 << 20))
    bad = t + 2
    if FINE == 1:
        e("s_waitcnt vmcnt(0)")
        fstamp()
    lab("L2_chk")
    e("s_waitcnt vmcnt(0)")
    e("v_mov_b32 v%d, 0" % bad)
    def b_ck(i):
        e("v_xor_b32 v%d, s57, v%d" % (rec(i) + 2, rec(i) + 2))
        e("v_xor_b32 v%d, s56, v%d" % (rec(i) + 3, rec(i) + 3))
        e("v_lshrrev_b32 v%d, 25, v%d" % (t + 3, rec(i) + 2))
        e("v_or3_b32 v%d, v%d, v%d, v%d" % (bad, bad, t + 3, rec(i) + 3))
    stage("ck", b_ck)
    e("s_mov_b64 exec, -1")
    e("v_cmp_ne_u32 vcc, 0, v%d" % bad)
    e("s_cmp_eq_u64 vcc, 0")
    e("s_cbranch_scc1 L2_ok")
    e("s_sub_u32 s6, s6, 1")
    e("s_cbranch_scc1 L2_end")
    if opt("rsl", 0): e("s_sleep %d" % opt("rsl", 0))
    stage("rl", lambda i: e("global_load_dwordx4 v[%d:%d], v%d, s[14:15] offset:%d sc1" % (rec(i), rec(i) + 3, RB, 32 * i)))
    e("s_mov_b64 exec, -1")
    e("s_branch L2_chk")
    lab("L2_ok")
    if DIAG: e("s_mov_b32 s97, s6")
    fstamp()
    def b_at(i):
        e("v_and_b32 v%d, 0x7fc, v%d" % (kad(i), rec(i) + 2))
        e("ds_add_rtn_u32 v%d, v%d, v%d offset:%d" % (rec(i) + 3, kad(i), one, L_CNT))
    stage("at", b_at)
    e("s_mov_b64 exec, s[46:47]")
    e("s_cmp_gt_u32 s59, 160")
    e("s_cbranch_scc1 L2_nf")
    if opt("k1pf", 1): e("global_load_dword v%d, v%d, s[62:63]" % (JUNK, JUNK - 1))
    e("s_cmp_eq_u32 s59, 160")
    e("s_cbranch_scc1 L2_nf")
    e("s_lshl_b32 s4, s59, 3")
    e("s_add_u32 s4, s4, %d" % WS_WFL)
    e("v_mov_b32 v%d, s4" % (t + 3))
    e("v_mov_b32 v242, s56")
    e("v_mov_b32 v243, s58")
    e("s_mov_b64 exec, 1")
    e("global_store_dwordx2 v%d, v[242:243], s[14:15] sc1" % (t + 3))
    e("s_mov_b64 exec, s[46:47]")
    lab("L2_nf")
    e("s_mov_b32 s59, 161")
    e("s_waitcnt lgkmcnt(0)")
    e("s_barrier")
    stamp()
    cc = 212
    e("ds_read_b128 v[%d:%d], v%d offset:%d" % (cc, cc + 3, t, L_CNT))
    e("ds_read_b128 v[%d:%d], v%d offset:%d" % (cc + 4, cc + 7, t, L_CNT + 16))
    lim = 220; tmp = 221; en = 222; nb_ = 223
    f = 224; fo = 232
    e("s_waitcnt lgkmcnt(0)")
    e("v_add3_u32 v%d, v%d, v%d, v%d" % (lim, cc, cc + 1, cc + 2))
    k = 3
    while k < NPH:
        if k + 1 < NPH:
            e("v_add3_u32 v%d, v%d, v%d, v%d" % (lim, lim, cc + k, cc + k + 1)); k += 2
        else:
            e("v_add_u32 v%d, v%d, v%d" % (lim, lim, cc + k)); k += 1
    e("v_sub_u32 v%d, 64, v%d" % (lim, lim))
    e("v_max_i32 v%d, 0, v%d" % (lim, lim))
    e("v_and_b32 v%d, -8, v%d" % (tmp, lim))
    e("v_min_u32 v%d, %d, v%d" % (f, 8 * R0, tmp))
    for k in range(1, NPH):
        e("v_add_u32 v%d, v%d, v%d" % (lim, lim, cc + k - 1))
        e("v_add_u32 v%d, v%d, v%d" % (en, f + k - 1, cc + k - 1))
        e("v_and_b32 v%d, -8, v%d" % (tmp, lim))
        e("v_min_u32 v%d, %d, v%d" % (tmp, 8 * (R0 + k), tmp))
        e("v_max_u32 v%d, v%d, v%d" % (f + k, tmp, en))
    e("ds_write_b128 v%d, v[%d:%d] offset:%d" % (t, f, f + 3, L_ST))
    e("ds_write_b128 v%d, v[%d:%d] offset:%d" % (t, f + 4, f + 7, L_ST + 16))
    st = lambda i: 232 + i
    def b_st(i):
        e("ds_read_b32 v%d, v%d offset:%d" % (st(i), kad(i), L_ST))
        e("v_and_b32 v%d, 0x7e0, v%d" % (kad(i), kad(i)))
        e("v_lshlrev_b32 v%d, 6, v%d" % (kad(i), kad(i)))
    stage("st", b_st)
    e("s_waitcnt lgkmcnt(0)")
    fstamp()
    def b_pl(i):
        e("v_add_u32 v%d, v%d, v%d" % (st(i), st(i), rec(i) + 3))
        e("v_min_u32 v%d, 64, v%d" % (st(i), st(i)))
        e("v_lshl_add_u32 v%d, v%d, 4, v%d" % (kad(i), st(i), kad(i)))
        e("v_lshrrev_b32 v%d, 6, v%d" % (st(i), st(i)))
        e("ds_write_b96 v%d, v[%d:%d] offset:%d" % (kad(i), rec(i), rec(i) + 2, L_SLOT))
        e("v_lshl_or_b32 v%d, v%d, %d, v%d" % (PEND, st(i), i, PEND))
    stage("pl", b_pl)
    e("s_mov_b64 exec, -1")
    e("v_cmp_ne_u32 vcc, 0, v%d" % PEND)
    e("s_cmp_lg_u64 vcc, 0")
    e("s_addc_u32 s4, s43, 0")
    e("v_mov_b32 v%d, s4" % (t + 2))
    e("ds_write_b32 v%d, v%d offset:%d" % (vf, t + 2, L_WT))
    e("s_waitcnt lgkmcnt(0)")
    e("s_barrier")
    stamp()
    for u in range(5):
        e("ds_read_b32 v%d, v%d offset:%d" % (D0 + u, va, 2048 * u + 8))
    e("ds_read_b32 v238, v%d offset:%d" % (vb, L_WT))
    vb = 238
    for r in range(LB[0], LB[0] + 32, 2): e("v_mov_b64 v[%d:%d], 0" % (r, r + 1))
    for u in range(5):
        e("s_waitcnt lgkmcnt(5)")
        e("v_lshrrev_b32 v%d, 11, v%d" % (D0 + u, D0 + u))
        e("v_lshlrev_b32 v%d, 10, v%d" % (D0 + u, D0 + u))
        e("v_cmp_gt_u32 s[%d:%d], s10, v%d" % (SM + 2 * u, SM + 2 * u + 1, D0 + u))
        if opt("small", 0): e("v_and_b32 v%d, 0xffc00, v%d" % (D0 + u, D0 + u))
        e("ds_write_b32 v%d, v%d offset:%d" % (vo, D0 + u, L_OFFS + OFFS_STRIDE * u))
    e("s_or_b64 s[4:5], s[%d:%d], s[%d:%d]" % (SM, SM + 1, SM + 2, SM + 3))
    for u in range(2, 5):
        e("s_or_b64 s[4:5], s[4:5], s[%d:%d]" % (SM + 2 * u, SM + 2 * u + 1))
    e("s_bitset1_b32 s5, 24")
    e("s_ff1_i32_b64 s6, s[4:5]")
    e("s_and_b32 s6, s6, 0x38")
    for u in range(5):
        e("s_lshr_b64 s[%d:%d], s[%d:%d], s6" % (SM + 2 * u, SM + 2 * u + 1, SM + 2 * u, SM + 2 * u + 1))
    e("s_lshl_b32 s7, s6, 2")
    e("s_add_u32 s7, s7, s48")
    e("v_mov_b32 v%d, s7" % VOA)
    e("s_mul_i32 s7, s6, 10")
    e("s_add_u32 s7, s7, s49")
    e("v_add_u32 v%d, s7, v%d" % (VCA, PSEL))
    e("s_lshr_b32 s6, s6, 3")
    e("s_sub_u32 s40, 8, s6")
    e("s_cmp_lt_u32 s17, 4")
    e("s_addc_u32 s41, s6, 0")
    def ooff(g): return L_OFFS + (g % 5) * OFFS_STRIDE + (g // 5) * 32
    def coff(g): return L_COEF + (g % 5) * COEF_STRIDE + (g // 5) * 80
    def rdoff(g, r=VO):
        e("ds_read_b128 v[%d:%d], v%d offset:%d" % (r, r + 3, VOA, ooff(g)))
        e("ds_read_b128 v[%d:%d], v%d offset:%d" % (r + 4, r + 7, VOA, ooff(g) + 16))
    NC = [38, 39]
    lid = [0]
    def count(u, buf):
        m = SM + 2 * u
        e("s_and_b32 s%d, s%d, 0xff" % (NC[buf], m))
        e("s_bcnt1_i32_b32 s%d, s%d" % (NC[buf], NC[buf]))
        e("s_lshr_b64 s[%d:%d], s[%d:%d], 8" % (m, m + 1, m, m + 1))
    def ladder(buf, wait=True, r=VO):
        n = lid[0]; lid[0] += 1
        for i in range(8):
            e("s_cmp_le_u32 s%d, %d" % (NC[buf], i))
            e("s_cbranch_scc1 L2_w%d_%d" % (n, i if wait else 8))
            e("buffer_load_dwordx4 v[%d:%d], v%d, s[8:11], 0 offen" %
              (LB[buf] + 4 * i, LB[buf] + 4 * i + 3, r + i))
        if wait:
            e("s_branch L2_w%d_8" % n)
            for i in range(8):
                lab("L2_w%d_%d" % (n, i))
                e("s_waitcnt vmcnt(%d)" % i)
        lab("L2_w%d_8" % n)
        if wait: e("s_waitcnt vmcnt(8)")
    rdoff(0)
    count(0, 0)
    count(1, 1)
    e("s_waitcnt lgkmcnt(0)")
    fstamp()
    ladder(0, False)
    rdoff(1)
    for r in range(LB[1], LB[1] + 32, 2): e("v_mov_b64 v[%d:%d], 0" % (r, r + 1))
    e("v_and_b32 v239, 1, v%d" % vb)
    e("v_cmp_ne_u32 vcc, 0, v239")
    e("s_or_b32 s44, vcc_lo, vcc_hi")
    e("v_cmp_lt_u32 vcc, 1, v%d" % vb)
    e("s_or_b32 s45, vcc_lo, vcc_hi")
    CF = 224
    for u in range(5):
        e("ds_read_b64 v[%d:%d], v%d offset:%d" % (CF + 2 * u, CF + 2 * u + 1, va, 2048 * u))
    sa = 234; sb = 235; kp = 236; sd = 237; wa = 238; rc = 239
    e("v_mov_b32 v%d, s18" % sa)
    e("v_mov_b32 v%d, s19" % sb)
    e("v_bfe_u32 v%d, v%d, 3, 3" % (wa, TID))
    e("v_mul_u32_u24 v%d, 80, v%d" % (wa, wa))
    e("v_bfe_u32 v%d, v%d, 1, 2" % (kp, TID))
    e("v_lshl_add_u32 v%d, v%d, 2, v%d" % (wa, kp, wa))
    e("v_add_u32 v%d, s49, v%d" % (wa, wa))
    e("s_mov_b32 s6, 0xaaaaaaaa")
    e("s_mov_b32 s7, 0xaaaaaaaa")
    e("s_mov_b64 exec, s[6:7]")
    e("v_mov_b32 v%d, 0x01000504" % sa)
    e("v_mov_b32 v%d, 0x03020706" % sb)
    e("v_add_u32 v%d, 32, v%d" % (wa, wa))
    e("s_mov_b64 exec, -1")
    e("s_waitcnt lgkmcnt(5)")
    n1 = lid[0]
    ladder(1, False)
    e("s_waitcnt lgkmcnt(0)")
    for u in range(5):
        lo = CF + 2 * u; hi = lo + 1
        e("v_cndmask_b32 v%d, v%d, v%d, s[6:7]" % (sd, hi, lo))
        e("v_cndmask_b32 v%d, v%d, v%d, s[6:7]" % (kp, lo, hi))
        e("s_nop 0")
        e("v_mov_b32_dpp v%d, v%d quad_perm:[1,0,3,2] row_mask:0xf bank_mask:0xf" % (rc, sd))
        e("v_perm_b32 v%d, v%d, v%d, v%d" % (lo, rc, kp, sa))
        e("v_perm_b32 v%d, v%d, v%d, v%d" % (hi, rc, kp, sb))
        e("ds_write2_b32 v%d, v%d, v%d offset0:0 offset1:4" % (wa, lo, hi))
        if u < 4: e("v_add_u32 v%d, %d, v%d" % (wa, COEF_STRIDE, wa))
    e("v_and_b32 v%d, 63, v%d" % (rc, TID))
    e("v_mul_u32_u24 v%d, 80, v%d" % (rc, rc))
    e("v_add_u32 v%d, s49, v%d" % (rc, rc))
    e("s_waitcnt lgkmcnt(0)")
    for r in range(BT[0], BT[0] + 8, 2): e("v_mov_b64 v[%d:%d], 0" % (r, r + 1))
    e("s_mov_b64 exec, s[46:47]")
    e("ds_write_b128 v%d, v[%d:%d] offset:%d" % (rc, BT[0], BT[0] + 3, L_COEF + 64))
    e("s_mov_b64 exec, -1")
    e("ds_read_b128 v[%d:%d], v%d offset:%d" % (AF[0], AF[0] + 3, VCA, coff(0)))
    def wfl_load():
        e("v_and_b32 v254, 63, v%d" % TID)
        e("v_min_u32 v254, 39, v254")
        e("s_and_b32 s4, s17, 3")
        e("s_mul_i32 s4, s4, 320")
        e("s_add_u32 s4, s4, %d" % WS_WFL)
        e("v_lshl_add_u32 v254, v254, 3, s4")
        e("global_load_dwordx2 v[254:255], v254, s[14:15] sc1")
    wfl_load()
    e("s_barrier")
    for i in range(8):
        e("s_cmp_le_u32 s%d, %d" % (NC[1], i))
        e("s_cbranch_scc1 L2_f%d" % i)
    e("s_branch L2_f8")
    for i in range(9):
        lab("L2_f%d" % i)
        e("s_waitcnt vmcnt(%d)" % i)
    e("s_waitcnt lgkmcnt(0)")
    fstamp()
    X = opt("x", "")
    VAR = opt("var", 1)
    out.append(".p2align 6")
    lab("L2_sweep")
    for g in range(10):
        u = g % 5; buf = g & 1; L = LB[buf]; A = AF[buf]
        u2 = (g + 2) % 5
        rdoff(g + 2)
        e("ds_read_b128 v[%d:%d], v%d offset:%d" % (AF[buf ^ 1], AF[buf ^ 1] + 3, VCA, coff(g + 1)))
        def body(np_):
            def P(j):
                if "P" in X: return
                d = j >> 1; s = "s19" if j & 1 else "s18"
                for tt in range(np_):
                    e("v_perm_b32 v%d, v%d, v%d, %s" % (BT[j & 1] + tt, L + 4 * (2 * tt + 1) + d, L + 4 * (2 * tt) + d, s))
            def M(j):
                if "M" in X: return
                a = ACC + 32 * u + 4 * j
                if np_ == 2:
                    e("v_mfma_f32_16x16x16_bf16 v[%d:%d], v[%d:%d], v[%d:%d], v[%d:%d]" %
                      (a, a + 3, A, A + 1, BT[j & 1], BT[j & 1] + 1, a, a + 3))
                else:
                    e("v_mfma_f32_16x16x32_bf16 v[%d:%d], v[%d:%d], v[%d:%d], v[%d:%d]" %
                      (a, a + 3, A, A + 3, BT[j & 1], BT[j & 1] + 3, a, a + 3))
            P(0); P(1); M(0)
            for j in range(2, 8):
                P(j); M(j - 1)
            e("s_nop 0")
            M(7)
        if VAR:
            e("s_cmp_gt_u32 s%d, 6" % NC[buf])
            e("s_cbranch_scc1 L2_v4_%d" % g)
            e("s_cmp_gt_u32 s%d, 4" % NC[buf])
            e("s_cbranch_scc1 L2_v3_%d" % g)
            e("s_cmp_eq_u32 s%d, 0" % NC[buf])
            e("s_cbranch_scc1 L2_skip%d" % g)
            body(2)
            e("s_branch L2_skip%d" % g)
            lab("L2_v3_%d" % g)
            body(3)
            e("s_branch L2_skip%d" % g)
            lab("L2_v4_%d" % g)
            body(4)
        else:
            e("s_cmp_eq_u32 s%d, 0" % NC[buf])
            e("s_cbranch_scc1 L2_skip%d" % g)
            body(4)
        lab("L2_skip%d" % g)
        count(u2, buf)
        if g == 4:
            e("s_sub_u32 s40, s40, 1")
        if g == 9:
            e("v_add_u32 v%d, 160, v%d" % (VCA, VCA))
            e("v_add_u32 v%d, 64, v%d" % (VOA, VOA))
            e("s_sub_u32 s40, s40, 1")
        e("s_waitcnt lgkmcnt(0)")
        ladder(buf)
        if g in (4, 9):
            e("s_add_u32 s41, s41, 1")
            e("s_cmp_ge_u32 s41, 4"); e("s_cbranch_scc0 L2_pr%d" % g); e("s_setprio 2")
            e("s_cmp_ge_u32 s41, 6"); e("s_cbranch_scc0 L2_pr%d" % g); e("s_setprio 1")
            e("s_cmp_ge_u32 s41, 8"); e("s_cbranch_scc0 L2_pr%d" % g); e("s_setprio 0")
            lab("L2_pr%d" % g)
            e("s_cmp_lg_u32 s40, 0")
            e("s_cbranch_scc0 L2_swept" if g == 4 else "s_cbranch_scc1 L2_sweep")
    lab("L2_swept")
    e("s_or_b32 s6, s44, s45")
    e("s_cbranch_scc0 L2_epi")
    e("s_barrier")
    lds_init()
    e("s_waitcnt lgkmcnt(0)")
    e("s_barrier")
    e("s_cmp_lg_u32 s44, 0")
    e("s_cbranch_scc1 L2_pass")
    e("v_add_u32 v%d, %d, v%d" % (RB, 32 * U, RB))
    e("v_add_u32 v%d, %d, v%d" % (REM, -2 * U, REM))
    e("s_branch L2_batch")
    lab("L2_pass")
    for i in range(U):
        e("v_and_b32 v%d, %d, v%d" % (t, 1 << i, PEND))
        e("v_cmp_ne_u32 %s, 0, v%d" % (msk(i), t))
        e("s_mov_b64 exec, %s" % msk(i))
        e("global_load_dwordx4 v[%d:%d], v%d, s[14:15] offset:%d sc1" % (rec(i), rec(i) + 3, RB, 32 * i))
        e("s_mov_b64 exec, -1")
    e("s_mov_b32 s42, %d" % U)
    e("s_branch L2_ld")
    lab("L2_epi")
    stamp()
    e("s_mov_b32 s6, %d" % (1 << 20))
    lab("L2_wchk")
    e("v_cmp_ne_u32 vcc, s56, v254")
    e("v_cmp_ne_u32 s[4:5], s58, v255")
    e("s_or_b64 vcc, vcc, s[4:5]")
    e("s_cbranch_scc0 L2_wok")
    wfl_load()
    e("s_sub_u32 s6, s6, 1")
    e("s_waitcnt vmcnt(0)")
    e("s_cbranch_scc0 L2_wchk")
    lab("L2_wok")
    e("s_setprio 0")
    LC = 245; lane = 253
    e("v_and_b32 v%d, 63, v%d" % (lane, TID))
    e("v_lshlrev_b32 v%d, 4, v%d" % (LC, lane))
    def wreg(f_): return 160 + 4 * f_ if f_ < 20 else 4 * (f_ - 20)
    e("s_sub_u32 s4, s17, 4")
    e("s_mul_i32 s4, s4, 40960")
    e("s_add_u32 s4, s4, %d" % (WS_WF + 4096))
    e("s_add_u32 s46, s14, s4")
    e("s_addc_u32 s47, s15, 0")
    wl = [0]
    def wload(lo, hi):
        n = wl[0]; wl[0] += 1
        e("s_cmp_lt_u32 s17, 4")
        e("s_cbranch_scc1 L2_nw%d" % n)
        for f_ in range(lo, hi):
            if f_ and f_ % 8 == 0:
                e("s_add_u32 s46, s46, 8192")
                e("s_addc_u32 s47, s47, 0")
            e("global_load_dwordx4 v[%d:%d], v%d, s[46:47] offset:%d sc1" % (wreg(f_), wreg(f_) + 3, LC, (f_ % 8) * 1024 - 4096))
        lab("L2_nw%d" % n)
    WLM = opt('wl', 1)
    wload(0, 8 if WLM else 4)
    LA = 240; TS = 241; LBB = 242; SG = 243; SG2 = 244; ADR = 246; TMP = 247
    e("v_and_b32 v%d, 3, v%d" % (SG, lane))
    e("v_bfe_u32 v%d, v%d, 2, 2" % (ADR, lane))
    e("v_lshlrev_b32 v%d, 8, v%d" % (LA, SG))
    e("v_lshl_add_u32 v%d, v%d, 10, v%d" % (LA, ADR, LA))
    e("v_and_b32 v%d, 1, v%d" % (ADR, ADR))
    e("v_mul_u32_u24 v%d, 12, v%d" % (ADR, ADR))
    e("v_or_b32 v%d, v%d, v%d" % (SG, SG, ADR))
    e("v_lshlrev_b32 v%d, 4, v%d" % (SG, SG))
    e("v_mov_b32 v%d, v%d" % (SG2, SG))
    e("v_add_u32 v%d, %d, v%d" % (LBB, L_F0 + 16384, LA))
    e("v_mov_b32 v%d, 8192" % TS)
    e("v_mov_b32 v%d, v%d" % (TMP, LA))
    e("v_add_u32 v%d, %d, v%d" % (LA, L_F0, LA))
    for gp in range(1, 4):
        lo = 0xffff0000 if gp == 1 else 0
        hi = {1: 0, 2: 0x0000ffff, 3: 0xffff0000}[gp]
        e("s_mov_b32 exec_lo, 0x%x" % lo)
        e("s_mov_b32 exec_hi, 0x%x" % hi)
        e("v_add_u32 v%d, %d, v%d" % (LA, L_F1 + (gp - 1) * 24576, TMP))
        e("v_add_u32 v%d, %d, v%d" % (LBB, L_F1 + (7 if gp == 3 else 6) * 12288, TMP))
        e("v_mov_b32 v%d, 12288" % TS)
        if gp == 2: e("v_xor_b32 v%d, 128, v%d" % (SG2, SG2))
    e("s_mov_b64 exec, -1")
    e("s_mul_i32 s4, s17, 5")
    e("s_mov_b32 s48, 0xffff0000")
    e("s_mov_b32 s49, -1")
    TA0 = 248; TA1 = 252
    after = {0: (8, 14), 1: (14, 20), 2: (20, 28), 3: (28, 36), 4: (36, 40)} if WLM else {0: (4, 8), 1: (8, 12), 2: (12, 16), 3: (16, 20)}
    for u in range(5):
        A = ACC + 32 * u
        e("s_lshr_b32 s5, s4, 4")
        e("s_and_b32 s6, s4, 15")
        e("s_lshl_b32 s6, s6, 4")
        e("s_cmp_lt_u32 s4, 32")
        e("s_cselect_b64 s[50:51], -1, 0")
        e("v_mad_u32_u24 v%d, v%d, s5, v%d" % (ADR, TS, LA))
        e("v_cndmask_b32 v%d, v%d, v%d, s[50:51]" % (ADR, LBB, ADR))
        e("v_cndmask_b32 v%d, v%d, v%d, s[50:51]" % (TMP, SG2, SG))
        e("v_xor_b32 v%d, s6, v%d" % (TMP, TMP))
        e("v_add_u32 v%d, v%d, v%d" % (ADR, ADR, TMP))
        for dd in range(4):
            e("v_cvt_pk_bf16_f32 v%d, v%d, v%d" % (TA0 + dd, A + 8 * dd, A + 8 * dd + 4))
        e("ds_write_b128 v%d, v[%d:%d]" % (ADR, TA0, TA0 + 3))
        for dd in range(4):
            e("v_cvt_pk_bf16_f32 v%d, v%d, v%d" % (TA1 + dd, A + 8 * dd + 1, A + 8 * dd + 5))
        e("ds_write_b128 v%d, v[%d:%d] offset:4096" % (ADR, TA1, TA1 + 3))
        for j in range(8):
            e("v_sub_f32 v%d, v%d, v%d" % (A + 4 * j + 2, A + 4 * j + 2, A + 4 * j + 3))
        for dd in range(4):
            e("v_cvt_pk_bf16_f32 v%d, v%d, v%d" % (A + dd, A + 8 * dd + 2, A + 8 * dd + 6))
        e("s_mov_b64 exec, s[48:49]")
        e("ds_write_b128 v%d, v[%d:%d] offset:8192" % (ADR, A, A + 3))
        e("s_mov_b64 exec, -1")
        e("s_add_u32 s4, s4, 1")
        if WLM and u >= 2: e("s_waitcnt lgkmcnt(6)")
        if u in after: wload(*after[u])
    e("s_waitcnt lgkmcnt(0)")
    e("s_cmp_lt_u32 s17, 4")
    e("s_cbranch_scc0 L2_gemm")
    stamp()
    e("s_barrier")
    if DIAG:
        e("s_branch L2_fin")
        if not FINE: nstamp[0] -= 1
    else:
        e("s_endpgm")
    lab("L2_gemm")
    RA = [240, 241, 242, 243]
    OA = 244; OAX = 248
    e("v_lshrrev_b32 v%d, 8, v%d" % (TMP, LC))
    e("v_bfe_u32 v%d, v%d, 4, 4" % (ADR, LC))
    e("v_xor_b32 v%d, v%d, v%d" % (RA[0], ADR, TMP))
    e("v_lshlrev_b32 v%d, 4, v%d" % (RA[0], RA[0]))
    e("v_lshl_add_u32 v%d, v%d, 8, v%d" % (RA[0], TMP, RA[0]))
    e("v_xor_b32 v%d, 0xc0, v%d" % (RA[1], RA[0]))
    e("v_add_u32 v%d, %d, v%d" % (RA[2], L_F + 65536, RA[0]))
    e("v_add_u32 v%d, %d, v%d" % (RA[3], L_F + 65536, RA[1]))
    e("v_add_u32 v%d, %d, v%d" % (RA[0], L_F, RA[0]))
    e("v_add_u32 v%d, %d, v%d" % (RA[1], L_F, RA[1]))
    e("v_lshlrev_b32 v%d, 10, v%d" % (OA, ADR))
    e("v_lshl_add_u32 v%d, v%d, 4, v%d" % (OA, TMP, OA))
    e("v_mov_b32 v%d, v%d" % (OAX, OA))
    e("s_mov_b32 s52, 0xff00ff00")
    e("s_mov_b32 s53, 0xff00ff00")
    e("s_mov_b64 exec, s[52:53]")
    e("v_add_u32 v%d, %d, v%d" % (OAX, -8192 + 256, OAX))
    e("s_mov_b64 exec, -1")
    if NB == 256:
        e("s_mul_i32 s5, s16, 625")
        e("s_add_u32 s6, s5, %d" % (625 + 15))
        e("s_add_u32 s5, s5, 15")
        e("s_lshr_b32 s5, s5, 4")
        e("s_lshr_b32 s6, s6, 4")
        e("s_sub_u32 s7, s6, s5")
    else:
        e("s_mul_i32 s5, s16, 40")
        e("s_mov_b32 s7, 40")
    e("s_cmp_eq_u32 s7, 40")
    e("s_cselect_b32 s54, -1, 0x7f7f7f7f")
    e("s_and_b32 s52, s54, 0x00ff00ff")
    e("s_mov_b32 s53, s52")
    e("s_mov_b32 s55, s54")
    e("s_lshl_b32 s5, s5, 10")
    e("s_lshl_b32 s6, s17, 6")
    e("s_add_u32 s5, s5, s6")
    e("s_sub_u32 s5, s5, 256")
    e("s_add_u32 s20, s12, s5")
    e("s_addc_u32 s21, s13, 0")
    e("s_add_u32 s22, s20, 16384")
    e("s_addc_u32 s23, s21, 0")
    e("s_add_u32 s24, s20, 32768")
    e("s_addc_u32 s25, s21, 0")
    stamp()
    e("s_barrier")
    stamp()
    jobs = [("g", tau, tau * 8192, 0, 8, 0) for tau in range(3)]
    for tau in range(2):
        for i in range(3): jobs.append(("o", tau, 24576 + (2 * i + tau) * 12288, 8, 12, i + 1))
    jobs.append(("x", 2, 24576 + 6 * 12288, 8, 12, 1))
    jobs.append(("y", 2, 24576 + 7 * 12288, 8, 12, 3))
    GA = [80, 88, 96]
    AC = [104, 112]; RING = 120; NR = 8; AHEAD = opt("ahead", 6)
    PK = [152, 156]
    def acc_of(jn): return GA[jn] if jn < 3 else AC[jn & 1]
    seq = []; jstart = []
    for jn, (kind, tau, off, k0, nk, part) in enumerate(jobs):
        jstart.append(len(seq))
        for ks in range(nk): seq.append((jn, k0 + ks, off + ks * 1024, ks))
    jstart.append(len(seq))
    nl = [0]; rdq = {}
    def rd(n):
        jn, wk, off, ks = seq[n]
        hi = off >= 65536
        r = RING + 4 * (n % NR)
        e("ds_read_b128 v[%d:%d], v%d offset:%d" % (r, r + 3, RA[(2 if hi else 0) + (ks & 1)], off - (65536 if hi else 0)))
        rdq[n] = nl[0]; nl[0] += 1
    def fin(jn):
        kind, tau, off, k0, nk, part = jobs[jn]
        a = acc_of(jn); g = GA[tau]; p = PK[jn & 1]; c = []
        sb = "s[%d:%d]" % (20 + 2 * tau, 21 + 2 * tau)
        if kind != "g":
            c += ["v_mul_f32 v%d, v%d, v%d" % (a + r, a + r, g + r) for r in range(8)]
        c += ["v_cvt_pk_bf16_f32 v%d, v%d, v%d" % (p + r, a + 2 * r, a + 2 * r + 1) for r in range(4)]
        stt = "global_store_dwordx4 v%d, v[%d:%d], %s offset:%d%s" % (OAX if kind == "x" else OA, p, p + 3, sb, 256 * part, SFL)
        if tau == 2:
            c.append(["s_mov_b64 exec, %s" % ("s[54:55]" if kind == "x" else "s[52:53]"), stt, "s_mov_b64 exec, -1"])
        else:
            c.append(stt)
        return c
    def gate(tau):
        g = GA[tau]; c = []
        c += ["v_mul_f32 v%d, 0xbfb8aa3b, v%d" % (g + r, g + r) for r in range(8)]
        c += ["v_exp_f32 v%d, v%d" % (g + r, g + r) for r in range(8)]
        c += ["v_add_f32 v%d, 1.0, v%d" % (g + r, g + r) for r in range(8)]
        c += ["v_rcp_f32 v%d, v%d" % (g + r, g + r) for r in range(8)]
        if tau == 2:
            c += ["v_mov_b32_dpp v%d, v%d row_shr:8 row_mask:0xf bank_mask:0xc" % (g + r, g + r) for r in range(8)]
        return c
    INF = 10 ** 6
    side = []
    for f_ in range(20, 20 if WLM else 40):
        it = []
        if f_ % 8 == 0: it += ["s_add_u32 s46, s46, 8192", "s_addc_u32 s47, s47, 0"]
        it.append("global_load_dwordx4 v[%d:%d], v%d, s[46:47] offset:%d sc1" % (wreg(f_), wreg(f_) + 3, LC, (f_ % 8) * 1024 - 4096))
        side.append((0, jstart[3] - 8, it))
    ready = lambda jn: jstart[jn + 1] + 2
    def add(items, lo, dl): side.extend((lo, dl, x) for x in items)
    add(fin(0), ready(0), INF); add(gate(0), ready(0), INF)
    add(fin(1), ready(1), INF); add(fin(2), ready(2), INF)
    g1 = gate(1); g2 = gate(2)
    for jn in range(3, len(jobs)):
        dl = jstart[jn + 2] if jn + 2 < len(jobs) else INF
        add(fin(jn), ready(jn), dl)
        if jn in (3, 4): add(g1[16 * (jn - 3):16 * (jn - 2)], 0, INF)
        if jn in (5, 6, 7): add(g2[14 * (jn - 5):14 * (jn - 4)], 0, INF)
    if opt("noside", 0): side = [x for x in side if x[0] >= ready(len(jobs) - 1)]
    vm = []
    def emit(x):
        cost = 0
        for y in (x if isinstance(x, list) else [x]):
            e(y); cost += 2 if y.startswith(("v_exp", "v_rcp")) else 1
            if y.startswith("global_"): vm.append(y)
        return cost
    def wait_frag(f_):
        if WLM: n = 39 - f_ + len(vm)
        elif f_ < 20: n = 19 - f_ + len(vm)
        else:
            pos = [k for k, y in enumerate(vm) if y.startswith("global_load")][f_ - 20]
            n = len(vm) - 1 - pos
        e("s_waitcnt vmcnt(%d)" % n)
    for n in range(AHEAD): rd(n)
    wdone = -1; credit = 0.0
    BUD = float(opt("bud", 3.0))
    for n in range(len(seq)):
        jn, wk, off, ks = seq[n]
        while any(dl <= n for _, dl, _ in side): emit(side.pop(0)[2])
        if wk > wdone:
            wait_frag(2 * wk + 3); wdone = wk + 1
        if n % 2 == 0:
            e("s_waitcnt lgkmcnt(%d)" % (nl[0] - 1 - rdq[min(n + 1, len(seq) - 1)]))
        r = RING + 4 * (n % NR)
        credit = min(credit + BUD, BUD + 1)
        for T in range(2):
            a = acc_of(jn) + 4 * T; w = wreg(2 * wk + T)
            e("v_mfma_f32_16x16x32_bf16 v[%d:%d], v[%d:%d], v[%d:%d], %s" %
              (a, a + 3, w, w + 3, r, r + 3, "0" if ks == 0 else "v[%d:%d]" % (a, a + 3)))
            if T == 0 and n + AHEAD < len(seq): rd(n + AHEAD)
            used = 0
            while side and side[0][0] <= n and credit >= 1 and used < 1 + T:
                c_ = emit(side.pop(0)[2]); credit -= c_; used += c_
    stamp()
    while side and side[0][0] < ready(len(jobs) - 1): emit(side.pop(0)[2])
    e("s_nop 7")
    for _, _, x in side: emit(x)
    lab("L2_fin")
    if DIAG: e("s_waitcnt vmcnt(0)")
    dump_stamps("s[14:15]", "s17", 1 << 20, 140)
    if "enc" in OPT:
        k = int(OPT["enc"])
        if k < 0:
            e("s_mov_b64 exec, -1")
            e("v_mov_b32 v142, %d" % (WS_DBG + 4 * (-k - 1)))
            e("global_load_dword v143, v142, s[14:15]")
            e("s_waitcnt vmcnt(0)")
            e("v_readfirstlane_b32 s44, v143")
        else:
            e("s_mov_b32 s44, s%d" % (64 + 2 * k))
        lab("L2_spin")
        e("s_memrealtime s[46:47]")
        e("s_waitcnt lgkmcnt(0)")
        e("s_sub_u32 s46, s46, s44")
        e("s_cmp_lt_u32 s46, 6000")
        e("s_cbranch_scc1 L2_spin")
    lab("L2_end")
    e("s_endpgm")
    if CPF:
        out.append(".fill (24576 - (L2_end - %s_kernel)) / 4, 4, 0xbf810000" % NAME)

header()
k2()
out.append('.section .rodata,"a"')
kdesc(NAME + "_kernel", 256, 100 if DIAG else 64)
open(sys.argv[1], "w").write("\n".join(out) + "\n")
```

```python
import sys
NAME = "gather_scatter__tensor_product_equiv_equiformer__graph"
OPT = dict(a.split('=') for a in sys.argv[2:]) if len(sys.argv) > 2 else {}
def opt(k, d): return type(d)(OPT.get(k, d))

N = 10000; E = 320000
NB = opt("nb", 256)
G = 250; CH = 1280
WS_REC = 0
WS_TAB = 6 << 20
WS_WF = 7 << 20
WS_WFL = (7 << 20) + (512 << 10)
WS_DBG = 8 << 20
U = 10
DK = 3
OOB = 0x7F000000
NPH = opt("nph", 6)
PHMUL = {5: 0x8312, 6: 0x9d49, 7: 0xb780, 8: 0xd1b7}[NPH]
L_COEF = 0; COEF_STRIDE = 640
L_OFFS = 25728; OFFS_STRIDE = 256
L_WT = 36864
L_F = 37888
L_CNT = L_F; L_ST = L_F + 2048; L_SLOT = L_ST + 2048
L_F0 = L_F; L_F1 = L_F + 3 * 8192
LDS_MAIN = L_F + 122880
R0 = 8 - NPH
DIAG = opt("diag", 0)
FL = {"": "", "sc1": " sc1", "nt": " nt", "sc01": " sc0 sc1"}
SFL = FL[opt("sfl", "sc1")]
KFL = FL[opt("kfl", "sc1")]

out = []
def e(s): out.append("    " + s)
def lab(s): out.append(s + ":")

def header():
    ref = open("cdna_kernels/%s.s.ref" % NAME).read().split("\n")
    for l in ref:
        if l.startswith("; Override"): break
        out.append(l)
    out.append("; @launch grid=(%d,1,1) block=(512,1,1) lds=%d" % (NB, LDS_MAIN))
    out.append('.amdgcn_target "amdgcn-amd-amdhsa--gfx950"')
    out.append(".text")

def kstart(name):
    out.append(".globl %s" % name)
    out.append(".p2align 8")
    out.append(".type %s,@function" % name)
    lab(name)

def kdesc(name, vgpr, sgpr):
    out.append(".p2align 6")
    out.append(".amdhsa_kernel %s" % name)
    out.append("  .amdhsa_next_free_vgpr %d" % vgpr)
    out.append("  .amdhsa_next_free_sgpr %d" % sgpr)
    out.append("  .amdhsa_accum_offset %d" % ((vgpr + 3) // 4 * 4))
    out.append("  .amdhsa_group_segment_fixed_size 0")
    out.append("  .amdhsa_kernarg_size 96")
    out.append("  .amdhsa_user_sgpr_count 2")
    out.append("  .amdhsa_user_sgpr_kernarg_segment_ptr 1")
    out.append("  .amdhsa_system_sgpr_workgroup_id_x 1")
    out.append(".end_amdhsa_kernel")

nstamp = [0]
FINE = opt("fine", 0)
def fstamp():
    if FINE == 1: stamp(True)
def pstamp():
    if FINE == 2: stamp(True)
def stamp(f=False):
    if not DIAG: return
    if FINE and nstamp[0] >= 12: return
    k = nstamp[0]; nstamp[0] += 1
    e("s_memrealtime s[%d:%d]" % (64 + 2 * k, 65 + 2 * k))
    if k == 0: e("s_memtime s[92:93]")
    if k == opt("ca", 3): e("s_memtime s[88:89]")
    if k == opt("cb", 4): e("s_memtime s[94:95]")
    e("s_waitcnt lgkmcnt(0)")
def dump_stamps(ws, swave, base, vt):
    if not DIAG: return
    e("s_memtime s[90:91]")
    stamp()
    e("s_mov_b64 exec, -1")
    e("v_mov_b32 v%d, 0" % vt)
    e("s_sub_u32 s90, s90, s92")
    e("v_writelane_b32 v%d, s90, 14" % vt)
    e("s_sub_u32 s94, s94, s88")
    e("v_writelane_b32 v%d, s94, 13" % vt)
    e("s_sub_u32 s97, %d, s97" % (1 << 20))
    e("s_sub_u32 s98, %d, s98" % (1 << 20))
    e("s_lshl_b32 s98, s98, 16")
    e("s_or_b32 s97, s97, s98")
    e("v_writelane_b32 v%d, s97, 15" % vt)
    for k in range(nstamp[0]):
        e("v_writelane_b32 v%d, s%d, %d" % (vt, 64 + 2 * k, k))
    e("s_lshl_b32 s96, s2, 3")
    e("s_add_u32 s96, s96, %s" % swave)
    e("s_lshl_b32 s96, s96, 6")
    e("s_add_u32 s96, s96, %d" % (WS_DBG + base))
    e("v_mbcnt_lo_u32_b32 v%d, -1, 0" % (vt + 1))
    e("v_lshl_add_u32 v%d, v%d, 2, s96" % (vt + 1, vt + 1))
    e("s_mov_b64 exec, 0xffff")
    e("global_store_dword v%d, v%d, %s" % (vt + 1, vt, ws))
    nstamp[0] = 0

def wave_scan(v, rows_only=False):
    for sh in (1, 2, 4, 8):
        e("s_nop 1")
        e("v_add_u32_dpp %s, %s, %s row_shr:%d row_mask:0xf bank_mask:0xf bound_ctrl:0" % (v, v, v, sh))
    if rows_only: return
    e("s_nop 1")
    e("v_add_u32_dpp %s, %s, %s row_bcast:15 row_mask:0xa bank_mask:0xf" % (v, v, v))
    e("s_nop 1")
    e("v_add_u32_dpp %s, %s, %s row_bcast:31 row_mask:0xc bank_mask:0xf" % (v, v, v))

def unpack(dst, idx, base):
    r = base + idx // 2
    if idx % 2 == 0: e("v_lshlrev_b32 %s, 16, v%d" % (dst, r))
    else: e("v_and_b32 %s, 0xffff0000, v%d" % (dst, r))

ACC = 0; LB = [160, 192]; BT = [224, 228]; AF = [232, 236]; VO = 240
VCA = 248; RB = 249; REM = 250; PEND = 251; TID = 252; VOA = 253; PSEL = 254
SM = 28
def rec(i): return 160 + 4 * i
def kad(i): return 200 + i
T0 = 210
MSK = 20
def msk(i): return "s[%d:%d]" % (MSK + 2 * i, MSK + 2 * i + 1)

def lds_init():
    z = 224; a = 232
    for k in range(7): e("v_mov_b32 v%d, 0" % (z + k + (1 if k == 6 else 0)))
    e("v_mov_b32 v%d, -1" % (z + 6))
    e("v_and_b32 v%d, 63, v%d" % (a, TID))
    e("s_lshl_b32 s4, s17, 11")
    e("s_add_u32 s4, s4, %d" % L_SLOT)
    e("v_lshl_add_u32 v%d, v%d, 4, s4" % (a, a))
    e("v_add_u32 v%d, 32768, v%d" % (a + 3, a))
    e("v_lshlrev_b32 v%d, 2, v%d" % (a + 1, TID))
    for k in range(5):
        e("ds_write_b128 v%d, v[%d:%d] offset:%d" % (a if k < 2 else a + 3, z + 4, z + 7, 16384 * (k if k < 2 else k - 2)))
    e("ds_write_b32 v%d, v%d offset:%d" % (a + 1, z, L_CNT))

def k2():
    kstart(NAME + "_kernel")
    e("s_cmp_ge_u32 s2, %d" % NB)
    e("s_cbranch_scc1 L2_end")
    e("s_load_dwordx16 s[20:35], s[0:1], 0")
    e("s_load_dwordx2 s[12:13], s[0:1], 72")
    e("s_load_dwordx4 s[36:39], s[0:1], 80")
    e("s_memrealtime s[60:61]")
    CPF = opt("cpf", 0)
    if CPF:
        e("s_getpc_b64 s[4:5]")
        lab("L0_pc")
        e("s_lshr_b32 s6, s2, 3")
        e("s_mul_i32 s6, s6, 768")
        e("s_sub_u32 s7, s6, L0_pc-%s_kernel" % NAME)
        e("s_ashr_i32 s6, s7, 31")
        e("s_add_u32 s4, s4, s7")
        e("s_addc_u32 s5, s5, s6")
        e("v_lshlrev_b32 v2, 7, v0")
        e("v_mov_b32 v3, s5")
        e("v_add_co_u32 v2, vcc, s4, v2")
        e("s_nop 1")
        e("v_addc_co_u32 v3, vcc, 0, v3, vcc")
        e("v_cmp_gt_u32 vcc, 6, v0")
        e("s_and_saveexec_b64 s[4:5], vcc")
        e("s_cbranch_execz L0_nc")
        e("global_load_dword v223, v[2:3], off")
        lab("L0_nc")
        e("s_mov_b64 exec, -1")
    stamp()
    t = T0
    P_CNT = 0; P_BASE = 1024; P_STG = 2048; L_NON = L_WT + 64; L_TB = L_OFFS
    JUNK = 223
    e("v_mov_b32 v%d, v0" % TID)
    e("v_lshrrev_b32 v1, 6, v0")
    e("v_and_b32 v4, 63, v0")
    e("s_and_b32 s4, s2, 7")
    e("s_lshr_b32 s5, s2, 3")
    e("v_readfirstlane_b32 s17, v1")
    if NB == 256:
        e("s_lshl_b32 s16, s4, 5")
        e("s_add_u32 s16, s16, s5")
    else:
        e("s_mul_i32 s16, s4, 31")
        e("s_min_u32 s4, s4, 2")
        e("s_add_u32 s16, s16, s4")
        e("s_add_u32 s16, s16, s5")
    e("s_min_u32 s3, s2, %d" % (G - 1))
    e("s_mul_i32 s4, s3, 320")
    e("s_mul_i32 s5, s17, 40")
    e("s_add_u32 s4, s4, s5")
    e("v_add_u32 v5, s4, v4")
    e("v_lshlrev_b32 v1, 4, v5")
    e("v_mul_u32_u24 v2, 24, v5")
    e("v_lshlrev_b32 v3, 3, v5")
    e("v_lshlrev_b32 v72, 6, v5")
    e("v_and_b32 v6, 255, v0")
    e("v_lshlrev_b32 v6, 2, v6")
    e("v_mov_b32 v73, 0")
    e("ds_write_b32 v6, v73 offset:%d" % P_CNT)
    e("s_mov_b32 s46, -1")
    e("s_mov_b32 s47, 0xff")
    e("v_mov_b32 v66, %d" % (2 * ((1 << 26) // 5)))
    e("s_mov_b32 s7, 0x%x" % PHMUL)
    e("v_mov_b32 v5, 1")
    e("s_mov_b64 exec, s[46:47]")
    e("s_waitcnt lgkmcnt(0)")
    e("global_load_dwordx4 v[8:11], v1, s[28:29]")
    e("s_mov_b64 exec, -1")
    e("s_cmp_lg_u32 s17, 7")
    e("s_cbranch_scc1 L1_a")
    e("s_cmp_lt_u32 s2, %d" % (NB - 6))
    e("s_cbranch_scc1 L1_a")
    e("s_and_b32 s61, s61, 0x3ff")
    e("s_bitset1_b32 s61, 31")
    e("v_mov_b32 v76, s60")
    e("v_mov_b32 v77, s61")
    e("v_mov_b32 v78, 0")
    e("v_mov_b32 v79, 0")
    e("s_mov_b64 exec, 1")
    e("global_atomic_cmpswap_x2 v73, v[76:79], s[36:37] sc1")
    e("s_mov_b64 exec, -1")
    lab("L1_a")
    e("s_barrier")
    e("s_mov_b64 exec, s[46:47]")
    e("global_load_dwordx4 v[12:15], v1, s[26:27]")
    e("global_load_dwordx4 v[16:19], v2, s[22:23]")
    e("global_load_dwordx2 v[20:21], v2, s[22:23] offset:16")
    e("global_load_dwordx2 v[22:23], v3, s[24:25]")
    TE = opt("te", 0); TFL = FL[opt("tfl", "")]
    if TE: e("global_load_dword v%d, v72, s[20:21]%s" % (JUNK, TFL))
    e("s_mov_b64 exec, -1")
    pstamp()
    lds_init()
    e("v_lshlrev_b32 v4, 4, v4")
    e("s_mov_b32 s18, 0x05040100")
    e("s_mov_b32 s19, 0x07060302")
    e("s_mov_b64 exec, s[46:47]")
    e("s_waitcnt vmcnt(%d)" % (4 + TE))
    pstamp()
    for k in range(4):
        if NB == 256:
            e("v_mul_u32_u24 v%d, 429497, v%d" % (24 + k, 8 + k))
            e("v_lshrrev_b32 v%d, 24, v%d" % (24 + k, 24 + k))
        else:
            e("v_mul_u32_u24 v%d, 0xcccd, v%d" % (24 + k, 8 + k))
            e("v_lshrrev_b32 v%d, 21, v%d" % (24 + k, 24 + k))
        e("v_lshlrev_b32 v%d, 2, v%d" % (68 + k, 24 + k))
        e("ds_add_rtn_u32 v%d, v%d, v5 offset:%d" % (28 + k, 68 + k, P_CNT))
    for k in range(4):
        if NB == 256:
            e("v_mul_u32_u24 v6, 625, v%d" % (24 + k))
            e("v_add_u32 v6, 15, v6")
            e("v_lshrrev_b32 v6, 4, v6")
        else:
            e("v_mul_u32_u24 v6, 40, v%d" % (24 + k))
        e("v_sub_u32 v%d, v%d, v6" % (8 + k, 8 + k))
    def keyw(k):
        e("v_mad_u32_u24 v6, v%d, s7, v66" % (12 + k))
        e("v_mul_u32_u24 v7, %d, v%d" % ((1 << 26) // 5 + 1, 8 + k))
        e("v_and_b32 v7, 0x3ffffff, v7")
        e("v_sub_u32 v6, v6, v7")
        e("v_ashrrev_i32 v6, 26, v6")
        e("v_med3_i32 v6, v6, 0, %d" % (NPH - 1))
        e("v_lshl_add_u32 v6, v%d, 3, v6" % (8 + k))
        e("v_lshl_add_u32 v6, v%d, 9, v6" % (12 + k))
        e("v_lshlrev_b32 v%d, 2, v6" % (34 + 4 * k))
    def coefs(k):
        unpack("v48", k, 22)
        for j in range(3):
            unpack("v%d" % (49 + j), 3 * k + j, 16)
        for j in range(3):
            e("v_mul_f32 v%d, v48, v%d" % (49 + j, 49 + j))
        e("v_cvt_pk_bf16_f32 v%d, v48, v49" % (32 + 4 * k))
        e("v_cvt_pk_bf16_f32 v%d, v50, v51" % (33 + 4 * k))
    e("s_mov_b64 exec, -1")
    e("s_waitcnt lgkmcnt(0)")
    pstamp()
    e("s_barrier")
    pstamp()
    e("ds_read_b128 v[52:55], v4 offset:%d" % P_CNT)
    e("s_cmp_lg_u32 s17, 7")
    e("s_cbranch_scc1 L1_nt")
    e("global_load_dwordx2 v[74:75], v73, s[36:37] sc1")
    lab("L1_nt")
    e("s_waitcnt lgkmcnt(0)")
    e("v_add_u32 v57, v52, v53")
    e("v_add_u32 v58, v57, v54")
    e("v_add_u32 v59, v58, v55")
    e("v_mov_b32 v60, v59")
    wave_scan("v60")
    e("v_sub_u32 v60, v60, v59")
    e("v_add_u32 v61, v60, v52")
    e("v_add_u32 v62, v60, v57")
    e("v_add_u32 v63, v60, v58")
    e("ds_write_b128 v4, v[60:63] offset:%d" % P_BASE)
    e("s_mov_b64 exec, s[46:47]")
    for k in range(4):
        e("ds_read_b32 v%d, v%d offset:%d" % (24 + k, 68 + k, P_BASE))
    e("s_mov_b64 exec, -1")
    e("s_cmp_eq_u32 s17, 7")
    e("s_cbranch_scc1 L1_w1")
    e("s_waitcnt vmcnt(%d)" % TE)
    lab("L1_w1")
    e("s_waitcnt vmcnt(%d)" % (1 + TE))
    e("s_cmp_eq_u32 s17, 3")
    e("s_cselect_b32 s59, s2, 160")
    e("s_min_u32 s59, s59, 160")
    e("s_cmp_ge_u32 s59, 160")
    e("s_cbranch_scc1 L1_b")
    e("s_mul_i32 s4, s2, 1639")
    e("s_lshr_b32 s4, s4, 16")
    e("s_mul_i32 s5, s4, 40")
    e("s_sub_u32 s5, s2, s5")
    e("s_and_b32 s6, s5, 1")
    e("s_lshr_b32 s5, s5, 1")
    e("s_cmp_lt_u32 s5, 8")
    e("s_cselect_b64 s[40:41], s[32:33], s[34:35]")
    e("s_cselect_b32 s42, 0, 8")
    e("s_sub_u32 s42, s5, s42")
    e("s_lshl_b32 s42, s42, 13")
    e("s_lshl_b32 s4, s4, 6")
    e("s_add_u32 s42, s42, s4")
    e("s_lshl_b32 s6, s6, 3")
    e("s_add_u32 s42, s42, s6")
    e("v_lshrrev_b32 v80, 8, v4")
    e("v_bfe_u32 v81, v4, 6, 2")
    e("v_bfe_u32 v82, v4, 4, 2")
    e("v_lshlrev_b32 v83, 11, v80")
    e("v_lshl_add_u32 v83, v81, 4, v83")
    e("v_lshl_add_u32 v83, v82, 1, v83")
    e("v_add_u32 v83, s42, v83")
    e("s_lshl_b32 s5, s5, 6")
    e("v_lshl_add_u32 v80, v80, 4, s5")
    e("global_load_dwordx4 v[96:99], v80, s[30:31]")
    for i in range(8):
        e("global_load_ushort v%d, v83, s[40:41] offset:%d" % (88 + i, 256 * i))
    lab("L1_b")
    e("s_mov_b64 exec, s[46:47]")
    PFA = opt("k1pf", 1) and not TE and not opt("noa", 0)
    if PFA: e("global_load_dword v%d, v72, s[20:21]%s" % (JUNK, TFL))
    def tagtab():
        e("s_mov_b64 exec, -1")
        e("s_cmp_lg_u32 s17, 7")
        e("s_cbranch_scc1 L1_c")
        e("s_mov_b32 s6, %d" % (1 << 20))
        e("s_waitcnt vmcnt(%d)" % int(PFA))
        lab("L1_npoll")
        e("v_readfirstlane_b32 s5, v75")
        e("s_cmp_lg_u32 s5, 0")
        e("s_cbranch_scc1 L1_non2")
        e("global_load_dwordx2 v[74:75], v73, s[36:37] sc1")
        e("s_sub_u32 s6, s6, 1")
        e("s_waitcnt vmcnt(0)")
        e("s_cbranch_scc0 L1_npoll")
        lab("L1_non2")
        e("v_readfirstlane_b32 s4, v74")
        e("s_and_b32 s5, s5, 0x3ff")
        e("v_mov_b32 v74, s4")
        e("v_mov_b32 v75, s5")
        e("ds_write_b64 v73, v[74:75] offset:%d" % L_NON)
        e("s_cmp_ge_u32 s2, %d" % G)
        e("s_cbranch_scc1 L1_c")
        for k in range(4):
            e("v_lshl_or_b32 v%d, v%d, 11, v%d" % (60 + k, 52 + k, 60 + k))
            e("v_lshl_or_b32 v%d, v75, 22, v%d" % (76 + 2 * k, 60 + k))
            e("v_mov_b32 v%d, v74" % (77 + 2 * k))
        e("s_lshl_b32 s4, s2, 11")
        e("s_add_u32 s4, s4, %d" % WS_TAB)
        e("v_lshl_add_u32 v5, v4, 1, s4")
        e("global_store_dwordx4 v5, v[76:79], s[38:39] sc1")
        e("global_store_dwordx4 v5, v[80:83], s[38:39] offset:16 sc1")
        lab("L1_c")
        e("s_mov_b64 exec, s[46:47]")
    for k in range(4):
        keyw(k); coefs(k)
        if k == 0: e("s_waitcnt lgkmcnt(0)")
        e("v_add_lshl_u32 v%d, v%d, v%d, 4" % (24 + k, 24 + k, 28 + k))
        e("ds_write_b96 v%d, v[%d:%d] offset:%d" % (24 + k, 32 + 4 * k, 34 + 4 * k, P_STG))
        if k == opt("tk", 1): tagtab()
    e("s_mov_b64 exec, -1")
    e("v_lshlrev_b32 v6, 4, v0")
    e("s_mul_i32 s4, s2, %d" % (CH * 16))
    e("s_add_u32 s40, s38, s4")
    e("s_addc_u32 s41, s39, 0")
    e("s_mov_b64 s[8:9], s[20:21]")
    e("s_mov_b64 s[14:15], s[38:39]")
    e("s_mov_b64 s[62:63], s[20:21]")
    e("s_waitcnt lgkmcnt(0)")
    pstamp()
    e("s_barrier")
    pstamp()
    e("ds_read_b64 v[74:75], v73 offset:%d" % L_NON)
    e("s_cmp_ge_u32 s17, 4")
    e("s_cbranch_scc1 L1_d")
    e("s_cmp_ge_u32 s2, %d" % G)
    e("s_cbranch_scc1 L1_d")
    for k in range(5):
        e("ds_read_b96 v[%d:%d], v6 offset:%d" % (12 + 4 * k, 14 + 4 * k, P_STG + 4096 * k))
    e("v_add_u32 v7, 8192, v6")
    e("v_add_u32 v8, 16384, v6")
    for k in range(5):
        e("s_waitcnt lgkmcnt(%d)" % (4 - k))
        e("v_mov_b32 v%d, v74" % (15 + 4 * k))
        e("v_lshl_or_b32 v%d, v75, 25, v%d" % (14 + 4 * k, 14 + 4 * k))
        a_, o_ = [(6, 0), (7, -4096), (7, 0), (8, -4096), (8, 0)][k]
        e("global_store_dwordx4 v%d, v[%d:%d], s[40:41] offset:%d sc1" % (a_, 12 + 4 * k, 15 + 4 * k, o_))
    e("s_cmp_ge_u32 s59, 160")
    e("s_cbranch_scc1 L1_d")
    e("s_waitcnt vmcnt(%d)" % (5 + int(PFA)))
    for i in range(8):
        e("v_lshlrev_b32 v%d, 16, v%d" % (88 + i, 88 + i))
        unpack("v84", i, 96)
        e("v_mul_f32 v%d, v84, v%d" % (88 + i, 88 + i))
    for i in range(4):
        e("v_cvt_pk_bf16_f32 v%d, v%d, v%d" % (204 + i, 88 + 2 * i, 89 + 2 * i))
    e("s_lshl_b32 s4, s2, 10")
    e("s_add_u32 s4, s4, %d" % WS_WF)
    e("v_add_u32 v7, s4, v4")
    e("global_store_dwordx4 v7, v[204:207], s[38:39] sc1")
    lab("L1_d")
    stamp()
    e("s_waitcnt lgkmcnt(0)")
    e("v_readfirstlane_b32 s56, v74")
    e("v_readfirstlane_b32 s58, v75")
    e("v_add_u32 v%d, %d, v72" % (JUNK - 1, N * 512))
    e("s_lshl_b32 s57, s58, 25")
    par = t + 4
    e("v_lshrrev_b32 v%d, 1, v%d" % (t + 1, TID))
    e("v_lshlrev_b32 v%d, 2, v%d" % (t + 5, t + 1))
    e("v_and_b32 v%d, 1, v%d" % (par, TID))
    e("v_mul_u32_u24 v%d, %d, v%d" % (t + 1, CH, t + 1))
    e("s_or_b32 s9, s9, 0x00100000")
    e("s_mov_b32 s10, %d" % (N * 1024))
    e("s_mov_b32 s11, 0x00800000")
    def zero_acc():
        for r in range(144, -16, -16):
            e("v_mfma_f32_32x32x16_bf16 v[%d:%d], v[224:227], v[224:227], 0" % (r, r + 15))
    ZL = 0
    e("s_cmp_ge_u32 s17, 4")
    e("s_cbranch_scc1 L1_p")
    e("s_nop 4")
    zero_acc()
    if opt("pace", 1): e("s_waitcnt vmcnt(0)")
    pstamp()
    if FINE == 2: nstamp[0] -= 1
    e("s_branch L1_e")
    lab("L1_p")
    e("v_add_u32 v%d, -256, v%d" % (t, TID))
    e("v_min_u32 v%d, %d, v%d" % (t + 2, G - 1, t))
    e("s_lshl_b32 s4, s16, 3")
    e("s_add_u32 s4, s4, %d" % WS_TAB)
    e("v_lshl_add_u32 v%d, v%d, 11, s4" % (t + 2, t + 2))
    e("s_mov_b32 s6, %d" % (1 << 20))
    e("global_load_dwordx2 v[%d:%d], v%d, s[14:15] sc1" % (t + 6, t + 7, t + 2))
    zero_acc()
    e("s_branch L2_poll1")
    lab("L2_poll")
    e("global_load_dwordx2 v[%d:%d], v%d, s[14:15] sc1" % (t + 6, t + 7, t + 2))
    lab("L2_poll1")
    e("s_waitcnt vmcnt(0)")
    e("v_lshrrev_b32 v%d, 22, v%d" % (t + 3, t + 6))
    e("v_cmp_ne_u32 vcc, s56, v%d" % (t + 7))
    e("v_cmp_ne_u32 s[4:5], s58, v%d" % (t + 3))
    e("s_or_b64 exec, vcc, s[4:5]")
    e("s_cbranch_scc0 L2_got")
    if opt("psl", 0): e("s_sleep %d" % opt("psl", 0))
    e("s_sub_u32 s6, s6, 1")
    e("s_cbranch_scc0 L2_poll")
    e("v_mov_b32 v%d, 0" % (t + 6))
    lab("L2_got")
    pstamp()
    if DIAG: e("s_mov_b32 s98, s6")
    e("s_mov_b64 exec, -1")
    e("v_cmp_gt_u32 vcc, %d, v%d" % (G, t))
    e("v_lshlrev_b32 v%d, 2, v%d" % (t, t))
    e("s_nop 0")
    e("v_cndmask_b32 v%d, 0, v%d, vcc" % (t + 6, t + 6))
    e("ds_write_b32 v%d, v%d offset:%d" % (t, t + 6, L_TB))
    e("s_waitcnt lgkmcnt(0)")
    lab("L1_e")
    e("s_barrier")
    e("ds_read_b32 v%d, v%d offset:%d" % (t + 6, t + 5, L_TB))
    e("s_setprio 3")
    e("s_mov_b32 s44, 0")
    e("s_waitcnt lgkmcnt(0)")
    stamp()
    e("v_and_b32 v%d, 0x7ff, v%d" % (t + 2, t + 6))
    e("v_bfe_u32 v%d, v%d, 11, 11" % (REM, t + 6))
    e("v_add3_u32 v%d, v%d, v%d, v%d" % (t + 1, t + 1, t + 2, par))
    e("v_sub_u32 v%d, v%d, v%d" % (REM, REM, par))
    e("v_lshlrev_b32 v%d, 4, v%d" % (RB, t + 1))
    NS = 4
    RFL = FL[opt("rfl", "sc1")]
    lab("L2_batch")
    for i in range(U):
        e("v_cmpx_lt_i32 %s, %d, v%d" % (msk(i), 2 * i, REM))
        if i >= NS:
            e("s_mov_b32 s42, %d" % i)
            e("s_cbranch_execz L2_ld")
        e("global_load_dwordx4 v[%d:%d], v%d, s[14:15] offset:%d%s" % (rec(i), rec(i) + 3, RB, 32 * i, RFL))
    e("s_mov_b32 s42, %d" % U)
    lab("L2_ld")
    e("s_mov_b64 exec, -1")
    fstamp()
    if ZL:
        e("s_cmp_gt_u32 s59, 160")
        e("s_cbranch_scc1 L2_noz")
        e("s_nop 2")
        zero_acc()
        lab("L2_noz")
    def stage(name, body):
        for i in range(U):
            if i >= NS:
                e("s_cmp_le_u32 s42, %d" % i)
                e("s_cbranch_scc1 L2_%s" % name)
            e("s_mov_b64 exec, %s" % msk(i))
            body(i)
        lab("L2_%s" % name)
    tab = {(0, 0): 0, (1, 1): 1, (1, 2): 2, (1, 3): 3,
           (4, 0): 1, (5, 1): 0, (6, 3): 2, (7, 2): 3,
           (8, 0): 2, (9, 2): 0, (10, 1): 3, (11, 3): 1,
           (12, 0): 3, (13, 3): 0, (14, 2): 1, (15, 1): 2}
    e("v_mov_b32 v%d, 64" % PSEL)
    for p_ in range(4):
        m_ = 0
        for (m, q), v in tab.items():
            if v == p_: m_ |= 1 << (16 * q + m)
        e("s_mov_b32 exec_lo, 0x%x" % (m_ & 0xffffffff))
        e("s_mov_b32 exec_hi, 0x%x" % (m_ >> 32))
        e("v_mov_b32 v%d, %d" % (PSEL, 16 * p_))
    e("s_mov_b64 exec, -1")
    va = 255; vo = 244; vb = 245; vf = 246; D0 = AF[0]
    e("v_and_b32 v%d, 63, v%d" % (vo, TID))
    e("s_mul_i32 s4, s17, %d" % (5 * 2048))
    e("s_add_u32 s4, s4, %d" % L_SLOT)
    e("v_lshl_add_u32 v%d, v%d, 4, s4" % (va, vo))
    e("v_lshlrev_b32 v%d, 2, v%d" % (vo, vo))
    e("v_and_b32 v%d, 28, v%d" % (vb, vo))
    e("s_mul_i32 s48, s17, %d" % (5 * OFFS_STRIDE))
    e("s_mul_i32 s49, s17, %d" % (5 * COEF_STRIDE))
    e("v_add_u32 v%d, s48, v%d" % (vo, vo))
    e("s_lshl_b32 s5, s17, 2")
    e("v_mov_b32 v%d, s5" % vf)
    e("v_cmp_lt_i32 vcc, %d, v%d" % (2 * U, REM))
    e("s_cmp_lg_u64 vcc, 0")
    e("s_cselect_b32 s43, 2, 0")
    one = t + 1
    e("v_mov_b32 v%d, 1" % one)
    e("v_and_b32 v%d, 63, v%d" % (t, TID))
    e("v_lshlrev_b32 v%d, 5, v%d" % (t, t))
    e("v_mov_b32 v%d, 0" % PEND)
    e("s_mov_b32 s6, %d" % (1 << 20))
    bad = t + 2
    if FINE == 1:
        e("s_waitcnt vmcnt(0)")
        fstamp()
    lab("L2_chk")
    e("s_waitcnt vmcnt(0)")
    e("v_mov_b32 v%d, 0" % bad)
    def b_ck(i):
        e("v_xor_b32 v%d, s57, v%d" % (rec(i) + 2, rec(i) + 2))
        e("v_xor_b32 v%d, s56, v%d" % (rec(i) + 3, rec(i) + 3))
        e("v_lshrrev_b32 v%d, 25, v%d" % (t + 3, rec(i) + 2))
        e("v_or3_b32 v%d, v%d, v%d, v%d" % (bad, bad, t + 3, rec(i) + 3))
    stage("ck", b_ck)
    e("s_mov_b64 exec, -1")
    e("v_cmp_ne_u32 vcc, 0, v%d" % bad)
    e("s_cmp_eq_u64 vcc, 0")
    e("s_cbranch_scc1 L2_ok")
    e("s_sub_u32 s6, s6, 1")
    e("s_cbranch_scc1 L2_end")
    if opt("rsl", 0): e("s_sleep %d" % opt("rsl", 0))
    stage("rl", lambda i: e("global_load_dwordx4 v[%d:%d], v%d, s[14:15] offset:%d sc1" % (rec(i), rec(i) + 3, RB, 32 * i)))
    e("s_mov_b64 exec, -1")
    e("s_branch L2_chk")
    lab("L2_ok")
    if DIAG: e("s_mov_b32 s97, s6")
    fstamp()
    def b_at(i):
        e("v_and_b32 v%d, 0x7fc, v%d" % (kad(i), rec(i) + 2))
        e("ds_add_rtn_u32 v%d, v%d, v%d offset:%d" % (rec(i) + 3, kad(i), one, L_CNT))
    stage("at", b_at)
    e("s_mov_b64 exec, s[46:47]")
    e("s_cmp_gt_u32 s59, 160")
    e("s_cbranch_scc1 L2_nf")
    if opt("k1pf", 1): e("global_load_dword v%d, v%d, s[62:63]%s" % (JUNK, JUNK - 1, TFL))
    e("s_cmp_eq_u32 s59, 160")
    e("s_cbranch_scc1 L2_nf")
    e("s_lshl_b32 s4, s59, 3")
    e("s_add_u32 s4, s4, %d" % WS_WFL)
    e("v_mov_b32 v%d, s4" % (t + 3))
    e("v_mov_b32 v242, s56")
    e("v_mov_b32 v243, s58")
    e("s_mov_b64 exec, 1")
    e("global_store_dwordx2 v%d, v[242:243], s[14:15] sc1" % (t + 3))
    e("s_mov_b64 exec, s[46:47]")
    lab("L2_nf")
    e("s_mov_b32 s59, 161")
    e("s_waitcnt lgkmcnt(0)")
    e("s_barrier")
    stamp()
    cc = 212
    e("ds_read_b128 v[%d:%d], v%d offset:%d" % (cc, cc + 3, t, L_CNT))
    e("ds_read_b128 v[%d:%d], v%d offset:%d" % (cc + 4, cc + 7, t, L_CNT + 16))
    lim = 220; tmp = 221; en = 222; nb_ = 223
    f = 224; fo = 232
    e("s_waitcnt lgkmcnt(0)")
    e("v_add3_u32 v%d, v%d, v%d, v%d" % (lim, cc, cc + 1, cc + 2))
    k = 3
    while k < NPH:
        if k + 1 < NPH:
            e("v_add3_u32 v%d, v%d, v%d, v%d" % (lim, lim, cc + k, cc + k + 1)); k += 2
        else:
            e("v_add_u32 v%d, v%d, v%d" % (lim, lim, cc + k)); k += 1
    e("v_sub_u32 v%d, 64, v%d" % (lim, lim))
    e("v_max_i32 v%d, 0, v%d" % (lim, lim))
    e("v_and_b32 v%d, -8, v%d" % (tmp, lim))
    e("v_min_u32 v%d, %d, v%d" % (f, 8 * R0, tmp))
    for k in range(1, NPH):
        e("v_add_u32 v%d, v%d, v%d" % (lim, lim, cc + k - 1))
        e("v_add_u32 v%d, v%d, v%d" % (en, f + k - 1, cc + k - 1))
        e("v_and_b32 v%d, -8, v%d" % (tmp, lim))
        e("v_min_u32 v%d, %d, v%d" % (tmp, 8 * (R0 + k), tmp))
        e("v_max_u32 v%d, v%d, v%d" % (f + k, tmp, en))
    e("ds_write_b128 v%d, v[%d:%d] offset:%d" % (t, f, f + 3, L_ST))
    e("ds_write_b128 v%d, v[%d:%d] offset:%d" % (t, f + 4, f + 7, L_ST + 16))
    st = lambda i: 232 + i
    def b_st(i):
        e("ds_read_b32 v%d, v%d offset:%d" % (st(i), kad(i), L_ST))
        e("v_and_b32 v%d, 0x7e0, v%d" % (kad(i), kad(i)))
        e("v_lshlrev_b32 v%d, 6, v%d" % (kad(i), kad(i)))
    stage("st", b_st)
    e("s_waitcnt lgkmcnt(0)")
    fstamp()
    def b_pl(i):
        e("v_add_u32 v%d, v%d, v%d" % (st(i), st(i), rec(i) + 3))
        e("v_min_u32 v%d, 64, v%d" % (st(i), st(i)))
        e("v_lshl_add_u32 v%d, v%d, 4, v%d" % (kad(i), st(i), kad(i)))
        e("v_lshrrev_b32 v%d, 6, v%d" % (st(i), st(i)))
        e("ds_write_b96 v%d, v[%d:%d] offset:%d" % (kad(i), rec(i), rec(i) + 2, L_SLOT))
        e("v_lshl_or_b32 v%d, v%d, %d, v%d" % (PEND, st(i), i, PEND))
    stage("pl", b_pl)
    e("s_mov_b64 exec, -1")
    e("v_cmp_ne_u32 vcc, 0, v%d" % PEND)
    e("s_cmp_lg_u64 vcc, 0")
    e("s_addc_u32 s4, s43, 0")
    e("v_mov_b32 v%d, s4" % (t + 2))
    e("ds_write_b32 v%d, v%d offset:%d" % (vf, t + 2, L_WT))
    e("s_waitcnt lgkmcnt(0)")
    e("s_barrier")
    stamp()
    for u in range(5):
        e("ds_read_b32 v%d, v%d offset:%d" % (D0 + u, va, 2048 * u + 8))
    e("ds_read_b32 v238, v%d offset:%d" % (vb, L_WT))
    vb = 238
    for r in range(LB[0], LB[0] + 32, 2): e("v_mov_b64 v[%d:%d], 0" % (r, r + 1))
    for u in range(5):
        e("s_waitcnt lgkmcnt(5)")
        e("v_lshrrev_b32 v%d, 11, v%d" % (D0 + u, D0 + u))
        e("v_lshlrev_b32 v%d, 10, v%d" % (D0 + u, D0 + u))
        e("v_cmp_gt_u32 s[%d:%d], s10, v%d" % (SM + 2 * u, SM + 2 * u + 1, D0 + u))
        if opt("small", 0): e("v_and_b32 v%d, 0xffc00, v%d" % (D0 + u, D0 + u))
        e("ds_write_b32 v%d, v%d offset:%d" % (vo, D0 + u, L_OFFS + OFFS_STRIDE * u))
    e("s_or_b64 s[4:5], s[%d:%d], s[%d:%d]" % (SM, SM + 1, SM + 2, SM + 3))
    for u in range(2, 5):
        e("s_or_b64 s[4:5], s[4:5], s[%d:%d]" % (SM + 2 * u, SM + 2 * u + 1))
    e("s_bitset1_b32 s5, 24")
    e("s_ff1_i32_b64 s6, s[4:5]")
    e("s_and_b32 s6, s6, 0x38")
    for u in range(5):
        e("s_lshr_b64 s[%d:%d], s[%d:%d], s6" % (SM + 2 * u, SM + 2 * u + 1, SM + 2 * u, SM + 2 * u + 1))
    e("s_lshl_b32 s7, s6, 2")
    e("s_add_u32 s7, s7, s48")
    e("v_mov_b32 v%d, s7" % VOA)
    e("s_mul_i32 s7, s6, 10")
    e("s_add_u32 s7, s7, s49")
    e("v_add_u32 v%d, s7, v%d" % (VCA, PSEL))
    e("s_lshr_b32 s6, s6, 3")
    e("s_sub_u32 s40, 8, s6")
    e("s_cmp_lt_u32 s17, 4")
    e("s_cselect_b32 s41, %d, %d" % (opt("po", 1), opt("py", 0)))
    e("s_add_u32 s41, s41, s6")
    def ooff(g): return L_OFFS + (g % 5) * OFFS_STRIDE + (g // 5) * 32
    def coff(g): return L_COEF + (g % 5) * COEF_STRIDE + (g // 5) * 80
    def rdoff(g, r=VO):
        e("ds_read_b128 v[%d:%d], v%d offset:%d" % (r, r + 3, VOA, ooff(g)))
        e("ds_read_b128 v[%d:%d], v%d offset:%d" % (r + 4, r + 7, VOA, ooff(g) + 16))
    NC = [38, 39]
    lid = [0]
    def count(u, buf):
        m = SM + 2 * u
        e("s_and_b32 s%d, s%d, 0xff" % (NC[buf], m))
        e("s_bcnt1_i32_b32 s%d, s%d" % (NC[buf], NC[buf]))
        e("s_lshr_b64 s[%d:%d], s[%d:%d], 8" % (m, m + 1, m, m + 1))
    def ladder(buf, wait=True, r=VO):
        n = lid[0]; lid[0] += 1
        for i in range(8):
            e("s_cmp_le_u32 s%d, %d" % (NC[buf], i))
            e("s_cbranch_scc1 L2_w%d_%d" % (n, i if wait else 8))
            e("buffer_load_dwordx4 v[%d:%d], v%d, s[8:11], 0 offen" %
              (LB[buf] + 4 * i, LB[buf] + 4 * i + 3, r + i))
        if wait:
            e("s_branch L2_w%d_8" % n)
            for i in range(8):
                lab("L2_w%d_%d" % (n, i))
                e("s_waitcnt vmcnt(%d)" % i)
        lab("L2_w%d_8" % n)
        if wait: e("s_waitcnt vmcnt(8)")
    rdoff(0)
    count(0, 0)
    count(1, 1)
    e("s_waitcnt lgkmcnt(0)")
    fstamp()
    ladder(0, False)
    rdoff(1)
    for r in range(LB[1], LB[1] + 32, 2): e("v_mov_b64 v[%d:%d], 0" % (r, r + 1))
    e("v_and_b32 v239, 1, v%d" % vb)
    e("v_cmp_ne_u32 vcc, 0, v239")
    e("s_or_b32 s44, vcc_lo, vcc_hi")
    e("v_cmp_lt_u32 vcc, 1, v%d" % vb)
    e("s_or_b32 s45, vcc_lo, vcc_hi")
    CF = 224
    for u in range(5):
        e("ds_read_b64 v[%d:%d], v%d offset:%d" % (CF + 2 * u, CF + 2 * u + 1, va, 2048 * u))
    sa = 234; sb = 235; kp = 236; sd = 237; wa = 238; rc = 239
    e("v_mov_b32 v%d, s18" % sa)
    e("v_mov_b32 v%d, s19" % sb)
    e("v_bfe_u32 v%d, v%d, 3, 3" % (wa, TID))
    e("v_mul_u32_u24 v%d, 80, v%d" % (wa, wa))
    e("v_bfe_u32 v%d, v%d, 1, 2" % (kp, TID))
    e("v_lshl_add_u32 v%d, v%d, 2, v%d" % (wa, kp, wa))
    e("v_add_u32 v%d, s49, v%d" % (wa, wa))
    e("s_mov_b32 s6, 0xaaaaaaaa")
    e("s_mov_b32 s7, 0xaaaaaaaa")
    e("s_mov_b64 exec, s[6:7]")
    e("v_mov_b32 v%d, 0x01000504" % sa)
    e("v_mov_b32 v%d, 0x03020706" % sb)
    e("v_add_u32 v%d, 32, v%d" % (wa, wa))
    e("s_mov_b64 exec, -1")
    e("s_waitcnt lgkmcnt(5)")
    n1 = lid[0]
    ladder(1, False)
    e("s_waitcnt lgkmcnt(0)")
    for u in range(5):
        lo = CF + 2 * u; hi = lo + 1
        e("v_cndmask_b32 v%d, v%d, v%d, s[6:7]" % (sd, hi, lo))
        e("v_cndmask_b32 v%d, v%d, v%d, s[6:7]" % (kp, lo, hi))
        e("s_nop 0")
        e("v_mov_b32_dpp v%d, v%d quad_perm:[1,0,3,2] row_mask:0xf bank_mask:0xf" % (rc, sd))
        e("v_perm_b32 v%d, v%d, v%d, v%d" % (lo, rc, kp, sa))
        e("v_perm_b32 v%d, v%d, v%d, v%d" % (hi, rc, kp, sb))
        e("ds_write2_b32 v%d, v%d, v%d offset0:0 offset1:4" % (wa, lo, hi))
        if u < 4: e("v_add_u32 v%d, %d, v%d" % (wa, COEF_STRIDE, wa))
    e("v_and_b32 v%d, 63, v%d" % (rc, TID))
    e("v_mul_u32_u24 v%d, 80, v%d" % (rc, rc))
    e("v_add_u32 v%d, s49, v%d" % (rc, rc))
    e("s_waitcnt lgkmcnt(0)")
    for r in range(BT[0], BT[0] + 8, 2): e("v_mov_b64 v[%d:%d], 0" % (r, r + 1))
    e("s_mov_b64 exec, s[46:47]")
    e("ds_write_b128 v%d, v[%d:%d] offset:%d" % (rc, BT[0], BT[0] + 3, L_COEF + 64))
    e("s_mov_b64 exec, -1")
    e("ds_read_b128 v[%d:%d], v%d offset:%d" % (AF[0], AF[0] + 3, VCA, coff(0)))
    def wfl_load():
        e("v_and_b32 v254, 63, v%d" % TID)
        e("v_min_u32 v254, 39, v254")
        e("s_and_b32 s4, s17, 3")
        e("s_mul_i32 s4, s4, 320")
        e("s_add_u32 s4, s4, %d" % WS_WFL)
        e("v_lshl_add_u32 v254, v254, 3, s4")
        e("global_load_dwordx2 v[254:255], v254, s[14:15] sc1")
    wfl_load()
    e("s_barrier")
    for i in range(8):
        e("s_cmp_le_u32 s%d, %d" % (NC[1], i))
        e("s_cbranch_scc1 L2_f%d" % i)
    e("s_branch L2_f8")
    for i in range(9):
        lab("L2_f%d" % i)
        e("s_waitcnt vmcnt(%d)" % i)
    e("s_waitcnt lgkmcnt(0)")
    fstamp()
    X = opt("x", "")
    VAR = opt("var", 1)
    out.append(".p2align 6")
    lab("L2_sweep")
    for g in range(10):
        u = g % 5; buf = g & 1; L = LB[buf]; A = AF[buf]
        u2 = (g + 2) % 5
        rdoff(g + 2)
        e("ds_read_b128 v[%d:%d], v%d offset:%d" % (AF[buf ^ 1], AF[buf ^ 1] + 3, VCA, coff(g + 1)))
        def body(np_):
            def P(j):
                if "P" in X: return
                d = j >> 1; s = "s19" if j & 1 else "s18"
                for tt in range(np_):
                    e("v_perm_b32 v%d, v%d, v%d, %s" % (BT[j & 1] + tt, L + 4 * (2 * tt + 1) + d, L + 4 * (2 * tt) + d, s))
            def M(j):
                if "M" in X: return
                a = ACC + 32 * u + 4 * j
                if np_ == 2:
                    e("v_mfma_f32_16x16x16_bf16 v[%d:%d], v[%d:%d], v[%d:%d], v[%d:%d]" %
                      (a, a + 3, A, A + 1, BT[j & 1], BT[j & 1] + 1, a, a + 3))
                else:
                    e("v_mfma_f32_16x16x32_bf16 v[%d:%d], v[%d:%d], v[%d:%d], v[%d:%d]" %
                      (a, a + 3, A, A + 3, BT[j & 1], BT[j & 1] + 3, a, a + 3))
            P(0); P(1); M(0)
            for j in range(2, 8):
                P(j); M(j - 1)
            e("s_nop 0")
            M(7)
        if VAR:
            e("s_cmp_gt_u32 s%d, 6" % NC[buf])
            e("s_cbranch_scc1 L2_v4_%d" % g)
            e("s_cmp_gt_u32 s%d, 4" % NC[buf])
            e("s_cbranch_scc1 L2_v3_%d" % g)
            e("s_cmp_eq_u32 s%d, 0" % NC[buf])
            e("s_cbranch_scc1 L2_skip%d" % g)
            body(2)
            e("s_branch L2_skip%d" % g)
            lab("L2_v3_%d" % g)
            body(3)
            e("s_branch L2_skip%d" % g)
            lab("L2_v4_%d" % g)
            body(4)
        else:
            e("s_cmp_eq_u32 s%d, 0" % NC[buf])
            e("s_cbranch_scc1 L2_skip%d" % g)
            body(4)
        lab("L2_skip%d" % g)
        count(u2, buf)
        if g == 4:
            e("s_sub_u32 s40, s40, 1")
        if g == 9:
            e("v_add_u32 v%d, 160, v%d" % (VCA, VCA))
            e("v_add_u32 v%d, 64, v%d" % (VOA, VOA))
            e("s_sub_u32 s40, s40, 1")
        e("s_waitcnt lgkmcnt(0)")
        ladder(buf)
        if g in (4, 9):
            e("s_add_u32 s41, s41, 1")
            e("s_cmp_ge_u32 s41, %d" % opt("t2", 4)); e("s_cbranch_scc0 L2_pr%d" % g); e("s_setprio 2")
            e("s_cmp_ge_u32 s41, %d" % opt("t1", 6)); e("s_cbranch_scc0 L2_pr%d" % g); e("s_setprio 1")
            e("s_cmp_ge_u32 s41, %d" % opt("t0", 8)); e("s_cbranch_scc0 L2_pr%d" % g); e("s_setprio 0")
            lab("L2_pr%d" % g)
            e("s_cmp_lg_u32 s40, 0")
            e("s_cbranch_scc0 L2_swept" if g == 4 else "s_cbranch_scc1 L2_sweep")
    lab("L2_swept")
    e("s_or_b32 s6, s44, s45")
    e("s_cbranch_scc0 L2_epi")
    e("s_barrier")
    lds_init()
    e("s_waitcnt lgkmcnt(0)")
    e("s_barrier")
    e("s_cmp_lg_u32 s44, 0")
    e("s_cbranch_scc1 L2_pass")
    e("v_add_u32 v%d, %d, v%d" % (RB, 32 * U, RB))
    e("v_add_u32 v%d, %d, v%d" % (REM, -2 * U, REM))
    e("s_branch L2_batch")
    lab("L2_pass")
    for i in range(U):
        e("v_and_b32 v%d, %d, v%d" % (t, 1 << i, PEND))
        e("v_cmp_ne_u32 %s, 0, v%d" % (msk(i), t))
        e("s_mov_b64 exec, %s" % msk(i))
        e("global_load_dwordx4 v[%d:%d], v%d, s[14:15] offset:%d sc1" % (rec(i), rec(i) + 3, RB, 32 * i))
        e("s_mov_b64 exec, -1")
    e("s_mov_b32 s42, %d" % U)
    e("s_branch L2_ld")
    lab("L2_epi")
    stamp()
    e("s_mov_b32 s6, %d" % (1 << 20))
    lab("L2_wchk")
    e("v_cmp_ne_u32 vcc, s56, v254")
    e("v_cmp_ne_u32 s[4:5], s58, v255")
    e("s_or_b64 vcc, vcc, s[4:5]")
    e("s_cbranch_scc0 L2_wok")
    wfl_load()
    e("s_sub_u32 s6, s6, 1")
    e("s_waitcnt vmcnt(0)")
    e("s_cbranch_scc0 L2_wchk")
    lab("L2_wok")
    e("s_setprio 0")
    LC = 245; lane = 253
    e("v_and_b32 v%d, 63, v%d" % (lane, TID))
    e("v_lshlrev_b32 v%d, 4, v%d" % (LC, lane))
    def wreg(f_): return 160 + 4 * f_ if f_ < 20 else 4 * (f_ - 20)
    e("s_sub_u32 s4, s17, 4")
    e("s_mul_i32 s4, s4, 40960")
    e("s_add_u32 s4, s4, %d" % (WS_WF + 4096))
    e("s_add_u32 s46, s14, s4")
    e("s_addc_u32 s47, s15, 0")
    wl = [0]
    def wload(lo, hi):
        n = wl[0]; wl[0] += 1
        e("s_cmp_lt_u32 s17, 4")
        e("s_cbranch_scc1 L2_nw%d" % n)
        for f_ in range(lo, hi):
            if f_ and f_ % 8 == 0:
                e("s_add_u32 s46, s46, 8192")
                e("s_addc_u32 s47, s47, 0")
            e("global_load_dwordx4 v[%d:%d], v%d, s[46:47] offset:%d sc1" % (wreg(f_), wreg(f_) + 3, LC, (f_ % 8) * 1024 - 4096))
        lab("L2_nw%d" % n)
    WLM = opt('wl', 1)
    wload(0, 8 if WLM else 4)
    LA = 240; TS = 241; LBB = 242; SG = 243; SG2 = 244; ADR = 246; TMP = 247
    e("v_and_b32 v%d, 3, v%d" % (SG, lane))
    e("v_bfe_u32 v%d, v%d, 2, 2" % (ADR, lane))
    e("v_lshlrev_b32 v%d, 8, v%d" % (LA, SG))
    e("v_lshl_add_u32 v%d, v%d, 10, v%d" % (LA, ADR, LA))
    e("v_and_b32 v%d, 1, v%d" % (ADR, ADR))
    e("v_mul_u32_u24 v%d, 12, v%d" % (ADR, ADR))
    e("v_or_b32 v%d, v%d, v%d" % (SG, SG, ADR))
    e("v_lshlrev_b32 v%d, 4, v%d" % (SG, SG))
    e("v_mov_b32 v%d, v%d" % (SG2, SG))
    e("v_add_u32 v%d, %d, v%d" % (LBB, L_F0 + 16384, LA))
    e("v_mov_b32 v%d, 8192" % TS)
    e("v_mov_b32 v%d, v%d" % (TMP, LA))
    e("v_add_u32 v%d, %d, v%d" % (LA, L_F0, LA))
    for gp in range(1, 4):
        lo = 0xffff0000 if gp == 1 else 0
        hi = {1: 0, 2: 0x0000ffff, 3: 0xffff0000}[gp]
        e("s_mov_b32 exec_lo, 0x%x" % lo)
        e("s_mov_b32 exec_hi, 0x%x" % hi)
        e("v_add_u32 v%d, %d, v%d" % (LA, L_F1 + (gp - 1) * 24576, TMP))
        e("v_add_u32 v%d, %d, v%d" % (LBB, L_F1 + (7 if gp == 3 else 6) * 12288, TMP))
        e("v_mov_b32 v%d, 12288" % TS)
        if gp == 2: e("v_xor_b32 v%d, 128, v%d" % (SG2, SG2))
    e("s_mov_b64 exec, -1")
    e("s_mul_i32 s4, s17, 5")
    e("s_mov_b32 s48, 0xffff0000")
    e("s_mov_b32 s49, -1")
    TA0 = 248; TA1 = 252
    after = {0: (8, 14), 1: (14, 20), 2: (20, 28), 3: (28, 36), 4: (36, 40)} if WLM else {0: (4, 8), 1: (8, 12), 2: (12, 16), 3: (16, 20)}
    for u in range(5):
        A = ACC + 32 * u
        e("s_lshr_b32 s5, s4, 4")
        e("s_and_b32 s6, s4, 15")
        e("s_lshl_b32 s6, s6, 4")
        e("s_cmp_lt_u32 s4, 32")
        e("s_cselect_b64 s[50:51], -1, 0")
        e("v_mad_u32_u24 v%d, v%d, s5, v%d" % (ADR, TS, LA))
        e("v_cndmask_b32 v%d, v%d, v%d, s[50:51]" % (ADR, LBB, ADR))
        e("v_cndmask_b32 v%d, v%d, v%d, s[50:51]" % (TMP, SG2, SG))
        e("v_xor_b32 v%d, s6, v%d" % (TMP, TMP))
        e("v_add_u32 v%d, v%d, v%d" % (ADR, ADR, TMP))
        for dd in range(4):
            e("v_cvt_pk_bf16_f32 v%d, v%d, v%d" % (TA0 + dd, A + 8 * dd, A + 8 * dd + 4))
        e("ds_write_b128 v%d, v[%d:%d]" % (ADR, TA0, TA0 + 3))
        for dd in range(4):
            e("v_cvt_pk_bf16_f32 v%d, v%d, v%d" % (TA1 + dd, A + 8 * dd + 1, A + 8 * dd + 5))
        e("ds_write_b128 v%d, v[%d:%d] offset:4096" % (ADR, TA1, TA1 + 3))
        for j in range(8):
            e("v_sub_f32 v%d, v%d, v%d" % (A + 4 * j + 2, A + 4 * j + 2, A + 4 * j + 3))
        for dd in range(4):
            e("v_cvt_pk_bf16_f32 v%d, v%d, v%d" % (A + dd, A + 8 * dd + 2, A + 8 * dd + 6))
        e("s_mov_b64 exec, s[48:49]")
        e("ds_write_b128 v%d, v[%d:%d] offset:8192" % (ADR, A, A + 3))
        e("s_mov_b64 exec, -1")
        e("s_add_u32 s4, s4, 1")
        if WLM and u >= 2: e("s_waitcnt lgkmcnt(6)")
        if u in after: wload(*after[u])
    e("s_waitcnt lgkmcnt(0)")
    e("s_cmp_lt_u32 s17, 4")
    e("s_cbranch_scc0 L2_gemm")
    stamp()
    e("s_barrier")
    if DIAG:
        e("s_branch L2_fin")
        if not FINE: nstamp[0] -= 1
    else:
        e("s_endpgm")
    lab("L2_gemm")
    RA = [240, 241, 242, 243]
    OA = 244; OAX = 248
    e("v_lshrrev_b32 v%d, 8, v%d" % (TMP, LC))
    e("v_bfe_u32 v%d, v%d, 4, 4" % (ADR, LC))
    e("v_xor_b32 v%d, v%d, v%d" % (RA[0], ADR, TMP))
    e("v_lshlrev_b32 v%d, 4, v%d" % (RA[0], RA[0]))
    e("v_lshl_add_u32 v%d, v%d, 8, v%d" % (RA[0], TMP, RA[0]))
    e("v_xor_b32 v%d, 0xc0, v%d" % (RA[1], RA[0]))
    e("v_add_u32 v%d, %d, v%d" % (RA[2], L_F + 65536, RA[0]))
    e("v_add_u32 v%d, %d, v%d" % (RA[3], L_F + 65536, RA[1]))
    e("v_add_u32 v%d, %d, v%d" % (RA[0], L_F, RA[0]))
    e("v_add_u32 v%d, %d, v%d" % (RA[1], L_F, RA[1]))
    e("v_lshlrev_b32 v%d, 10, v%d" % (OA, ADR))
    e("v_lshl_add_u32 v%d, v%d, 4, v%d" % (OA, TMP, OA))
    e("v_mov_b32 v%d, v%d" % (OAX, OA))
    e("s_mov_b32 s52, 0xff00ff00")
    e("s_mov_b32 s53, 0xff00ff00")
    e("s_mov_b64 exec, s[52:53]")
    e("v_add_u32 v%d, %d, v%d" % (OAX, -8192 + 256, OAX))
    e("s_mov_b64 exec, -1")
    if NB == 256:
        e("s_mul_i32 s5, s16, 625")
        e("s_add_u32 s6, s5, %d" % (625 + 15))
        e("s_add_u32 s5, s5, 15")
        e("s_lshr_b32 s5, s5, 4")
        e("s_lshr_b32 s6, s6, 4")
        e("s_sub_u32 s7, s6, s5")
    else:
        e("s_mul_i32 s5, s16, 40")
        e("s_mov_b32 s7, 40")
    e("s_cmp_eq_u32 s7, 40")
    e("s_cselect_b32 s54, -1, 0x7f7f7f7f")
    e("s_and_b32 s52, s54, 0x00ff00ff")
    e("s_mov_b32 s53, s52")
    e("s_mov_b32 s55, s54")
    e("s_lshl_b32 s5, s5, 10")
    e("s_lshl_b32 s6, s17, 6")
    e("s_add_u32 s5, s5, s6")
    e("s_sub_u32 s5, s5, 256")
    e("s_add_u32 s20, s12, s5")
    e("s_addc_u32 s21, s13, 0")
    e("s_add_u32 s22, s20, 16384")
    e("s_addc_u32 s23, s21, 0")
    e("s_add_u32 s24, s20, 32768")
    e("s_addc_u32 s25, s21, 0")
    stamp()
    e("s_barrier")
    stamp()
    jobs = [("g", tau, tau * 8192, 0, 8, 0) for tau in range(3)]
    for tau in range(2):
        for i in range(3): jobs.append(("o", tau, 24576 + (2 * i + tau) * 12288, 8, 12, i + 1))
    jobs.append(("x", 2, 24576 + 6 * 12288, 8, 12, 1))
    jobs.append(("y", 2, 24576 + 7 * 12288, 8, 12, 3))
    GA = [80, 88, 96]
    AC = [104, 112]; RING = 120; NR = 8; AHEAD = opt("ahead", 6)
    PK = [152, 156]
    def acc_of(jn): return GA[jn] if jn < 3 else AC[jn & 1]
    seq = []; jstart = []
    for jn, (kind, tau, off, k0, nk, part) in enumerate(jobs):
        jstart.append(len(seq))
        for ks in range(nk): seq.append((jn, k0 + ks, off + ks * 1024, ks))
    jstart.append(len(seq))
    nl = [0]; rdq = {}
    def rd(n):
        jn, wk, off, ks = seq[n]
        hi = off >= 65536
        r = RING + 4 * (n % NR)
        e("ds_read_b128 v[%d:%d], v%d offset:%d" % (r, r + 3, RA[(2 if hi else 0) + (ks & 1)], off - (65536 if hi else 0)))
        rdq[n] = nl[0]; nl[0] += 1
    def fin(jn):
        kind, tau, off, k0, nk, part = jobs[jn]
        a = acc_of(jn); g = GA[tau]; p = PK[jn & 1]; c = []
        sb = "s[%d:%d]" % (20 + 2 * tau, 21 + 2 * tau)
        if kind != "g":
            c += ["v_mul_f32 v%d, v%d, v%d" % (a + r, a + r, g + r) for r in range(8)]
        c += ["v_cvt_pk_bf16_f32 v%d, v%d, v%d" % (p + r, a + 2 * r, a + 2 * r + 1) for r in range(4)]
        stt = "global_store_dwordx4 v%d, v[%d:%d], %s offset:%d%s" % (OAX if kind == "x" else OA, p, p + 3, sb, 256 * part, SFL)
        if tau == 2:
            c.append(["s_mov_b64 exec, %s" % ("s[54:55]" if kind == "x" else "s[52:53]"), stt, "s_mov_b64 exec, -1"])
        else:
            c.append(stt)
        return c
    def gate(tau):
        g = GA[tau]; c = []
        c += ["v_mul_f32 v%d, 0xbfb8aa3b, v%d" % (g + r, g + r) for r in range(8)]
        c += ["v_exp_f32 v%d, v%d" % (g + r, g + r) for r in range(8)]
        c += ["v_add_f32 v%d, 1.0, v%d" % (g + r, g + r) for r in range(8)]
        c += ["v_rcp_f32 v%d, v%d" % (g + r, g + r) for r in range(8)]
        if tau == 2:
            c += ["v_mov_b32_dpp v%d, v%d row_shr:8 row_mask:0xf bank_mask:0xc" % (g + r, g + r) for r in range(8)]
        return c
    INF = 10 ** 6
    side = []
    for f_ in range(20, 20 if WLM else 40):
        it = []
        if f_ % 8 == 0: it += ["s_add_u32 s46, s46, 8192", "s_addc_u32 s47, s47, 0"]
        it.append("global_load_dwordx4 v[%d:%d], v%d, s[46:47] offset:%d sc1" % (wreg(f_), wreg(f_) + 3, LC, (f_ % 8) * 1024 - 4096))
        side.append((0, jstart[3] - 8, it))
    ready = lambda jn: jstart[jn + 1] + 2
    def add(items, lo, dl): side.extend((lo, dl, x) for x in items)
    add(fin(0), ready(0), INF); add(gate(0), ready(0), INF)
    add(fin(1), ready(1), INF); add(fin(2), ready(2), INF)
    g1 = gate(1); g2 = gate(2)
    for jn in range(3, len(jobs)):
        dl = jstart[jn + 2] if jn + 2 < len(jobs) else INF
        add(fin(jn), ready(jn), dl)
        if jn in (3, 4): add(g1[16 * (jn - 3):16 * (jn - 2)], 0, INF)
        if jn in (5, 6, 7): add(g2[14 * (jn - 5):14 * (jn - 4)], 0, INF)
    if opt("noside", 0): side = [x for x in side if x[0] >= ready(len(jobs) - 1)]
    vm = []
    def emit(x):
        cost = 0
        for y in (x if isinstance(x, list) else [x]):
            e(y); cost += 2 if y.startswith(("v_exp", "v_rcp")) else 1
            if y.startswith("global_"): vm.append(y)
        return cost
    def wait_frag(f_):
        if WLM: n = 39 - f_ + len(vm)
        elif f_ < 20: n = 19 - f_ + len(vm)
        else:
            pos = [k for k, y in enumerate(vm) if y.startswith("global_load")][f_ - 20]
            n = len(vm) - 1 - pos
        e("s_waitcnt vmcnt(%d)" % n)
    for n in range(AHEAD): rd(n)
    wdone = -1; credit = 0.0
    BUD = float(opt("bud", 3.0))
    for n in range(len(seq)):
        jn, wk, off, ks = seq[n]
        while any(dl <= n for _, dl, _ in side): emit(side.pop(0)[2])
        if wk > wdone:
            wait_frag(2 * wk + 3); wdone = wk + 1
        if n % 2 == 0:
            e("s_waitcnt lgkmcnt(%d)" % (nl[0] - 1 - rdq[min(n + 1, len(seq) - 1)]))
        r = RING + 4 * (n % NR)
        credit = min(credit + BUD, BUD + 1)
        for T in range(2):
            a = acc_of(jn) + 4 * T; w = wreg(2 * wk + T)
            e("v_mfma_f32_16x16x32_bf16 v[%d:%d], v[%d:%d], v[%d:%d], %s" %
              (a, a + 3, w, w + 3, r, r + 3, "0" if ks == 0 else "v[%d:%d]" % (a, a + 3)))
            if T == 0 and n + AHEAD < len(seq): rd(n + AHEAD)
            used = 0
            while side and side[0][0] <= n and credit >= 1 and used < 1 + T:
                c_ = emit(side.pop(0)[2]); credit -= c_; used += c_
    stamp()
    while side and side[0][0] < ready(len(jobs) - 1): emit(side.pop(0)[2])
    e("s_nop 7")
    for _, _, x in side: emit(x)
    lab("L2_fin")
    if DIAG: e("s_waitcnt vmcnt(0)")
    dump_stamps("s[14:15]", "s17", 1 << 20, 140)
    if "enc" in OPT:
        k = int(OPT["enc"])
        if k < 0:
            e("s_mov_b64 exec, -1")
            e("v_mov_b32 v142, %d" % (WS_DBG + 4 * (-k - 1)))
            e("global_load_dword v143, v142, s[14:15]")
            e("s_waitcnt vmcnt(0)")
            e("v_readfirstlane_b32 s44, v143")
        else:
            e("s_mov_b32 s44, s%d" % (64 + 2 * k))
        lab("L2_spin")
        e("s_memrealtime s[46:47]")
        e("s_waitcnt lgkmcnt(0)")
        e("s_sub_u32 s46, s46, s44")
        e("s_cmp_lt_u32 s46, 6000")
        e("s_cbranch_scc1 L2_spin")
    lab("L2_end")
    e("s_endpgm")
    if CPF:
        out.append(".fill (24576 - (L2_end - %s_kernel)) / 4, 4, 0xbf810000" % NAME)

header()
k2()
out.append('.section .rodata,"a"')
kdesc(NAME + "_kernel", 256, 100 if DIAG else 64)
open(sys.argv[1], "w").write("\n".join(out) + "\n")
```

```python
import sys
NAME = "gather_scatter__tensor_product_equiv_equiformer__graph"
OPT = dict(a.split('=') for a in sys.argv[2:]) if len(sys.argv) > 2 else {}
def opt(k, d): return type(d)(OPT.get(k, d))

N = 10000; E = 320000
NB = opt("nb", 256)
G = 250; CH = 1280
WS_REC = 0
WS_TAB = 6 << 20
WS_WF = 7 << 20
WS_WFL = (7 << 20) + (512 << 10)
WS_DBG = 8 << 20
U = 10
DK = 3
OOB = 0x7F000000
NPH = opt("nph", 7)
PHMUL = {5: 0x8312, 6: 0x9d49, 7: 0xb780, 8: 0xd1b7}[NPH]
L_COEF = 0; COEF_STRIDE = 640
L_OFFS = 25728; OFFS_STRIDE = 256
L_WT = 36864
L_F = 37888
L_CNT = L_F; L_ST = L_F + 2048; L_SLOT = L_ST + 2048
L_F0 = L_F; L_F1 = L_F + 3 * 8192
LDS_MAIN = L_F + 122880
R0 = 8 - NPH
DIAG = opt("diag", 0)
FL = {"": "", "sc1": " sc1", "nt": " nt", "sc01": " sc0 sc1"}
SFL = FL[opt("sfl", "sc1")]
KFL = FL[opt("kfl", "sc1")]

out = []
def e(s): out.append("    " + s)
def lab(s): out.append(s + ":")

def header():
    ref = open("cdna_kernels/%s.s.ref" % NAME).read().split("\n")
    for l in ref:
        if l.startswith("; Override"): break
        out.append(l)
    out.append("; @launch grid=(%d,1,1) block=(512,1,1) lds=%d" % (NB, LDS_MAIN))
    out.append('.amdgcn_target "amdgcn-amd-amdhsa--gfx950"')
    out.append(".text")

def kstart(name):
    out.append(".globl %s" % name)
    out.append(".p2align 8")
    out.append(".type %s,@function" % name)
    lab(name)

def kdesc(name, vgpr, sgpr):
    out.append(".p2align 6")
    out.append(".amdhsa_kernel %s" % name)
    out.append("  .amdhsa_next_free_vgpr %d" % vgpr)
    out.append("  .amdhsa_next_free_sgpr %d" % sgpr)
    out.append("  .amdhsa_accum_offset %d" % ((vgpr + 3) // 4 * 4))
    out.append("  .amdhsa_group_segment_fixed_size 0")
    out.append("  .amdhsa_kernarg_size 96")
    out.append("  .amdhsa_user_sgpr_count 2")
    out.append("  .amdhsa_user_sgpr_kernarg_segment_ptr 1")
    out.append("  .amdhsa_system_sgpr_workgroup_id_x 1")
    out.append(".end_amdhsa_kernel")

nstamp = [0]
FINE = opt("fine", 0)
def fstamp():
    if FINE == 1: stamp(True)
def pstamp():
    if FINE == 2: stamp(True)
def stamp(f=False):
    if not DIAG: return
    if FINE and nstamp[0] >= 12: return
    k = nstamp[0]; nstamp[0] += 1
    e("s_memrealtime s[%d:%d]" % (64 + 2 * k, 65 + 2 * k))
    if k == 0: e("s_memtime s[92:93]")
    if k == opt("ca", 3): e("s_memtime s[88:89]")
    if k == opt("cb", 4): e("s_memtime s[94:95]")
    e("s_waitcnt lgkmcnt(0)")
def dump_stamps(ws, swave, base, vt):
    if not DIAG: return
    e("s_memtime s[90:91]")
    stamp()
    e("s_mov_b64 exec, -1")
    e("v_mov_b32 v%d, 0" % vt)
    e("s_sub_u32 s90, s90, s92")
    e("v_writelane_b32 v%d, s90, 14" % vt)
    e("s_sub_u32 s94, s94, s88")
    e("v_writelane_b32 v%d, s94, 13" % vt)
    e("s_sub_u32 s97, %d, s97" % (1 << 20))
    e("s_sub_u32 s98, %d, s98" % (1 << 20))
    e("s_lshl_b32 s98, s98, 16")
    e("s_or_b32 s97, s97, s98")
    e("v_writelane_b32 v%d, s97, 15" % vt)
    for k in range(nstamp[0]):
        e("v_writelane_b32 v%d, s%d, %d" % (vt, 64 + 2 * k, k))
    e("s_lshl_b32 s96, s2, 3")
    e("s_add_u32 s96, s96, %s" % swave)
    e("s_lshl_b32 s96, s96, 6")
    e("s_add_u32 s96, s96, %d" % (WS_DBG + base))
    e("v_mbcnt_lo_u32_b32 v%d, -1, 0" % (vt + 1))
    e("v_lshl_add_u32 v%d, v%d, 2, s96" % (vt + 1, vt + 1))
    e("s_mov_b64 exec, 0xffff")
    e("global_store_dword v%d, v%d, %s" % (vt + 1, vt, ws))
    nstamp[0] = 0

def wave_scan(v, rows_only=False):
    for sh in (1, 2, 4, 8):
        e("s_nop 1")
        e("v_add_u32_dpp %s, %s, %s row_shr:%d row_mask:0xf bank_mask:0xf bound_ctrl:0" % (v, v, v, sh))
    if rows_only: return
    e("s_nop 1")
    e("v_add_u32_dpp %s, %s, %s row_bcast:15 row_mask:0xa bank_mask:0xf" % (v, v, v))
    e("s_nop 1")
    e("v_add_u32_dpp %s, %s, %s row_bcast:31 row_mask:0xc bank_mask:0xf" % (v, v, v))

def unpack(dst, idx, base):
    r = base + idx // 2
    if idx % 2 == 0: e("v_lshlrev_b32 %s, 16, v%d" % (dst, r))
    else: e("v_and_b32 %s, 0xffff0000, v%d" % (dst, r))

ACC = 0; LB = [160, 192]; BT = [224, 228]; AF = [232, 236]; VO = 240
VCA = 248; RB = 249; REM = 250; PEND = 251; TID = 252; VOA = 253; PSEL = 254
SM = 28
def rec(i): return 160 + 4 * i
def kad(i): return 200 + i
T0 = 210
MSK = 20
def msk(i): return "s[%d:%d]" % (MSK + 2 * i, MSK + 2 * i + 1)

def lds_init():
    z = 224; a = 232
    for k in range(7): e("v_mov_b32 v%d, 0" % (z + k + (1 if k == 6 else 0)))
    e("v_mov_b32 v%d, -1" % (z + 6))
    e("v_and_b32 v%d, 63, v%d" % (a, TID))
    e("s_lshl_b32 s4, s17, 11")
    e("s_add_u32 s4, s4, %d" % L_SLOT)
    e("v_lshl_add_u32 v%d, v%d, 4, s4" % (a, a))
    e("v_add_u32 v%d, 32768, v%d" % (a + 3, a))
    e("v_lshlrev_b32 v%d, 2, v%d" % (a + 1, TID))
    for k in range(5):
        e("ds_write_b128 v%d, v[%d:%d] offset:%d" % (a if k < 2 else a + 3, z + 4, z + 7, 16384 * (k if k < 2 else k - 2)))
    e("ds_write_b32 v%d, v%d offset:%d" % (a + 1, z, L_CNT))

def k2():
    kstart(NAME + "_kernel")
    e("s_cmp_ge_u32 s2, %d" % NB)
    e("s_cbranch_scc1 L2_end")
    e("s_load_dwordx16 s[20:35], s[0:1], 0")
    e("s_load_dwordx2 s[12:13], s[0:1], 72")
    e("s_load_dwordx4 s[36:39], s[0:1], 80")
    e("s_memrealtime s[60:61]")
    CPF = opt("cpf", 1)
    if CPF:
        e("s_getpc_b64 s[4:5]")
        lab("L0_pc")
        e("s_lshr_b32 s6, s2, 3")
        e("s_mul_i32 s6, s6, 896")
        e("s_sub_u32 s7, s6, L0_pc-%s_kernel" % NAME)
        e("s_ashr_i32 s6, s7, 31")
        e("s_add_u32 s4, s4, s7")
        e("s_addc_u32 s5, s5, s6")
        e("v_lshlrev_b32 v2, 7, v0")
        e("v_mov_b32 v3, s5")
        e("v_add_co_u32 v2, vcc, s4, v2")
        e("s_nop 1")
        e("v_addc_co_u32 v3, vcc, 0, v3, vcc")
        e("v_cmp_gt_u32 vcc, 7, v0")
        e("s_and_saveexec_b64 s[4:5], vcc")
        e("s_cbranch_execz L0_nc")
        e("global_load_dword v223, v[2:3], off")
        lab("L0_nc")
        e("s_mov_b64 exec, -1")
    stamp()
    t = T0
    P_CNT = 0; P_BASE = 1024; P_STG = 2048; L_NON = L_WT + 64; L_TB = L_OFFS
    JUNK = 223
    e("v_mov_b32 v%d, v0" % TID)
    e("v_lshrrev_b32 v1, 6, v0")
    e("v_and_b32 v4, 63, v0")
    e("s_and_b32 s4, s2, 7")
    e("s_lshr_b32 s5, s2, 3")
    e("v_readfirstlane_b32 s17, v1")
    if NB == 256:
        e("s_lshl_b32 s16, s4, 5")
        e("s_add_u32 s16, s16, s5")
    else:
        e("s_mul_i32 s16, s4, 31")
        e("s_min_u32 s4, s4, 2")
        e("s_add_u32 s16, s16, s4")
        e("s_add_u32 s16, s16, s5")
    e("s_min_u32 s3, s2, %d" % (G - 1))
    e("s_mul_i32 s4, s3, 320")
    e("s_mul_i32 s5, s17, 40")
    e("s_add_u32 s4, s4, s5")
    e("v_add_u32 v5, s4, v4")
    e("v_lshlrev_b32 v1, 4, v5")
    e("v_mul_u32_u24 v2, 24, v5")
    e("v_lshlrev_b32 v3, 3, v5")
    e("v_lshlrev_b32 v72, 6, v5")
    e("v_and_b32 v6, 255, v0")
    e("v_lshlrev_b32 v6, 2, v6")
    e("v_mov_b32 v73, 0")
    e("ds_write_b32 v6, v73 offset:%d" % P_CNT)
    e("s_mov_b32 s46, -1")
    e("s_mov_b32 s47, 0xff")
    e("v_mov_b32 v66, %d" % (2 * ((1 << 26) // 5)))
    e("s_mov_b32 s7, 0x%x" % PHMUL)
    e("v_mov_b32 v5, 1")
    e("s_mov_b64 exec, s[46:47]")
    e("s_waitcnt lgkmcnt(0)")
    e("global_load_dwordx4 v[8:11], v1, s[28:29]")
    e("s_mov_b64 exec, -1")
    e("s_cmp_lg_u32 s17, 7")
    e("s_cbranch_scc1 L1_a")
    e("s_cmp_lt_u32 s2, %d" % (NB - 6))
    e("s_cbranch_scc1 L1_a")
    e("s_and_b32 s61, s61, 0x3ff")
    e("s_bitset1_b32 s61, 31")
    e("v_mov_b32 v76, s60")
    e("v_mov_b32 v77, s61")
    e("v_mov_b32 v78, 0")
    e("v_mov_b32 v79, 0")
    e("s_mov_b64 exec, 1")
    e("global_atomic_cmpswap_x2 v73, v[76:79], s[36:37] sc1")
    e("s_mov_b64 exec, -1")
    lab("L1_a")
    e("s_barrier")
    e("s_mov_b64 exec, s[46:47]")
    e("global_load_dwordx4 v[12:15], v1, s[26:27]")
    e("global_load_dwordx4 v[16:19], v2, s[22:23]")
    e("global_load_dwordx2 v[20:21], v2, s[22:23] offset:16")
    e("global_load_dwordx2 v[22:23], v3, s[24:25]")
    TE = opt("te", 0); TFL = FL[opt("tfl", "")]
    if TE: e("global_load_dword v%d, v72, s[20:21]%s" % (JUNK, TFL))
    e("s_mov_b64 exec, -1")
    pstamp()
    lds_init()
    e("v_lshlrev_b32 v4, 4, v4")
    e("s_mov_b32 s18, 0x05040100")
    e("s_mov_b32 s19, 0x07060302")
    e("s_mov_b64 exec, s[46:47]")
    e("s_waitcnt vmcnt(%d)" % (4 + TE))
    pstamp()
    for k in range(4):
        if NB == 256:
            e("v_mul_u32_u24 v%d, 429497, v%d" % (24 + k, 8 + k))
            e("v_lshrrev_b32 v%d, 24, v%d" % (24 + k, 24 + k))
        else:
            e("v_mul_u32_u24 v%d, 0xcccd, v%d" % (24 + k, 8 + k))
            e("v_lshrrev_b32 v%d, 21, v%d" % (24 + k, 24 + k))
        e("v_lshlrev_b32 v%d, 2, v%d" % (68 + k, 24 + k))
        e("ds_add_rtn_u32 v%d, v%d, v5 offset:%d" % (28 + k, 68 + k, P_CNT))
    for k in range(4):
        if NB == 256:
            e("v_mul_u32_u24 v6, 625, v%d" % (24 + k))
            e("v_add_u32 v6, 15, v6")
            e("v_lshrrev_b32 v6, 4, v6")
        else:
            e("v_mul_u32_u24 v6, 40, v%d" % (24 + k))
        e("v_sub_u32 v%d, v%d, v6" % (8 + k, 8 + k))
    def keyw(k):
        e("v_mad_u32_u24 v6, v%d, s7, v66" % (12 + k))
        e("v_mul_u32_u24 v7, %d, v%d" % ((1 << 26) // 5 + 1, 8 + k))
        e("v_and_b32 v7, 0x3ffffff, v7")
        e("v_sub_u32 v6, v6, v7")
        e("v_ashrrev_i32 v6, 26, v6")
        e("v_med3_i32 v6, v6, 0, %d" % (NPH - 1))
        e("v_lshl_add_u32 v6, v%d, 3, v6" % (8 + k))
        e("v_lshl_add_u32 v6, v%d, 9, v6" % (12 + k))
        e("v_lshlrev_b32 v%d, 2, v6" % (34 + 4 * k))
    def coefs(k):
        unpack("v48", k, 22)
        for j in range(3):
            unpack("v%d" % (49 + j), 3 * k + j, 16)
        for j in range(3):
            e("v_mul_f32 v%d, v48, v%d" % (49 + j, 49 + j))
        e("v_cvt_pk_bf16_f32 v%d, v48, v49" % (32 + 4 * k))
        e("v_cvt_pk_bf16_f32 v%d, v50, v51" % (33 + 4 * k))
    e("s_mov_b64 exec, -1")
    e("s_waitcnt lgkmcnt(0)")
    pstamp()
    e("s_barrier")
    pstamp()
    e("ds_read_b128 v[52:55], v4 offset:%d" % P_CNT)
    e("s_cmp_lg_u32 s17, 7")
    e("s_cbranch_scc1 L1_nt")
    e("global_load_dwordx2 v[74:75], v73, s[36:37] sc1")
    lab("L1_nt")
    e("s_waitcnt lgkmcnt(0)")
    e("v_add_u32 v57, v52, v53")
    e("v_add_u32 v58, v57, v54")
    e("v_add_u32 v59, v58, v55")
    e("v_mov_b32 v60, v59")
    wave_scan("v60")
    e("v_sub_u32 v60, v60, v59")
    e("v_add_u32 v61, v60, v52")
    e("v_add_u32 v62, v60, v57")
    e("v_add_u32 v63, v60, v58")
    e("ds_write_b128 v4, v[60:63] offset:%d" % P_BASE)
    e("s_mov_b64 exec, s[46:47]")
    for k in range(4):
        e("ds_read_b32 v%d, v%d offset:%d" % (24 + k, 68 + k, P_BASE))
    e("s_mov_b64 exec, -1")
    e("s_cmp_eq_u32 s17, 7")
    e("s_cbranch_scc1 L1_w1")
    e("s_waitcnt vmcnt(%d)" % TE)
    lab("L1_w1")
    e("s_waitcnt vmcnt(%d)" % (1 + TE))
    e("s_cmp_eq_u32 s17, 3")
    e("s_cselect_b32 s59, s2, 160")
    e("s_min_u32 s59, s59, 160")
    e("s_cmp_ge_u32 s59, 160")
    e("s_cbranch_scc1 L1_b")
    e("s_mul_i32 s4, s2, 1639")
    e("s_lshr_b32 s4, s4, 16")
    e("s_mul_i32 s5, s4, 40")
    e("s_sub_u32 s5, s2, s5")
    e("s_and_b32 s6, s5, 1")
    e("s_lshr_b32 s5, s5, 1")
    e("s_cmp_lt_u32 s5, 8")
    e("s_cselect_b64 s[40:41], s[32:33], s[34:35]")
    e("s_cselect_b32 s42, 0, 8")
    e("s_sub_u32 s42, s5, s42")
    e("s_lshl_b32 s42, s42, 13")
    e("s_lshl_b32 s4, s4, 6")
    e("s_add_u32 s42, s42, s4")
    e("s_lshl_b32 s6, s6, 3")
    e("s_add_u32 s42, s42, s6")
    e("v_lshrrev_b32 v80, 8, v4")
    e("v_bfe_u32 v81, v4, 6, 2")
    e("v_bfe_u32 v82, v4, 4, 2")
    e("v_lshlrev_b32 v83, 11, v80")
    e("v_lshl_add_u32 v83, v81, 4, v83")
    e("v_lshl_add_u32 v83, v82, 1, v83")
    e("v_add_u32 v83, s42, v83")
    e("s_lshl_b32 s5, s5, 6")
    e("v_lshl_add_u32 v80, v80, 4, s5")
    e("global_load_dwordx4 v[240:243], v80, s[30:31]")
    for i in range(8):
        e("global_load_ushort v%d, v83, s[40:41] offset:%d" % (232 + i, 256 * i))
    lab("L1_b")
    e("s_mov_b64 exec, s[46:47]")
    PFA = opt("k1pf", 1) and not TE and not opt("noa", 0)
    if PFA: e("global_load_dword v%d, v72, s[20:21]%s" % (JUNK, TFL))
    def tagtab():
        e("s_mov_b64 exec, -1")
        e("s_cmp_lg_u32 s17, 7")
        e("s_cbranch_scc1 L1_c")
        e("s_mov_b32 s6, %d" % (1 << 20))
        e("s_waitcnt vmcnt(%d)" % int(PFA))
        lab("L1_npoll")
        e("v_readfirstlane_b32 s5, v75")
        e("s_cmp_lg_u32 s5, 0")
        e("s_cbranch_scc1 L1_non2")
        e("global_load_dwordx2 v[74:75], v73, s[36:37] sc1")
        e("s_sub_u32 s6, s6, 1")
        e("s_waitcnt vmcnt(0)")
        e("s_cbranch_scc0 L1_npoll")
        lab("L1_non2")
        e("v_readfirstlane_b32 s4, v74")
        e("s_and_b32 s5, s5, 0x3ff")
        e("v_mov_b32 v74, s4")
        e("v_mov_b32 v75, s5")
        e("ds_write_b64 v73, v[74:75] offset:%d" % L_NON)
        e("s_cmp_ge_u32 s2, %d" % G)
        e("s_cbranch_scc1 L1_c")
        for k in range(4):
            e("v_lshl_or_b32 v%d, v%d, 11, v%d" % (60 + k, 52 + k, 60 + k))
            e("v_lshl_or_b32 v%d, v75, 22, v%d" % (76 + 2 * k, 60 + k))
            e("v_mov_b32 v%d, v74" % (77 + 2 * k))
        e("s_lshl_b32 s4, s2, 11")
        e("s_add_u32 s4, s4, %d" % WS_TAB)
        e("v_lshl_add_u32 v5, v4, 1, s4")
        e("global_store_dwordx4 v5, v[76:79], s[38:39] sc1")
        e("global_store_dwordx4 v5, v[80:83], s[38:39] offset:16 sc1")
        lab("L1_c")
        e("s_mov_b64 exec, s[46:47]")
    for k in range(4):
        keyw(k); coefs(k)
        if k == 0: e("s_waitcnt lgkmcnt(0)")
        e("v_add_lshl_u32 v%d, v%d, v%d, 4" % (24 + k, 24 + k, 28 + k))
        e("ds_write_b96 v%d, v[%d:%d] offset:%d" % (24 + k, 32 + 4 * k, 34 + 4 * k, P_STG))
        if k == opt("tk", 1): tagtab()
    e("s_mov_b64 exec, -1")
    e("v_lshlrev_b32 v6, 4, v0")
    e("s_mul_i32 s4, s2, %d" % (CH * 16))
    e("s_add_u32 s40, s38, s4")
    e("s_addc_u32 s41, s39, 0")
    e("s_mov_b64 s[8:9], s[20:21]")
    e("s_mov_b64 s[14:15], s[38:39]")
    e("s_mov_b64 s[62:63], s[20:21]")
    e("s_waitcnt lgkmcnt(0)")
    pstamp()
    e("s_barrier")
    pstamp()
    e("ds_read_b64 v[74:75], v73 offset:%d" % L_NON)
    e("s_cmp_ge_u32 s17, 4")
    e("s_cbranch_scc1 L1_d")
    e("s_cmp_ge_u32 s2, %d" % G)
    e("s_cbranch_scc1 L1_d")
    for k in range(5):
        e("ds_read_b96 v[%d:%d], v6 offset:%d" % (12 + 4 * k, 14 + 4 * k, P_STG + 4096 * k))
    e("v_add_u32 v7, 8192, v6")
    e("v_add_u32 v8, 16384, v6")
    for k in range(5):
        e("s_waitcnt lgkmcnt(%d)" % (4 - k))
        e("v_mov_b32 v%d, v74" % (15 + 4 * k))
        e("v_lshl_or_b32 v%d, v75, 25, v%d" % (14 + 4 * k, 14 + 4 * k))
        a_, o_ = [(6, 0), (7, -4096), (7, 0), (8, -4096), (8, 0)][k]
        e("global_store_dwordx4 v%d, v[%d:%d], s[40:41] offset:%d sc1" % (a_, 12 + 4 * k, 15 + 4 * k, o_))
    lab("L1_d")
    stamp()
    e("s_waitcnt lgkmcnt(0)")
    e("v_readfirstlane_b32 s56, v74")
    e("v_readfirstlane_b32 s58, v75")
    e("v_add_u32 v%d, %d, v72" % (JUNK - 1, N * 512))
    e("s_lshl_b32 s57, s58, 25")
    par = t + 4
    e("v_lshrrev_b32 v%d, 1, v%d" % (t + 1, TID))
    e("v_lshlrev_b32 v%d, 2, v%d" % (t + 5, t + 1))
    e("v_and_b32 v%d, 1, v%d" % (par, TID))
    e("v_mul_u32_u24 v%d, %d, v%d" % (t + 1, CH, t + 1))
    e("s_or_b32 s9, s9, 0x00100000")
    e("s_mov_b32 s10, %d" % (N * 1024))
    e("s_mov_b32 s11, 0x00800000")
    def zero_acc():
        for r in range(144, -16, -16):
            e("v_mfma_f32_32x32x16_bf16 v[%d:%d], v[224:227], v[224:227], 0" % (r, r + 15))
    ZL = 0
    e("s_cmp_ge_u32 s17, 4")
    e("s_cbranch_scc1 L1_p")
    e("s_nop 4")
    zero_acc()
    if opt("pace", 1): e("s_waitcnt vmcnt(0)")
    pstamp()
    if FINE == 2: nstamp[0] -= 1
    e("s_branch L1_e")
    lab("L1_p")
    e("v_add_u32 v%d, -256, v%d" % (t, TID))
    e("v_min_u32 v%d, %d, v%d" % (t + 2, G - 1, t))
    e("s_lshl_b32 s4, s16, 3")
    e("s_add_u32 s4, s4, %d" % WS_TAB)
    e("v_lshl_add_u32 v%d, v%d, 11, s4" % (t + 2, t + 2))
    e("s_mov_b32 s6, %d" % (1 << 20))
    if opt("pz", 0):
        zero_acc()
        if opt("psl0", 0): e("s_sleep %d" % opt("psl0", 0))
    else:
        e("global_load_dwordx2 v[%d:%d], v%d, s[14:15] sc1" % (t + 6, t + 7, t + 2))
        zero_acc()
        e("s_branch L2_poll1")
    lab("L2_poll")
    e("global_load_dwordx2 v[%d:%d], v%d, s[14:15] sc1" % (t + 6, t + 7, t + 2))
    lab("L2_poll1")
    e("s_waitcnt vmcnt(0)")
    e("v_lshrrev_b32 v%d, 22, v%d" % (t + 3, t + 6))
    e("v_cmp_ne_u32 vcc, s56, v%d" % (t + 7))
    e("v_cmp_ne_u32 s[4:5], s58, v%d" % (t + 3))
    e("s_or_b64 exec, vcc, s[4:5]")
    e("s_cbranch_scc0 L2_got")
    if opt("psl", 0): e("s_sleep %d" % opt("psl", 0))
    e("s_sub_u32 s6, s6, 1")
    e("s_cbranch_scc0 L2_poll")
    e("v_mov_b32 v%d, 0" % (t + 6))
    lab("L2_got")
    pstamp()
    if DIAG: e("s_mov_b32 s98, s6")
    e("s_mov_b64 exec, -1")
    e("v_cmp_gt_u32 vcc, %d, v%d" % (G, t))
    e("v_lshlrev_b32 v%d, 2, v%d" % (t, t))
    e("s_nop 0")
    e("v_cndmask_b32 v%d, 0, v%d, vcc" % (t + 6, t + 6))
    e("ds_write_b32 v%d, v%d offset:%d" % (t, t + 6, L_TB))
    e("s_waitcnt lgkmcnt(0)")
    lab("L1_e")
    e("s_barrier")
    e("ds_read_b32 v%d, v%d offset:%d" % (t + 6, t + 5, L_TB))
    e("s_setprio 3")
    e("s_mov_b32 s44, 0")
    e("s_waitcnt lgkmcnt(0)")
    stamp()
    e("v_and_b32 v%d, 0x7ff, v%d" % (t + 2, t + 6))
    e("v_bfe_u32 v%d, v%d, 11, 11" % (REM, t + 6))
    e("v_add3_u32 v%d, v%d, v%d, v%d" % (t + 1, t + 1, t + 2, par))
    e("v_sub_u32 v%d, v%d, v%d" % (REM, REM, par))
    e("v_lshlrev_b32 v%d, 4, v%d" % (RB, t + 1))
    NS = 4
    RFL = FL[opt("rfl", "sc1")]
    lab("L2_batch")
    for i in range(U):
        e("v_cmpx_lt_i32 %s, %d, v%d" % (msk(i), 2 * i, REM))
        if i >= NS:
            e("s_mov_b32 s42, %d" % i)
            e("s_cbranch_execz L2_ld")
        e("global_load_dwordx4 v[%d:%d], v%d, s[14:15] offset:%d%s" % (rec(i), rec(i) + 3, RB, 32 * i, RFL))
    e("s_mov_b32 s42, %d" % U)
    lab("L2_ld")
    e("s_mov_b64 exec, -1")
    fstamp()
    e("s_cmp_ge_u32 s59, 160")
    e("s_cbranch_scc1 L2_nwp")
    for i in range(8):
        e("v_lshlrev_b32 v%d, 16, v%d" % (232 + i, 232 + i))
        unpack("v247", i, 240)
        e("v_mul_f32 v%d, v247, v%d" % (232 + i, 232 + i))
    for i in range(4):
        e("v_cvt_pk_bf16_f32 v%d, v%d, v%d" % (240 + i, 232 + 2 * i, 233 + 2 * i))
    lab("L2_nwp")
    e("s_lshl_b32 s4, s59, 10")
    e("s_add_u32 s4, s4, %d" % WS_WF)
    e("v_and_b32 v247, 63, v%d" % TID)
    e("v_lshl_add_u32 v247, v247, 4, s4")
    if ZL:
        e("s_cmp_gt_u32 s59, 160")
        e("s_cbranch_scc1 L2_noz")
        e("s_nop 2")
        zero_acc()
        lab("L2_noz")
    def stage(name, body):
        for i in range(U):
            if i >= NS:
                e("s_cmp_le_u32 s42, %d" % i)
                e("s_cbranch_scc1 L2_%s" % name)
            e("s_mov_b64 exec, %s" % msk(i))
            body(i)
        lab("L2_%s" % name)
    tab = {(0, 0): 0, (1, 1): 1, (1, 2): 2, (1, 3): 3,
           (4, 0): 1, (5, 1): 0, (6, 3): 2, (7, 2): 3,
           (8, 0): 2, (9, 2): 0, (10, 1): 3, (11, 3): 1,
           (12, 0): 3, (13, 3): 0, (14, 2): 1, (15, 1): 2}
    e("v_mov_b32 v%d, 64" % PSEL)
    for p_ in range(4):
        m_ = 0
        for (m, q), v in tab.items():
            if v == p_: m_ |= 1 << (16 * q + m)
        e("s_mov_b32 exec_lo, 0x%x" % (m_ & 0xffffffff))
        e("s_mov_b32 exec_hi, 0x%x" % (m_ >> 32))
        e("v_mov_b32 v%d, %d" % (PSEL, 16 * p_))
    e("s_mov_b64 exec, -1")
    va = 255; vo = 244; vb = 245; vf = 246; D0 = AF[0]
    e("v_and_b32 v%d, 63, v%d" % (vo, TID))
    e("s_mul_i32 s4, s17, %d" % (5 * 2048))
    e("s_add_u32 s4, s4, %d" % L_SLOT)
    e("v_lshl_add_u32 v%d, v%d, 4, s4" % (va, vo))
    e("v_lshlrev_b32 v%d, 2, v%d" % (vo, vo))
    e("v_and_b32 v%d, 28, v%d" % (vb, vo))
    e("s_mul_i32 s48, s17, %d" % (5 * OFFS_STRIDE))
    e("s_mul_i32 s49, s17, %d" % (5 * COEF_STRIDE))
    e("v_add_u32 v%d, s48, v%d" % (vo, vo))
    e("s_lshl_b32 s5, s17, 2")
    e("v_mov_b32 v%d, s5" % vf)
    e("v_cmp_lt_i32 vcc, %d, v%d" % (2 * U, REM))
    e("s_cmp_lg_u64 vcc, 0")
    e("s_cselect_b32 s43, 2, 0")
    one = t + 1
    e("v_mov_b32 v%d, 1" % one)
    e("v_and_b32 v%d, 63, v%d" % (t, TID))
    e("v_lshlrev_b32 v%d, 5, v%d" % (t, t))
    e("v_mov_b32 v%d, 0" % PEND)
    e("s_mov_b32 s6, %d" % (1 << 20))
    bad = t + 2
    if FINE == 1:
        e("s_waitcnt vmcnt(0)")
        fstamp()
    lab("L2_chk")
    e("s_waitcnt vmcnt(0)")
    e("v_mov_b32 v%d, 0" % bad)
    def b_ck(i):
        e("v_xor_b32 v%d, s57, v%d" % (rec(i) + 2, rec(i) + 2))
        e("v_xor_b32 v%d, s56, v%d" % (rec(i) + 3, rec(i) + 3))
        e("v_lshrrev_b32 v%d, 25, v%d" % (t + 3, rec(i) + 2))
        e("v_or3_b32 v%d, v%d, v%d, v%d" % (bad, bad, t + 3, rec(i) + 3))
    stage("ck", b_ck)
    e("s_mov_b64 exec, -1")
    e("v_cmp_ne_u32 vcc, 0, v%d" % bad)
    e("s_cmp_eq_u64 vcc, 0")
    e("s_cbranch_scc1 L2_ok")
    e("s_sub_u32 s6, s6, 1")
    e("s_cbranch_scc1 L2_end")
    if opt("rsl", 0): e("s_sleep %d" % opt("rsl", 0))
    stage("rl", lambda i: e("global_load_dwordx4 v[%d:%d], v%d, s[14:15] offset:%d sc1" % (rec(i), rec(i) + 3, RB, 32 * i)))
    e("s_mov_b64 exec, -1")
    e("s_branch L2_chk")
    lab("L2_ok")
    if DIAG: e("s_mov_b32 s97, s6")
    fstamp()
    def b_at(i):
        e("v_and_b32 v%d, 0x7fc, v%d" % (kad(i), rec(i) + 2))
        e("ds_add_rtn_u32 v%d, v%d, v%d offset:%d" % (rec(i) + 3, kad(i), one, L_CNT))
    stage("at", b_at)
    e("s_mov_b64 exec, s[46:47]")
    e("s_cmp_gt_u32 s59, 160")
    e("s_cbranch_scc1 L2_nf")
    if opt("k1pf", 1): e("global_load_dword v%d, v%d, s[62:63]%s" % (JUNK, JUNK - 1, TFL))
    e("s_cmp_eq_u32 s59, 160")
    e("s_cbranch_scc1 L2_nf")
    e("s_mov_b64 exec, -1")
    e("global_store_dwordx4 v247, v[240:243], s[14:15] sc1")
    e("s_mov_b64 exec, s[46:47]")
    lab("L2_nf")
    e("s_waitcnt lgkmcnt(0)")
    e("s_barrier")
    stamp()
    cc = 212
    e("ds_read_b128 v[%d:%d], v%d offset:%d" % (cc, cc + 3, t, L_CNT))
    e("ds_read_b128 v[%d:%d], v%d offset:%d" % (cc + 4, cc + 7, t, L_CNT + 16))
    lim = 220; tmp = 221; en = 222; nb_ = 223
    f = 224; fo = 232
    e("s_waitcnt lgkmcnt(0)")
    e("v_add3_u32 v%d, v%d, v%d, v%d" % (lim, cc, cc + 1, cc + 2))
    k = 3
    while k < NPH:
        if k + 1 < NPH:
            e("v_add3_u32 v%d, v%d, v%d, v%d" % (lim, lim, cc + k, cc + k + 1)); k += 2
        else:
            e("v_add_u32 v%d, v%d, v%d" % (lim, lim, cc + k)); k += 1
    e("v_sub_u32 v%d, 64, v%d" % (lim, lim))
    e("v_max_i32 v%d, 0, v%d" % (lim, lim))
    e("v_and_b32 v%d, -8, v%d" % (tmp, lim))
    e("v_min_u32 v%d, %d, v%d" % (f, 8 * R0, tmp))
    for k in range(1, NPH):
        e("v_add_u32 v%d, v%d, v%d" % (lim, lim, cc + k - 1))
        e("v_add_u32 v%d, v%d, v%d" % (en, f + k - 1, cc + k - 1))
        e("v_and_b32 v%d, -8, v%d" % (tmp, lim))
        e("v_min_u32 v%d, %d, v%d" % (tmp, 8 * (R0 + k), tmp))
        e("v_max_u32 v%d, v%d, v%d" % (f + k, tmp, en))
    e("ds_write_b128 v%d, v[%d:%d] offset:%d" % (t, f, f + 3, L_ST))
    e("ds_write_b128 v%d, v[%d:%d] offset:%d" % (t, f + 4, f + 7, L_ST + 16))
    st = lambda i: 232 + i
    def b_st(i):
        e("ds_read_b32 v%d, v%d offset:%d" % (st(i), kad(i), L_ST))
        e("v_and_b32 v%d, 0x7e0, v%d" % (kad(i), kad(i)))
        e("v_lshlrev_b32 v%d, 6, v%d" % (kad(i), kad(i)))
    stage("st", b_st)
    e("s_waitcnt lgkmcnt(0)")
    fstamp()
    def b_pl(i):
        e("v_add_u32 v%d, v%d, v%d" % (st(i), st(i), rec(i) + 3))
        e("v_min_u32 v%d, 64, v%d" % (st(i), st(i)))
        e("v_lshl_add_u32 v%d, v%d, 4, v%d" % (kad(i), st(i), kad(i)))
        e("v_lshrrev_b32 v%d, 6, v%d" % (st(i), st(i)))
        e("ds_write_b96 v%d, v[%d:%d] offset:%d" % (kad(i), rec(i), rec(i) + 2, L_SLOT))
        e("v_lshl_or_b32 v%d, v%d, %d, v%d" % (PEND, st(i), i, PEND))
    stage("pl", b_pl)
    e("s_mov_b64 exec, -1")
    e("v_cmp_ne_u32 vcc, 0, v%d" % PEND)
    e("s_cmp_lg_u64 vcc, 0")
    e("s_addc_u32 s4, s43, 0")
    e("v_mov_b32 v%d, s4" % (t + 2))
    e("ds_write_b32 v%d, v%d offset:%d" % (vf, t + 2, L_WT))
    e("s_waitcnt lgkmcnt(0)")
    e("s_barrier")
    stamp()
    for u in range(5):
        e("ds_read_b32 v%d, v%d offset:%d" % (D0 + u, va, 2048 * u + 8))
    e("ds_read_b32 v238, v%d offset:%d" % (vb, L_WT))
    vb = 238
    for r in range(LB[0], LB[0] + 32, 2): e("v_mov_b64 v[%d:%d], 0" % (r, r + 1))
    for u in range(5):
        e("s_waitcnt lgkmcnt(5)")
        e("v_lshrrev_b32 v%d, 11, v%d" % (D0 + u, D0 + u))
        e("v_lshlrev_b32 v%d, 10, v%d" % (D0 + u, D0 + u))
        e("v_cmp_gt_u32 s[%d:%d], s10, v%d" % (SM + 2 * u, SM + 2 * u + 1, D0 + u))
        if opt("small", 0): e("v_and_b32 v%d, 0xffc00, v%d" % (D0 + u, D0 + u))
        e("ds_write_b32 v%d, v%d offset:%d" % (vo, D0 + u, L_OFFS + OFFS_STRIDE * u))
    e("s_or_b64 s[4:5], s[%d:%d], s[%d:%d]" % (SM, SM + 1, SM + 2, SM + 3))
    for u in range(2, 5):
        e("s_or_b64 s[4:5], s[4:5], s[%d:%d]" % (SM + 2 * u, SM + 2 * u + 1))
    e("s_bitset1_b32 s5, 24")
    e("s_ff1_i32_b64 s6, s[4:5]")
    e("s_and_b32 s6, s6, 0x38")
    for u in range(5):
        e("s_lshr_b64 s[%d:%d], s[%d:%d], s6" % (SM + 2 * u, SM + 2 * u + 1, SM + 2 * u, SM + 2 * u + 1))
    e("s_lshl_b32 s7, s6, 2")
    e("s_add_u32 s7, s7, s48")
    e("v_mov_b32 v%d, s7" % VOA)
    e("s_mul_i32 s7, s6, 10")
    e("s_add_u32 s7, s7, s49")
    e("v_add_u32 v%d, s7, v%d" % (VCA, PSEL))
    e("s_lshr_b32 s6, s6, 3")
    e("s_sub_u32 s40, 8, s6")
    e("s_and_b32 s51, s6, 1")
    e("s_cmp_lt_u32 s17, 4")
    e("s_cselect_b32 s41, %d, %d" % (opt("po", 1), opt("py", 0)))
    e("s_add_u32 s41, s41, s6")
    def ooff(g): return L_OFFS + (g % 5) * OFFS_STRIDE + (g // 5) * 32
    def coff(g): return L_COEF + (g % 5) * COEF_STRIDE + (g // 5) * 80
    def rdoff(g, r=VO):
        e("ds_read_b128 v[%d:%d], v%d offset:%d" % (r, r + 3, VOA, ooff(g)))
        e("ds_read_b128 v[%d:%d], v%d offset:%d" % (r + 4, r + 7, VOA, ooff(g) + 16))
    NC = [38, 39]
    lid = [0]
    def count(u, buf):
        m = SM + 2 * u
        e("s_and_b32 s%d, s%d, 0xff" % (NC[buf], m))
        e("s_bcnt1_i32_b32 s%d, s%d" % (NC[buf], NC[buf]))
        e("s_lshr_b64 s[%d:%d], s[%d:%d], 8" % (m, m + 1, m, m + 1))
    def ladder(buf, wait=True, r=VO):
        n = lid[0]; lid[0] += 1
        for i in range(8):
            e("s_cmp_le_u32 s%d, %d" % (NC[buf], i))
            e("s_cbranch_scc1 L2_w%d_%d" % (n, i if wait else 8))
            e("buffer_load_dwordx4 v[%d:%d], v%d, s[8:11], 0 offen" %
              (LB[buf] + 4 * i, LB[buf] + 4 * i + 3, r + i))
        if wait:
            e("s_branch L2_w%d_8" % n)
            for i in range(8):
                lab("L2_w%d_%d" % (n, i))
                e("s_waitcnt vmcnt(%d)" % i)
        lab("L2_w%d_8" % n)
        if wait: e("s_waitcnt vmcnt(8)")
    rdoff(0)
    for r in range(LB[1], LB[1] + 32, 2): e("v_mov_b64 v[%d:%d], 0" % (r, r + 1))
    count(0, 0)
    count(1, 1)
    e("s_mov_b32 s43, s39")
    e("s_cmp_eq_u32 s51, 1")
    e("s_cselect_b32 s39, s38, s39")
    e("s_cselect_b32 s38, s43, s38")
    e("s_waitcnt lgkmcnt(0)")
    fstamp()
    def ladder2(k):
        e("s_cmp_eq_u32 s51, 1")
        e("s_cbranch_scc1 L2_o%d" % k)
        ladder(k, False)
        e("s_branch L2_oe%d" % k)
        lab("L2_o%d" % k)
        ladder(k ^ 1, False)
        lab("L2_oe%d" % k)
    ladder2(0)
    rdoff(1)
    e("v_and_b32 v239, 1, v%d" % vb)
    e("v_cmp_ne_u32 vcc, 0, v239")
    e("s_or_b32 s44, vcc_lo, vcc_hi")
    e("v_cmp_lt_u32 vcc, 1, v%d" % vb)
    e("s_or_b32 s45, vcc_lo, vcc_hi")
    e("s_or_b32 s50, s44, s45")
    e("s_cselect_b32 s50, -1, 1")
    CF = 224
    for u in range(5):
        e("ds_read_b64 v[%d:%d], v%d offset:%d" % (CF + 2 * u, CF + 2 * u + 1, va, 2048 * u))
    sa = 234; sb = 235; kp = 236; sd = 237; wa = 238; rc = 239
    e("v_mov_b32 v%d, s18" % sa)
    e("v_mov_b32 v%d, s19" % sb)
    e("v_bfe_u32 v%d, v%d, 3, 3" % (wa, TID))
    e("v_mul_u32_u24 v%d, 80, v%d" % (wa, wa))
    e("v_bfe_u32 v%d, v%d, 1, 2" % (kp, TID))
    e("v_lshl_add_u32 v%d, v%d, 2, v%d" % (wa, kp, wa))
    e("v_add_u32 v%d, s49, v%d" % (wa, wa))
    e("s_mov_b32 s6, 0xaaaaaaaa")
    e("s_mov_b32 s7, 0xaaaaaaaa")
    e("s_mov_b64 exec, s[6:7]")
    e("v_mov_b32 v%d, 0x01000504" % sa)
    e("v_mov_b32 v%d, 0x03020706" % sb)
    e("v_add_u32 v%d, 32, v%d" % (wa, wa))
    e("s_mov_b64 exec, -1")
    e("s_waitcnt lgkmcnt(5)")
    ladder2(1)
    e("s_waitcnt lgkmcnt(0)")
    for u in range(5):
        lo = CF + 2 * u; hi = lo + 1
        e("v_cndmask_b32 v%d, v%d, v%d, s[6:7]" % (sd, hi, lo))
        e("v_cndmask_b32 v%d, v%d, v%d, s[6:7]" % (kp, lo, hi))
        e("s_nop 0")
        e("v_mov_b32_dpp v%d, v%d quad_perm:[1,0,3,2] row_mask:0xf bank_mask:0xf" % (rc, sd))
        e("v_perm_b32 v%d, v%d, v%d, v%d" % (lo, rc, kp, sa))
        e("v_perm_b32 v%d, v%d, v%d, v%d" % (hi, rc, kp, sb))
        e("ds_write2_b32 v%d, v%d, v%d offset0:0 offset1:4" % (wa, lo, hi))
        if u < 4: e("v_add_u32 v%d, %d, v%d" % (wa, COEF_STRIDE, wa))
    e("v_and_b32 v%d, 63, v%d" % (rc, TID))
    e("v_mul_u32_u24 v%d, 80, v%d" % (rc, rc))
    e("v_add_u32 v%d, s49, v%d" % (rc, rc))
    e("s_waitcnt lgkmcnt(0)")
    for r in range(BT[0], BT[0] + 8, 2): e("v_mov_b64 v[%d:%d], 0" % (r, r + 1))
    e("s_mov_b64 exec, s[46:47]")
    e("ds_write_b128 v%d, v[%d:%d] offset:%d" % (rc, BT[0], BT[0] + 3, L_COEF + 64))
    e("s_mov_b64 exec, -1")
    e("ds_read_b128 v[%d:%d], v%d offset:%d" % (AF[0], AF[0] + 3, VCA, coff(0)))
    e("ds_read_b128 v[%d:%d], v%d offset:%d" % (AF[1], AF[1] + 3, VCA, coff(0)))
    e("s_mul_i32 s4, s51, 80")
    e("s_lshl_b32 s5, s51, 5")
    e("v_subrev_u32 v%d, s4, v%d" % (VCA, VCA))
    e("v_subrev_u32 v%d, s5, v%d" % (VOA, VOA))
    def wfl_load():
        e("v_and_b32 v254, 63, v%d" % TID)
        e("v_min_u32 v254, 39, v254")
        e("s_and_b32 s4, s17, 3")
        e("s_mul_i32 s4, s4, 320")
        e("s_add_u32 s4, s4, %d" % WS_WFL)
        e("v_lshl_add_u32 v254, v254, 3, s4")
        e("global_load_dwordx2 v[254:255], v254, s[14:15] sc1")
    if NB == 256:
        e("s_mul_i32 s5, s16, 625")
        e("s_add_u32 s6, s5, %d" % (625 + 15))
        e("s_add_u32 s5, s5, 15")
        e("s_lshr_b32 s5, s5, 4")
        e("s_lshr_b32 s6, s6, 4")
        e("s_sub_u32 s7, s6, s5")
    else:
        e("s_mul_i32 s5, s16, 40")
        e("s_mov_b32 s7, 40")
    e("s_cmp_eq_u32 s7, 40")
    e("s_cselect_b32 s54, -1, 0x7f7f7f7f")
    e("s_and_b32 s52, s54, 0x00ff00ff")
    e("s_mov_b32 s53, s52")
    e("s_mov_b32 s55, s54")
    e("s_lshl_b32 s5, s5, 10")
    e("s_and_b32 s6, s17, 3")
    e("s_lshl_b32 s6, s6, 6")
    e("s_add_u32 s5, s5, s6")
    e("s_add_u32 s20, s12, s5")
    e("s_addc_u32 s21, s13, 0")
    e("s_add_u32 s22, s20, 16384")
    e("s_addc_u32 s23, s21, 0")
    e("s_add_u32 s24, s20, 32768")
    e("s_addc_u32 s25, s21, 0")
    e("s_and_b32 s4, s17, 3")
    e("s_mul_i32 s4, s4, 40960")
    e("s_add_u32 s4, s4, %d" % (WS_WF + 4096))
    e("s_add_u32 s26, s14, s4")
    e("s_addc_u32 s27, s15, 0")
    e("s_barrier")
    for i in range(8):
        e("s_cmp_le_u32 s43, %d" % i)
        e("s_cbranch_scc1 L2_f%d" % i)
    e("s_branch L2_f8")
    for i in range(9):
        lab("L2_f%d" % i)
        e("s_waitcnt vmcnt(%d)" % i)
    e("s_waitcnt lgkmcnt(0)")
    fstamp()
    e("s_cmp_ge_u32 s59, 160")
    e("s_cbranch_scc1 L2_nfl")
    e("s_lshl_b32 s4, s59, 3")
    e("s_add_u32 s4, s4, %d" % WS_WFL)
    e("v_mov_b32 v%d, s4" % VO)
    e("v_mov_b32 v254, s56")
    e("v_mov_b32 v255, s58")
    e("s_mov_b64 exec, 1")
    e("global_store_dwordx2 v%d, v[254:255], s[14:15] sc1" % VO)
    e("s_mov_b64 exec, -1")
    lab("L2_nfl")
    e("s_mov_b32 s59, 161")
    e("v_mov_b32 v255, -1")
    e("s_cmp_eq_u32 s51, 1")
    e("s_cbranch_scc1 L2_g5")
    X = opt("x", "")
    VAR = opt("var", 1)
    out.append(".p2align 6")
    lab("L2_sweep")
    for g in range(10):
        u = g % 5; buf = g & 1; L = LB[buf]; A = AF[buf]
        u2 = (g + 2) % 5
        lab("L2_g%d" % g)
        rdoff(g + 2)
        e("ds_read_b128 v[%d:%d], v%d offset:%d" % (AF[buf ^ 1], AF[buf ^ 1] + 3, VCA, coff(g + 1)))
        def body(np_):
            def P(j):
                if "P" in X: return
                d = j >> 1; s = "s19" if j & 1 else "s18"
                for tt in range(np_):
                    e("v_perm_b32 v%d, v%d, v%d, %s" % (BT[j & 1] + tt, L + 4 * (2 * tt + 1) + d, L + 4 * (2 * tt) + d, s))
            def M(j):
                if "M" in X: return
                a = ACC + 32 * u + 4 * j
                if np_ == 2:
                    e("v_mfma_f32_16x16x16_bf16 v[%d:%d], v[%d:%d], v[%d:%d], v[%d:%d]" %
                      (a, a + 3, A, A + 1, BT[j & 1], BT[j & 1] + 1, a, a + 3))
                else:
                    e("v_mfma_f32_16x16x32_bf16 v[%d:%d], v[%d:%d], v[%d:%d], v[%d:%d]" %
                      (a, a + 3, A, A + 3, BT[j & 1], BT[j & 1] + 3, a, a + 3))
            P(0); P(1); M(0)
            for j in range(2, 8):
                P(j); M(j - 1)
            e("s_nop 0")
            M(7)
        if VAR:
            e("s_cmp_gt_u32 s%d, 6" % NC[buf])
            e("s_cbranch_scc1 L2_v4_%d" % g)
            e("s_cmp_gt_u32 s%d, 4" % NC[buf])
            e("s_cbranch_scc1 L2_v3_%d" % g)
            e("s_cmp_eq_u32 s%d, 0" % NC[buf])
            e("s_cbranch_scc1 L2_skip%d" % g)
            body(2)
            e("s_branch L2_skip%d" % g)
            lab("L2_v3_%d" % g)
            body(3)
            e("s_branch L2_skip%d" % g)
            lab("L2_v4_%d" % g)
            body(4)
        else:
            e("s_cmp_eq_u32 s%d, 0" % NC[buf])
            e("s_cbranch_scc1 L2_skip%d" % g)
            body(4)
        lab("L2_skip%d" % g)
        if g >= 5:
            e("s_cmp_eq_u32 s40, s50")
            e("s_cbranch_scc1 L2_x%d" % u)
        count(u2, buf)
        if g == 4:
            e("s_sub_u32 s40, s40, 1")
            e("s_cmp_lg_u32 s40, 1")
            e("s_cbranch_scc1 L2_nz")
            wfl_load()
            lab("L2_nz")
        if g == 9:
            e("v_add_u32 v%d, 160, v%d" % (VCA, VCA))
            e("v_add_u32 v%d, 64, v%d" % (VOA, VOA))
            e("s_sub_u32 s40, s40, 1")
        e("s_waitcnt lgkmcnt(0)")
        ladder(buf)
        if g in (4, 9):
            e("s_add_u32 s41, s41, 1")
            e("s_cmp_ge_u32 s41, %d" % opt("t2", 4)); e("s_cbranch_scc0 L2_pr%d" % g); e("s_setprio 2")
            e("s_cmp_ge_u32 s41, %d" % opt("t1", 6)); e("s_cbranch_scc0 L2_pr%d" % g); e("s_setprio 1")
            e("s_cmp_ge_u32 s41, %d" % opt("t0", 8)); e("s_cbranch_scc0 L2_pr%d" % g); e("s_setprio 0")
            lab("L2_pr%d" % g)
            if g == 9:
                e("s_cmp_lg_u32 s40, 0")
                e("s_cbranch_scc1 L2_sweep")
    e("s_barrier")
    lds_init()
    e("s_waitcnt lgkmcnt(0)")
    e("s_barrier")
    e("s_cmp_lg_u32 s44, 0")
    e("s_cbranch_scc1 L2_pass")
    e("v_add_u32 v%d, %d, v%d" % (RB, 32 * U, RB))
    e("v_add_u32 v%d, %d, v%d" % (REM, -2 * U, REM))
    e("s_branch L2_batch")
    lab("L2_pass")
    for i in range(U):
        e("v_and_b32 v%d, %d, v%d" % (t, 1 << i, PEND))
        e("v_cmp_ne_u32 %s, 0, v%d" % (msk(i), t))
        e("s_mov_b64 exec, %s" % msk(i))
        e("global_load_dwordx4 v[%d:%d], v%d, s[14:15] offset:%d sc1" % (rec(i), rec(i) + 3, RB, 32 * i))
        e("s_mov_b64 exec, -1")
    e("s_mov_b32 s42, %d" % U)
    e("s_branch L2_ld")
    LC = 252; LA = 249; TS = 250; LBB = 251; SG = 254; SG2 = 255; ADR = VO; TMP = VO + 1
    TA0 = BT[0]; TA1 = BT[1]
    def wreg(f_): return 4 * f_ if f_ < 20 else 160 + 4 * (f_ - 20)
    def wload(lo, hi):
        for f_ in range(lo, hi):
            if f_ and f_ % 8 == 0:
                e("s_add_u32 s26, s26, 8192")
                e("s_addc_u32 s27, s27, 0")
            e("global_load_dwordx4 v[%d:%d], v%d, s[26:27] offset:%d sc1" % (wreg(f_), wreg(f_) + 3, LC, (f_ % 8) * 1024 - 4096))
    def waitn(tag, nreg, extra):
        for i in range(8):
            e("s_cmp_le_u32 s%d, %d" % (nreg, i))
            e("s_cbranch_scc1 L2_%s_%d" % (tag, i))
        e("s_branch L2_%s_8" % tag)
        for i in range(9):
            lab("L2_%s_%d" % (tag, i))
            e("s_waitcnt vmcnt(%d)" % (i + extra))
    RA = [80, 81, 82, 83]; OA = 84; OAX = 85
    e1, e2, e3 = [int(x) for x in opt("ws", "0,8,16").split(",")]
    wsch = {1: (0, e1), 2: (e1, e2), 3: (e2, e3)}
    wn = {0: 0, 1: e1, 2: e2 - e1, 3: e3 - e2}
    for u in range(5):
        g = 5 + u; buf = g & 1; A = ACC + 32 * u
        lab("L2_x%d" % u)
        if u == 4: stamp()
        if u <= 2:
            count((g + 2) % 5, buf)
            e("s_waitcnt lgkmcnt(0)")
            ladder(buf, False)
        else:
            e("s_waitcnt lgkmcnt(0)")
        if u == 0:
            e("s_mov_b32 s6, %d" % (1 << 20))
            lab("L2_wchk")
            e("v_cmp_ne_u32 vcc, s56, v254")
            e("v_cmp_ne_u32 s[4:5], s58, v255")
            e("s_or_b64 vcc, vcc, s[4:5]")
            e("s_cbranch_scc0 L2_wok")
            e("s_waitcnt vmcnt(0)")
            wfl_load()
            e("s_sub_u32 s6, s6, 1")
            e("s_waitcnt vmcnt(0)")
            e("s_cbranch_scc0 L2_wchk")
            lab("L2_wok")
            e("v_and_b32 v%d, 63, v%d" % (LC, TID))
            e("v_and_b32 v%d, 3, v%d" % (SG, LC))
            e("v_bfe_u32 v%d, v%d, 2, 2" % (ADR, LC))
            e("v_lshlrev_b32 v%d, 4, v%d" % (LC, LC))
            e("v_lshlrev_b32 v%d, 8, v%d" % (LA, SG))
            e("v_lshl_add_u32 v%d, v%d, 10, v%d" % (LA, ADR, LA))
            e("v_and_b32 v%d, 1, v%d" % (ADR, ADR))
            e("v_mul_u32_u24 v%d, 12, v%d" % (ADR, ADR))
            e("v_or_b32 v%d, v%d, v%d" % (SG, SG, ADR))
            e("v_lshlrev_b32 v%d, 4, v%d" % (SG, SG))
            e("v_mov_b32 v%d, v%d" % (SG2, SG))
            e("v_add_u32 v%d, %d, v%d" % (LBB, L_F0 + 16384, LA))
            e("v_mov_b32 v%d, 8192" % TS)
            e("v_mov_b32 v%d, v%d" % (TMP, LA))
            e("v_add_u32 v%d, %d, v%d" % (LA, L_F0, LA))
            for gp in range(1, 4):
                lo = 0xffff0000 if gp == 1 else 0
                hi = {1: 0, 2: 0x0000ffff, 3: 0xffff0000}[gp]
                e("s_mov_b32 exec_lo, 0x%x" % lo)
                e("s_mov_b32 exec_hi, 0x%x" % hi)
                e("v_add_u32 v%d, %d, v%d" % (LA, L_F1 + (gp - 1) * 24576, TMP))
                e("v_add_u32 v%d, %d, v%d" % (LBB, L_F1 + (7 if gp == 3 else 6) * 12288, TMP))
                e("v_mov_b32 v%d, 12288" % TS)
                if gp == 2: e("v_xor_b32 v%d, 128, v%d" % (SG2, SG2))
            e("s_mov_b64 exec, -1")
            e("s_mul_i32 s51, s17, 5")
            e("s_mov_b32 s48, 0xffff0000")
            e("s_mov_b32 s49, -1")
        if u == 4:
            e("s_cmp_lt_u32 s17, 4")
            e("s_cbranch_scc1 L2_xw4")
            wload(e3, 36)
            lab("L2_xw4")
        e("s_lshr_b32 s5, s51, 4")
        e("s_and_b32 s6, s51, 15")
        e("s_lshl_b32 s6, s6, 4")
        e("s_cmp_lt_u32 s51, 32")
        e("s_cselect_b64 s[42:43], -1, 0")
        e("v_mad_u32_u24 v%d, v%d, s5, v%d" % (ADR, TS, LA))
        e("v_cndmask_b32 v%d, v%d, v%d, s[42:43]" % (ADR, LBB, ADR))
        e("v_cndmask_b32 v%d, v%d, v%d, s[42:43]" % (TMP, SG2, SG))
        e("v_xor_b32 v%d, s6, v%d" % (TMP, TMP))
        e("v_add_u32 v%d, v%d, v%d" % (ADR, ADR, TMP))
        for dd in range(4):
            e("v_cvt_pk_bf16_f32 v%d, v%d, v%d" % (TA0 + dd, A + 8 * dd, A + 8 * dd + 4))
        e("ds_write_b128 v%d, v[%d:%d]" % (ADR, TA0, TA0 + 3))
        for dd in range(4):
            e("v_cvt_pk_bf16_f32 v%d, v%d, v%d" % (TA1 + dd, A + 8 * dd + 1, A + 8 * dd + 5))
        e("ds_write_b128 v%d, v[%d:%d] offset:4096" % (ADR, TA1, TA1 + 3))
        for j in range(8):
            e("v_sub_f32 v%d, v%d, v%d" % (A + 4 * j + 2, A + 4 * j + 2, A + 4 * j + 3))
        for dd in range(4):
            e("v_cvt_pk_bf16_f32 v%d, v%d, v%d" % (A + dd, A + 8 * dd + 2, A + 8 * dd + 6))
        e("s_mov_b64 exec, s[48:49]")
        e("ds_write_b128 v%d, v[%d:%d] offset:8192" % (ADR, A, A + 3))
        e("s_mov_b64 exec, -1")
        e("s_add_u32 s51, s51, 1")
        if u == 0:
            waitn("y0", NC[buf], 0)
            e("s_branch L2_g6")
        elif u <= 3:
            e("s_cmp_lt_u32 s17, 4")
            e("s_cbranch_scc1 L2_xo%d" % u)
            wload(*wsch[u])
            if u == 3:
                T2 = 86; T3 = 87
                e("v_lshrrev_b32 v%d, 8, v%d" % (T2, LC))
                e("v_bfe_u32 v%d, v%d, 4, 4" % (T3, LC))
                e("v_xor_b32 v%d, v%d, v%d" % (RA[0], T3, T2))
                e("v_lshlrev_b32 v%d, 4, v%d" % (RA[0], RA[0]))
                e("v_lshl_add_u32 v%d, v%d, 8, v%d" % (RA[0], T2, RA[0]))
                e("v_xor_b32 v%d, 0xc0, v%d" % (RA[1], RA[0]))
                e("v_add_u32 v%d, %d, v%d" % (RA[2], L_F + 65536, RA[0]))
                e("v_add_u32 v%d, %d, v%d" % (RA[3], L_F + 65536, RA[1]))
                e("v_add_u32 v%d, %d, v%d" % (RA[0], L_F, RA[0]))
                e("v_add_u32 v%d, %d, v%d" % (RA[1], L_F, RA[1]))
                e("v_lshlrev_b32 v%d, 10, v%d" % (OA, T3))
                e("v_lshl_add_u32 v%d, v%d, 4, v%d" % (OA, T2, OA))
                e("v_mov_b32 v%d, v%d" % (OAX, OA))
                e("s_mov_b32 exec_lo, 0xff00ff00")
                e("s_mov_b32 exec_hi, 0xff00ff00")
                e("v_add_u32 v%d, %d, v%d" % (OAX, -8192 + 256, OAX))
                e("s_mov_b64 exec, -1")
                e("s_waitcnt vmcnt(%d)" % (wn[2] + wn[3]))
            else:
                waitn("y%d" % u, NC[buf], wn[u - 1] + wn[u])
            e("s_branch L2_g%d" % (g + 1))
            lab("L2_xo%d" % u)
            if u == 3: e("s_waitcnt vmcnt(0)")
            else: waitn("z%d" % u, NC[buf], 0)
            e("s_branch L2_g%d" % (g + 1))
    e("s_waitcnt lgkmcnt(0)")
    e("s_cmp_lt_u32 s17, 4")
    e("s_cbranch_scc0 L2_gemm")
    stamp()
    e("s_barrier")
    if DIAG:
        e("s_branch L2_fin")
        if not FINE: nstamp[0] -= 1
    else:
        e("s_endpgm")
    lab("L2_gemm")
    wload(36, 40)
    WLM = 1
    stamp()
    e("s_barrier")
    stamp()
    jobs = [("g", tau, tau * 8192, 0, 8, 0) for tau in range(3)]
    for tau in range(2):
        for i in range(3): jobs.append(("o", tau, 24576 + (2 * i + tau) * 12288, 8, 12, i + 1))
    jobs.append(("x", 2, 24576 + 6 * 12288, 8, 12, 1))
    jobs.append(("y", 2, 24576 + 7 * 12288, 8, 12, 3))
    GA = [96, 104, 112]
    AC = [120, 128]; RING = [136, 140, 144, 148, 152, 156, 240, 244]; NR = 8; AHEAD = opt("ahead", 6)
    PK = [88, 92]
    def acc_of(jn): return GA[jn] if jn < 3 else AC[jn & 1]
    seq = []; jstart = []
    for jn, (kind, tau, off, k0, nk, part) in enumerate(jobs):
        jstart.append(len(seq))
        for ks in range(nk): seq.append((jn, k0 + ks, off + ks * 1024, ks))
    jstart.append(len(seq))
    nl = [0]; rdq = {}
    def rd(n):
        jn, wk, off, ks = seq[n]
        hi = off >= 65536
        r = RING[n % NR]
        e("ds_read_b128 v[%d:%d], v%d offset:%d" % (r, r + 3, RA[(2 if hi else 0) + (ks & 1)], off - (65536 if hi else 0)))
        rdq[n] = nl[0]; nl[0] += 1
    def fin(jn):
        kind, tau, off, k0, nk, part = jobs[jn]
        a = acc_of(jn); g = GA[tau]; p = PK[jn & 1]; c = []
        sb = "s[%d:%d]" % (20 + 2 * tau, 21 + 2 * tau)
        if kind != "g":
            c += ["v_mul_f32 v%d, v%d, v%d" % (a + r, a + r, g + r) for r in range(8)]
        c += ["v_cvt_pk_bf16_f32 v%d, v%d, v%d" % (p + r, a + 2 * r, a + 2 * r + 1) for r in range(4)]
        stt = "global_store_dwordx4 v%d, v[%d:%d], %s offset:%d%s" % (OAX if kind == "x" else OA, p, p + 3, sb, 256 * part, SFL)
        if tau == 2:
            c.append(["s_mov_b64 exec, %s" % ("s[54:55]" if kind == "x" else "s[52:53]"), stt, "s_mov_b64 exec, -1"])
        else:
            c.append(stt)
        return c
    def gate(tau):
        g = GA[tau]; c = []
        c += ["v_mul_f32 v%d, 0xbfb8aa3b, v%d" % (g + r, g + r) for r in range(8)]
        c += ["v_exp_f32 v%d, v%d" % (g + r, g + r) for r in range(8)]
        c += ["v_add_f32 v%d, 1.0, v%d" % (g + r, g + r) for r in range(8)]
        c += ["v_rcp_f32 v%d, v%d" % (g + r, g + r) for r in range(8)]
        if tau == 2:
            c += ["v_mov_b32_dpp v%d, v%d row_shr:8 row_mask:0xf bank_mask:0xc" % (g + r, g + r) for r in range(8)]
        return c
    INF = 10 ** 6
    side = []
    for f_ in range(20, 20 if WLM else 40):
        it = []
        if f_ % 8 == 0: it += ["s_add_u32 s46, s46, 8192", "s_addc_u32 s47, s47, 0"]
        it.append("global_load_dwordx4 v[%d:%d], v%d, s[46:47] offset:%d sc1" % (wreg(f_), wreg(f_) + 3, LC, (f_ % 8) * 1024 - 4096))
        side.append((0, jstart[3] - 8, it))
    ready = lambda jn: jstart[jn + 1] + 2
    def add(items, lo, dl): side.extend((lo, dl, x) for x in items)
    add(fin(0), ready(0), INF); add(gate(0), ready(0), INF)
    add(fin(1), ready(1), INF); add(fin(2), ready(2), INF)
    g1 = gate(1); g2 = gate(2)
    for jn in range(3, len(jobs)):
        dl = jstart[jn + 2] if jn + 2 < len(jobs) else INF
        add(fin(jn), ready(jn), dl)
        if jn in (3, 4): add(g1[16 * (jn - 3):16 * (jn - 2)], 0, INF)
        if jn in (5, 6, 7): add(g2[14 * (jn - 5):14 * (jn - 4)], 0, INF)
    if opt("noside", 0): side = [x for x in side if x[0] >= ready(len(jobs) - 1)]
    vm = []
    def emit(x):
        cost = 0
        for y in (x if isinstance(x, list) else [x]):
            e(y); cost += 2 if y.startswith(("v_exp", "v_rcp")) else 1
            if y.startswith("global_"): vm.append(y)
        return cost
    def wait_frag(f_):
        if WLM: n = 39 - f_ + len(vm)
        elif f_ < 20: n = 19 - f_ + len(vm)
        else:
            pos = [k for k, y in enumerate(vm) if y.startswith("global_load")][f_ - 20]
            n = len(vm) - 1 - pos
        e("s_waitcnt vmcnt(%d)" % n)
    for n in range(AHEAD): rd(n)
    wdone = -1; credit = 0.0
    BUD = float(opt("bud", 3.0))
    for n in range(len(seq)):
        jn, wk, off, ks = seq[n]
        while any(dl <= n for _, dl, _ in side): emit(side.pop(0)[2])
        if wk > wdone:
            wait_frag(2 * wk + 3); wdone = wk + 1
        if n % 2 == 0:
            e("s_waitcnt lgkmcnt(%d)" % (nl[0] - 1 - rdq[min(n + 1, len(seq) - 1)]))
        r = RING[n % NR]
        credit = min(credit + BUD, BUD + 1)
        for T in range(2):
            a = acc_of(jn) + 4 * T; w = wreg(2 * wk + T)
            e("v_mfma_f32_16x16x32_bf16 v[%d:%d], v[%d:%d], v[%d:%d], %s" %
              (a, a + 3, w, w + 3, r, r + 3, "0" if ks == 0 else "v[%d:%d]" % (a, a + 3)))
            if T == 0 and n + AHEAD < len(seq): rd(n + AHEAD)
            used = 0
            while side and side[0][0] <= n and credit >= 1 and used < 1 + T:
                c_ = emit(side.pop(0)[2]); credit -= c_; used += c_
    stamp()
    while side and side[0][0] < ready(len(jobs) - 1): emit(side.pop(0)[2])
    e("s_nop 7")
    for _, _, x in side: emit(x)
    lab("L2_fin")
    if DIAG: e("s_waitcnt vmcnt(0)")
    dump_stamps("s[14:15]", "s17", 1 << 20, 140)
    if "enc" in OPT:
        k = int(OPT["enc"])
        if k < 0:
            e("s_mov_b64 exec, -1")
            e("v_mov_b32 v142, %d" % (WS_DBG + 4 * (-k - 1)))
            e("global_load_dword v143, v142, s[14:15]")
            e("s_waitcnt vmcnt(0)")
            e("v_readfirstlane_b32 s44, v143")
        else:
            e("s_mov_b32 s44, s%d" % (64 + 2 * k))
        lab("L2_spin")
        e("s_memrealtime s[46:47]")
        e("s_waitcnt lgkmcnt(0)")
        e("s_sub_u32 s46, s46, s44")
        e("s_cmp_lt_u32 s46, 6000")
        e("s_cbranch_scc1 L2_spin")
    lab("L2_end")
    e("s_endpgm")
    if CPF:
        out.append(".fill (28672 - (L2_end - %s_kernel)) / 4, 4, 0xbf810000" % NAME)

header()
k2()
out.append('.section .rodata,"a"')
kdesc(NAME + "_kernel", 256, 100 if DIAG else 64)
open(sys.argv[1], "w").write("\n".join(out) + "\n")
```

```python
import sys
NAME = "gather_scatter__tensor_product_equiv_equiformer__graph"
OPT = dict(a.split('=') for a in sys.argv[2:]) if len(sys.argv) > 2 else {}
def opt(k, d): return type(d)(OPT.get(k, d))

N = 10000; E = 320000
NB = opt("nb", 256)
G = 250; CH = 1280
WS_REC = 0
WS_TAB = 6 << 20
WS_WF = 7 << 20
WS_WFL = (7 << 20) + (512 << 10)
WS_DBG = 8 << 20
U = 10
DK = 3
OOB = 0x7F000000
NPH = opt("nph", 7)
PHMUL = {5: 0x8312, 6: 0x9d49, 7: 0xb780, 8: 0xd1b7}[NPH]
L_COEF = 0; COEF_STRIDE = 640
L_OFFS = 25728; OFFS_STRIDE = 256
L_WT = 36864
L_F = 37888
L_CNT = L_F; L_ST = L_F + 2048; L_SLOT = L_ST + 2048
L_F0 = L_F; L_F1 = L_F + 3 * 8192
LDS_MAIN = L_F + 122880
L_IDX = L_SLOT + 81920
L_TOT = L_WT + 32
CL = 24
R0 = 8 - NPH
DIAG = opt("diag", 0)
FL = {"": "", "sc1": " sc1", "nt": " nt", "sc01": " sc0 sc1"}
SFL = FL[opt("sfl", "sc1")]
KFL = FL[opt("kfl", "sc1")]

out = []
def e(s): out.append("    " + s)
def lab(s): out.append(s + ":")

def header():
    ref = open("cdna_kernels/%s.s.ref" % NAME).read().split("\n")
    for l in ref:
        if l.startswith("; Override"): break
        out.append(l)
    out.append("; @launch grid=(%d,1,1) block=(512,1,1) lds=%d" % (NB, LDS_MAIN))
    out.append('.amdgcn_target "amdgcn-amd-amdhsa--gfx950"')
    out.append(".text")

def kstart(name):
    out.append(".globl %s" % name)
    out.append(".p2align 8")
    out.append(".type %s,@function" % name)
    lab(name)

def kdesc(name, vgpr, sgpr):
    out.append(".p2align 6")
    out.append(".amdhsa_kernel %s" % name)
    out.append("  .amdhsa_next_free_vgpr %d" % vgpr)
    out.append("  .amdhsa_next_free_sgpr %d" % sgpr)
    out.append("  .amdhsa_accum_offset %d" % ((vgpr + 3) // 4 * 4))
    out.append("  .amdhsa_group_segment_fixed_size 0")
    out.append("  .amdhsa_kernarg_size 96")
    out.append("  .amdhsa_user_sgpr_count 2")
    out.append("  .amdhsa_user_sgpr_kernarg_segment_ptr 1")
    out.append("  .amdhsa_system_sgpr_workgroup_id_x 1")
    out.append(".end_amdhsa_kernel")

nstamp = [0]
FINE = opt("fine", 0)
def fstamp():
    if FINE == 1: stamp(True)
def pstamp():
    if FINE == 2: stamp(True)
def stamp(f=False):
    if not DIAG: return
    if FINE and nstamp[0] >= 12: return
    k = nstamp[0]; nstamp[0] += 1
    e("s_memrealtime s[%d:%d]" % (64 + 2 * k, 65 + 2 * k))
    if k == 0: e("s_memtime s[92:93]")
    if k == opt("ca", 3): e("s_memtime s[88:89]")
    if k == opt("cb", 4): e("s_memtime s[94:95]")
    e("s_waitcnt lgkmcnt(0)")
def dump_stamps(ws, swave, base, vt):
    if not DIAG: return
    e("s_memtime s[90:91]")
    stamp()
    e("s_mov_b64 exec, -1")
    e("v_mov_b32 v%d, 0" % vt)
    e("s_sub_u32 s90, s90, s92")
    e("v_writelane_b32 v%d, s90, 14" % vt)
    e("s_sub_u32 s94, s94, s88")
    e("v_writelane_b32 v%d, s94, 13" % vt)
    e("s_sub_u32 s97, %d, s97" % (1 << 20))
    e("s_sub_u32 s98, %d, s98" % (1 << 20))
    e("s_lshl_b32 s98, s98, 16")
    e("s_or_b32 s97, s97, s98")
    e("v_writelane_b32 v%d, s97, 15" % vt)
    for k in range(nstamp[0]):
        e("v_writelane_b32 v%d, s%d, %d" % (vt, 64 + 2 * k, k))
    e("s_lshl_b32 s96, s2, 3")
    e("s_add_u32 s96, s96, %s" % swave)
    e("s_lshl_b32 s96, s96, 6")
    e("s_add_u32 s96, s96, %d" % (WS_DBG + base))
    e("v_mbcnt_lo_u32_b32 v%d, -1, 0" % (vt + 1))
    e("v_lshl_add_u32 v%d, v%d, 2, s96" % (vt + 1, vt + 1))
    e("s_mov_b64 exec, 0xffff")
    e("global_store_dword v%d, v%d, %s" % (vt + 1, vt, ws))
    nstamp[0] = 0

def wave_scan(v, rows_only=False):
    for sh in (1, 2, 4, 8):
        e("s_nop 1")
        e("v_add_u32_dpp %s, %s, %s row_shr:%d row_mask:0xf bank_mask:0xf bound_ctrl:0" % (v, v, v, sh))
    if rows_only: return
    e("s_nop 1")
    e("v_add_u32_dpp %s, %s, %s row_bcast:15 row_mask:0xa bank_mask:0xf" % (v, v, v))
    e("s_nop 1")
    e("v_add_u32_dpp %s, %s, %s row_bcast:31 row_mask:0xc bank_mask:0xf" % (v, v, v))

def unpack(dst, idx, base):
    r = base + idx // 2
    if idx % 2 == 0: e("v_lshlrev_b32 %s, 16, v%d" % (dst, r))
    else: e("v_and_b32 %s, 0xffff0000, v%d" % (dst, r))

ACC = 0; LB = [160, 192]; BT = [224, 228]; AF = [232, 236]; VO = 240
VCA = 248; RB = 249; REM = 250; PEND = 251; TID = 252; VOA = 253; PSEL = 254
SM = 28
def rec(i): return 160 + 4 * i
def kad(i): return 200 + i
T0 = 210
MSK = 20
def msk(i): return "s[%d:%d]" % (MSK + 2 * i, MSK + 2 * i + 1)

def lds_init():
    z = 224; a = 232
    for k in range(7): e("v_mov_b32 v%d, 0" % (z + k + (1 if k == 6 else 0)))
    e("v_mov_b32 v%d, -1" % (z + 6))
    e("v_and_b32 v%d, 63, v%d" % (a, TID))
    e("s_lshl_b32 s4, s17, 11")
    e("s_add_u32 s4, s4, %d" % L_SLOT)
    e("v_lshl_add_u32 v%d, v%d, 4, s4" % (a, a))
    e("v_add_u32 v%d, 32768, v%d" % (a + 3, a))
    e("v_lshlrev_b32 v%d, 2, v%d" % (a + 1, TID))
    for k in range(5):
        e("ds_write_b128 v%d, v[%d:%d] offset:%d" % (a if k < 2 else a + 3, z + 4, z + 7, 16384 * (k if k < 2 else k - 2)))
    e("ds_write_b32 v%d, v%d offset:%d" % (a + 1, z, L_CNT))

def k2():
    kstart(NAME + "_kernel")
    e("s_cmpk_ge_u32 s2, %d" % NB)
    e("s_cbranch_scc1 L2_end")
    e("s_load_dwordx16 s[20:35], s[0:1], 0")
    CPF = opt("cpf", 1)
    if CPF:
        e("s_getpc_b64 s[4:5]")
        e("s_lshr_b32 s6, s2, 3")
        e("s_mulk_i32 s6, 896")
        e("s_add_u32 s4, s4, s6")
        e("s_addc_u32 s5, s5, 0")
        e("v_mov_b32 v1, 0")
        e("v_cmp_gt_u32 vcc, 7, v0")
        e("v_lshlrev_b64 v[2:3], 3, v[0:1]")
        e("v_lshl_add_u64 v[2:3], v[2:3], 4, s[4:5]")
        e("s_and_saveexec_b64 s[4:5], vcc")
        e("s_cbranch_execz L0_nc")
        e("global_load_dword v223, v[2:3], off offset:128")
        lab("L0_nc")
        e("s_mov_b64 exec, -1")
    e("s_load_dwordx4 s[36:39], s[0:1], 80")
    e("s_load_dwordx2 s[12:13], s[0:1], 72")
    e("s_memrealtime s[60:61]")
    stamp()
    t = T0
    P_CNT = 0; P_BASE = 1024; P_STG = 2048; L_NON = L_WT + 64; L_TB = L_OFFS
    JUNK = 223
    e("v_mov_b32 v%d, v0" % TID)
    e("v_lshrrev_b32 v1, 6, v0")
    e("v_and_b32 v4, 63, v0")
    e("s_and_b32 s4, s2, 7")
    e("s_lshr_b32 s5, s2, 3")
    e("v_readfirstlane_b32 s17, v1")
    if NB == 256:
        e("s_lshl_b32 s16, s4, 5")
        e("s_add_u32 s16, s16, s5")
    else:
        e("s_mul_i32 s16, s4, 31")
        e("s_min_u32 s4, s4, 2")
        e("s_add_u32 s16, s16, s4")
        e("s_add_u32 s16, s16, s5")
    e("s_min_u32 s3, s2, %d" % (G - 1))
    e("s_mul_i32 s4, s3, 320")
    e("s_mul_i32 s5, s17, 40")
    e("s_add_u32 s4, s4, s5")
    e("v_add_u32 v5, s4, v4")
    e("v_lshlrev_b32 v1, 4, v5")
    e("v_mul_u32_u24 v2, 24, v5")
    e("v_lshlrev_b32 v3, 3, v5")
    e("v_lshlrev_b32 v72, 6, v5")
    e("v_and_b32 v6, 255, v0")
    e("v_lshlrev_b32 v6, 2, v6")
    e("v_mov_b32 v73, 0")
    e("ds_write_b32 v6, v73 offset:%d" % P_CNT)
    e("s_mov_b32 s46, -1")
    e("s_mov_b32 s47, 0xff")
    e("v_mov_b32 v66, %d" % (2 * ((1 << 26) // 5)))
    e("s_mov_b32 s7, 0x%x" % PHMUL)
    e("v_mov_b32 v5, 1")
    e("s_mov_b64 exec, s[46:47]")
    e("s_waitcnt lgkmcnt(0)")
    e("global_load_dwordx4 v[8:11], v1, s[28:29]")
    e("s_mov_b64 exec, -1")
    e("s_cmp_lg_u32 s17, 7")
    e("s_cbranch_scc1 L1_a")
    e("s_cmp_lt_u32 s2, %d" % (NB - 6))
    e("s_cbranch_scc1 L1_a")
    e("s_and_b32 s61, s61, 0x3ff")
    e("s_bitset1_b32 s61, 31")
    e("v_mov_b32 v76, s60")
    e("v_mov_b32 v77, s61")
    e("v_mov_b32 v78, 0")
    e("v_mov_b32 v79, 0")
    e("s_mov_b64 exec, 1")
    e("global_atomic_cmpswap_x2 v73, v[76:79], s[36:37] sc1")
    e("s_mov_b64 exec, -1")
    lab("L1_a")
    e("s_barrier")
    e("s_mov_b64 exec, s[46:47]")
    e("global_load_dwordx4 v[12:15], v1, s[26:27]")
    e("global_load_dwordx4 v[16:19], v2, s[22:23]")
    e("global_load_dwordx2 v[20:21], v2, s[22:23] offset:16")
    e("global_load_dwordx2 v[22:23], v3, s[24:25]")
    TE = opt("te", 0); TFL = FL[opt("tfl", "")]
    if TE: e("global_load_dword v%d, v72, s[20:21]%s" % (JUNK, TFL))
    e("s_mov_b64 exec, -1")
    pstamp()
    lds_init()
    e("v_lshlrev_b32 v4, 4, v4")
    e("s_mov_b32 s18, 0x05040100")
    e("s_mov_b32 s19, 0x07060302")
    e("s_mov_b64 exec, s[46:47]")
    e("s_waitcnt vmcnt(%d)" % (4 + TE))
    pstamp()
    for k in range(4):
        if NB == 256:
            e("v_mul_u32_u24 v%d, 429497, v%d" % (24 + k, 8 + k))
            e("v_lshrrev_b32 v%d, 24, v%d" % (24 + k, 24 + k))
        else:
            e("v_mul_u32_u24 v%d, 0xcccd, v%d" % (24 + k, 8 + k))
            e("v_lshrrev_b32 v%d, 21, v%d" % (24 + k, 24 + k))
        e("v_lshlrev_b32 v%d, 2, v%d" % (68 + k, 24 + k))
        e("ds_add_rtn_u32 v%d, v%d, v5 offset:%d" % (28 + k, 68 + k, P_CNT))
    for k in range(4):
        if NB == 256:
            e("v_mul_u32_u24 v6, 625, v%d" % (24 + k))
            e("v_add_u32 v6, 15, v6")
            e("v_lshrrev_b32 v6, 4, v6")
        else:
            e("v_mul_u32_u24 v6, 40, v%d" % (24 + k))
        e("v_sub_u32 v%d, v%d, v6" % (8 + k, 8 + k))
    def keyw(k):
        e("v_mad_u32_u24 v6, v%d, s7, v66" % (12 + k))
        e("v_mul_u32_u24 v7, %d, v%d" % ((1 << 26) // 5 + 1, 8 + k))
        e("v_and_b32 v7, 0x3ffffff, v7")
        e("v_sub_u32 v6, v6, v7")
        e("v_ashrrev_i32 v6, 26, v6")
        e("v_med3_i32 v6, v6, 0, %d" % (NPH - 1))
        e("v_lshl_add_u32 v6, v%d, 3, v6" % (8 + k))
        e("v_lshl_add_u32 v6, v%d, 9, v6" % (12 + k))
        e("v_lshlrev_b32 v%d, 2, v6" % (34 + 4 * k))
    def coefs(k):
        unpack("v48", k, 22)
        for j in range(3):
            unpack("v%d" % (49 + j), 3 * k + j, 16)
        for j in range(3):
            e("v_mul_f32 v%d, v48, v%d" % (49 + j, 49 + j))
        e("v_cvt_pk_bf16_f32 v%d, v48, v49" % (32 + 4 * k))
        e("v_cvt_pk_bf16_f32 v%d, v50, v51" % (33 + 4 * k))
    e("s_mov_b64 exec, -1")
    e("s_waitcnt lgkmcnt(0)")
    pstamp()
    e("s_barrier")
    pstamp()
    e("ds_read_b128 v[52:55], v4 offset:%d" % P_CNT)
    e("s_cmp_lg_u32 s17, 7")
    e("s_cbranch_scc1 L1_nt")
    e("global_load_dwordx2 v[74:75], v73, s[36:37] sc1")
    lab("L1_nt")
    TLB = opt("tlb", 0)
    if TLB:
        e("s_cmp_lg_u32 s17, 5")
        e("s_cbranch_scc1 L1_nt2")
        e("v_lshlrev_b32 v74, %d, v4" % (TLB - 4))
        e("global_load_dword v%d, v74, s[38:39] offset:64" % JUNK)
        lab("L1_nt2")
    e("s_waitcnt lgkmcnt(0)")
    e("v_add_u32 v57, v52, v53")
    e("v_add_u32 v58, v57, v54")
    e("v_add_u32 v59, v58, v55")
    e("v_mov_b32 v60, v59")
    wave_scan("v60")
    e("v_sub_u32 v60, v60, v59")
    e("v_add_u32 v61, v60, v52")
    e("v_add_u32 v62, v60, v57")
    e("v_add_u32 v63, v60, v58")
    e("ds_write_b128 v4, v[60:63] offset:%d" % P_BASE)
    e("s_mov_b64 exec, s[46:47]")
    for k in range(4):
        e("ds_read_b32 v%d, v%d offset:%d" % (24 + k, 68 + k, P_BASE))
    e("s_mov_b64 exec, -1")
    if TLB:
        e("s_or_b32 s4, s17, 2")
        e("s_cmp_eq_u32 s4, 7")
    else:
        e("s_cmp_eq_u32 s17, 7")
    e("s_cbranch_scc1 L1_w1")
    e("s_waitcnt vmcnt(%d)" % TE)
    lab("L1_w1")
    e("s_waitcnt vmcnt(%d)" % (1 + TE))
    e("s_cmp_eq_u32 s17, 3")
    e("s_cselect_b32 s59, s2, 160")
    e("s_min_u32 s59, s59, 160")
    e("s_cmp_ge_u32 s59, 160")
    e("s_cbranch_scc1 L1_b")
    e("s_mul_i32 s4, s2, 1639")
    e("s_lshr_b32 s4, s4, 16")
    e("s_mul_i32 s5, s4, 40")
    e("s_sub_u32 s5, s2, s5")
    e("s_and_b32 s6, s5, 1")
    e("s_lshr_b32 s5, s5, 1")
    e("s_cmp_lt_u32 s5, 8")
    e("s_cselect_b64 s[40:41], s[32:33], s[34:35]")
    e("s_cselect_b32 s42, 0, 8")
    e("s_sub_u32 s42, s5, s42")
    e("s_lshl_b32 s42, s42, 13")
    e("s_lshl_b32 s4, s4, 6")
    e("s_add_u32 s42, s42, s4")
    e("s_lshl_b32 s6, s6, 3")
    e("s_add_u32 s42, s42, s6")
    e("v_lshrrev_b32 v80, 8, v4")
    e("v_bfe_u32 v81, v4, 6, 2")
    e("v_bfe_u32 v82, v4, 4, 2")
    e("v_lshlrev_b32 v83, 11, v80")
    e("v_lshl_add_u32 v83, v81, 4, v83")
    e("v_lshl_add_u32 v83, v82, 1, v83")
    e("v_add_u32 v83, s42, v83")
    e("s_lshl_b32 s5, s5, 6")
    e("v_lshl_add_u32 v80, v80, 4, s5")
    e("global_load_dwordx4 v[240:243], v80, s[30:31]")
    for i in range(8):
        e("global_load_ushort v%d, v83, s[40:41] offset:%d" % (232 + i, 256 * i))
    lab("L1_b")
    e("s_mov_b64 exec, s[46:47]")
    PFA = opt("k1pf", 1) and not TE and not opt("noa", 0)
    if PFA: e("global_load_dword v%d, v72, s[20:21]%s" % (JUNK, TFL))
    def tagtab():
        e("s_mov_b64 exec, -1")
        e("s_cmp_lg_u32 s17, 7")
        e("s_cbranch_scc1 L1_c")
        e("s_mov_b32 s6, %d" % (1 << 20))
        e("s_waitcnt vmcnt(%d)" % int(PFA))
        lab("L1_npoll")
        e("v_readfirstlane_b32 s5, v75")
        e("s_cmp_lg_u32 s5, 0")
        e("s_cbranch_scc1 L1_non2")
        e("global_load_dwordx2 v[74:75], v73, s[36:37] sc1")
        e("s_sub_u32 s6, s6, 1")
        e("s_waitcnt vmcnt(0)")
        e("s_cbranch_scc0 L1_npoll")
        lab("L1_non2")
        e("v_readfirstlane_b32 s4, v74")
        e("s_and_b32 s5, s5, 0x3ff")
        e("v_mov_b32 v74, s4")
        e("v_mov_b32 v75, s5")
        e("ds_write_b64 v73, v[74:75] offset:%d" % L_NON)
        e("s_cmp_ge_u32 s2, %d" % G)
        e("s_cbranch_scc1 L1_c")
        for k in range(4):
            e("v_lshl_or_b32 v%d, v%d, 11, v%d" % (60 + k, 52 + k, 60 + k))
            e("v_lshl_or_b32 v%d, v75, 22, v%d" % (76 + 2 * k, 60 + k))
            e("v_mov_b32 v%d, v74" % (77 + 2 * k))
        e("s_lshl_b32 s4, s2, 11")
        e("s_add_u32 s4, s4, %d" % WS_TAB)
        e("v_lshl_add_u32 v5, v4, 1, s4")
        e("global_store_dwordx4 v5, v[76:79], s[38:39] sc1")
        e("global_store_dwordx4 v5, v[80:83], s[38:39] offset:16 sc1")
        lab("L1_c")
        e("s_mov_b64 exec, s[46:47]")
    for k in range(4):
        keyw(k); coefs(k)
        if k == 0: e("s_waitcnt lgkmcnt(0)")
        e("v_add_lshl_u32 v%d, v%d, v%d, 4" % (24 + k, 24 + k, 28 + k))
        e("ds_write_b96 v%d, v[%d:%d] offset:%d" % (24 + k, 32 + 4 * k, 34 + 4 * k, P_STG))
        if k == opt("tk", 1): tagtab()
    e("s_mov_b64 exec, -1")
    e("v_lshlrev_b32 v6, 4, v0")
    e("s_mul_i32 s4, s2, %d" % (CH * 16))
    e("s_add_u32 s40, s38, s4")
    e("s_addc_u32 s41, s39, 0")
    e("s_mov_b64 s[8:9], s[20:21]")
    e("s_mov_b64 s[14:15], s[38:39]")
    e("s_mov_b64 s[62:63], s[20:21]")
    e("s_waitcnt lgkmcnt(0)")
    pstamp()
    e("s_barrier")
    pstamp()
    e("ds_read_b64 v[74:75], v73 offset:%d" % L_NON)
    e("s_cmp_ge_u32 s17, 4")
    e("s_cbranch_scc1 L1_d")
    e("s_cmp_ge_u32 s2, %d" % G)
    e("s_cbranch_scc1 L1_d")
    for k in range(5):
        e("ds_read_b96 v[%d:%d], v6 offset:%d" % (12 + 4 * k, 14 + 4 * k, P_STG + 4096 * k))
    e("v_add_u32 v7, 8192, v6")
    e("v_add_u32 v8, 16384, v6")
    for k in range(5):
        e("s_waitcnt lgkmcnt(%d)" % (4 - k))
        e("v_mov_b32 v%d, v74" % (15 + 4 * k))
        e("v_lshl_or_b32 v%d, v75, 25, v%d" % (14 + 4 * k, 14 + 4 * k))
        a_, o_ = [(6, 0), (7, -4096), (7, 0), (8, -4096), (8, 0)][k]
        e("global_store_dwordx4 v%d, v[%d:%d], s[40:41] offset:%d sc1" % (a_, 12 + 4 * k, 15 + 4 * k, o_))
    lab("L1_d")
    stamp()
    e("s_waitcnt lgkmcnt(0)")
    e("v_readfirstlane_b32 s56, v74")
    e("v_readfirstlane_b32 s58, v75")
    e("v_add_u32 v%d, %d, v72" % (JUNK - 1, N * 512))
    e("s_lshl_b32 s57, s58, 25")
    par = t + 4
    e("v_lshrrev_b32 v%d, 1, v%d" % (t + 1, TID))
    e("v_lshlrev_b32 v%d, 2, v%d" % (t + 5, t + 1))
    e("v_and_b32 v%d, 1, v%d" % (par, TID))
    e("v_mul_u32_u24 v%d, %d, v%d" % (t + 1, CH, t + 1))
    e("s_or_b32 s9, s9, 0x00100000")
    e("s_mov_b32 s10, %d" % (N * 1024))
    e("s_mov_b32 s11, 0x00800000")
    e("s_add_u32 s40, s14, 4096")
    e("s_addc_u32 s41, s15, 0")
    e("v_mov_b32 v%d, 0" % RB)
    def zero_acc():
        for r in range(144, -16, -16):
            e("v_mfma_f32_32x32x16_bf16 v[%d:%d], v[224:227], v[224:227], 0" % (r, r + 15))
    ZL = 0
    e("s_cmp_ge_u32 s17, 4")
    e("s_cbranch_scc1 L1_p")
    e("s_nop 4")
    zero_acc()
    if opt("pace", 1): e("s_waitcnt vmcnt(0)")
    pstamp()
    if FINE == 2: nstamp[0] -= 1
    e("s_branch L1_e")
    lab("L1_p")
    e("v_add_u32 v%d, -256, v%d" % (t, TID))
    e("v_min_u32 v%d, %d, v%d" % (t + 2, G - 1, t))
    e("s_lshl_b32 s4, s16, 3")
    e("s_add_u32 s4, s4, %d" % WS_TAB)
    e("v_lshl_add_u32 v%d, v%d, 11, s4" % (t + 2, t + 2))
    e("s_mov_b32 s6, %d" % (1 << 20))
    if opt("pz", 0):
        zero_acc()
        if opt("psl0", 0): e("s_sleep %d" % opt("psl0", 0))
    else:
        e("global_load_dwordx2 v[%d:%d], v%d, s[14:15] sc1" % (t + 6, t + 7, t + 2))
        zero_acc()
        e("s_branch L2_poll1")
    lab("L2_poll")
    e("global_load_dwordx2 v[%d:%d], v%d, s[14:15] sc1" % (t + 6, t + 7, t + 2))
    lab("L2_poll1")
    e("s_waitcnt vmcnt(0)")
    e("v_lshrrev_b32 v%d, 22, v%d" % (t + 3, t + 6))
    e("v_cmp_ne_u32 vcc, s56, v%d" % (t + 7))
    e("v_cmp_ne_u32 s[4:5], s58, v%d" % (t + 3))
    e("s_or_b64 exec, vcc, s[4:5]")
    e("s_cbranch_scc0 L2_got")
    if opt("psl", 0): e("s_sleep %d" % opt("psl", 0))
    e("s_sub_u32 s6, s6, 1")
    e("s_cbranch_scc0 L2_poll")
    e("v_mov_b32 v%d, 0" % (t + 6))
    lab("L2_got")
    pstamp()
    if DIAG: e("s_mov_b32 s98, s6")
    e("s_mov_b64 exec, -1")
    e("v_cmp_gt_u32 vcc, %d, v%d" % (G, t))
    e("v_lshlrev_b32 v%d, 2, v%d" % (t, t))
    e("s_nop 0")
    e("v_cndmask_b32 v%d, 0, v%d, vcc" % (t + 6, t + 6))
    e("ds_write_b32 v%d, v%d offset:%d" % (t, t + 6, L_TB))
    e("v_bfe_u32 v%d, v%d, 11, 11" % (t + 3, t + 6))
    e("v_and_b32 v%d, 0x7ff, v%d" % (t + 7, t + 6))
    e("v_mov_b32 v%d, v%d" % (t + 8, t + 3))
    e("v_mul_u32_u24 v%d, %d, v%d" % (t, CH // 4, t))
    wave_scan("v%d" % (t + 8))
    e("v_cmp_lt_u32 vcc, %d, v%d" % (CL, t + 3))
    e("v_add_u32 v%d, v%d, v%d" % (t + 7, t + 7, t))
    e("v_readlane_b32 s4, v%d, 63" % (t + 8))
    e("v_sub_u32 v%d, v%d, v%d" % (t + 8, t + 8, t + 3))
    e("v_sub_u32 v%d, v%d, v%d" % (t + 7, t + 7, t + 8))
    e("s_lshl_b32 s5, s17, 11")
    e("s_add_u32 s5, s5, %d" % (L_IDX - 4 * 2048))
    e("v_lshl_add_u32 v%d, v%d, 2, s5" % (t + 8, t + 8))
    e("s_cmp_lg_u64 vcc, 0")
    e("s_cselect_b32 s4, -1, s4")
    e("s_lshl_b32 s5, s17, 2")
    e("v_mov_b32 v%d, s4" % (t + 9))
    e("v_mov_b32 v%d, s5" % t)
    e("ds_write_b32 v%d, v%d offset:%d" % (t, t + 9, L_TOT - 16))
    e("s_cmp_gt_u32 s4, 512")
    e("s_cbranch_scc1 L2_xd")
    for i in range(CL):
        e("v_cmpx_lt_u32 vcc, %d, v%d" % (i, t + 3))
        if i >= 6: e("s_cbranch_execz L2_xd")
        e("ds_write_b32 v%d, v%d offset:%d" % (t + 8, t + 7, 4 * i))
    lab("L2_xd")
    e("s_mov_b64 exec, -1")
    e("s_waitcnt lgkmcnt(0)")
    lab("L1_e")
    DA = 253
    e("v_and_b32 v%d, 127, v%d" % (t + 2, TID))
    e("s_lshr_b32 s4, s17, 1")
    e("s_lshl_b32 s5, s4, 11")
    e("s_add_u32 s5, s5, %d" % L_IDX)
    e("v_lshl_add_u32 v%d, v%d, 2, s5" % (DA, t + 2))
    e("v_mov_b32 v%d, 0" % t)
    e("s_barrier")
    e("ds_read_b128 v[%d:%d], v%d offset:%d" % (t + 6, t + 9, t, L_TOT))
    for k in range(4):
        e("ds_read_b32 v%d, v%d offset:%d" % (kad(k), DA, 512 * k))
    e("s_setprio 3")
    e("s_mov_b32 s44, 0")
    e("s_waitcnt lgkmcnt(4)")
    stamp()
    e("v_max_u32 v%d, v%d, v%d" % (t + 3, t + 6, t + 7))
    e("v_max3_u32 v%d, v%d, v%d, v%d" % (t + 3, t + 3, t + 8, t + 9))
    e("s_cmp_eq_u32 s4, 1")
    e("s_cselect_b64 vcc, -1, 0")
    e("v_cndmask_b32 v%d, v%d, v%d, vcc" % (t + 6, t + 6, t + 7))
    e("s_cmp_eq_u32 s4, 3")
    e("s_cselect_b64 vcc, -1, 0")
    e("v_cndmask_b32 v%d, v%d, v%d, vcc" % (t + 8, t + 8, t + 9))
    e("v_readfirstlane_b32 s5, v%d" % (t + 3))
    e("s_cmp_ge_u32 s4, 2")
    e("s_cselect_b64 vcc, -1, 0")
    e("v_cndmask_b32 v%d, v%d, v%d, vcc" % (t + 6, t + 6, t + 8))
    e("s_cmp_gt_u32 s5, 512")
    e("s_cbranch_scc1 L2_sparse")
    e("s_mov_b32 s60, 1")
    e("v_sub_u32 v%d, v%d, v%d" % (t + 6, t + 6, t + 2))
    e("v_mov_b32 v%d, 0" % REM)
    RFL = FL[opt("rfl", "sc1")]
    for k in range(4):
        e("s_waitcnt lgkmcnt(%d)" % (3 - k))
        e("v_add_lshl_u32 v%d, v%d, v%d, 4" % (kad(k), kad(k), t + 2))
        e("v_cmpx_lt_i32 %s, %d, v%d" % (msk(k), 128 * k, t + 6) if k == 0 else "s_movk_i32 s5, %d" % (128 * k))
        if k: e("v_cmpx_lt_i32 %s, s5, v%d" % (msk(k), t + 6))
        if k >= 1:
            e("s_mov_b32 s42, %d" % k)
            e("s_cbranch_execz L2_ld")
        else:
            e("s_cbranch_execz L2_dk0")
        e("global_load_dwordx4 v[%d:%d], v%d, s[14:15] offset:%d%s" % (rec(k), rec(k) + 3, kad(k), (2048 * k if k < 2 else 2048 * k - 8192), RFL) if False else
          "global_load_dwordx4 v[%d:%d], v%d, %s offset:%d%s" % (rec(k), rec(k) + 3, kad(k), "s[14:15]" if k < 2 else "s[40:41]", 2048 * (k & 1), RFL))
        if k == 0: lab("L2_dk0")
    e("s_mov_b32 s42, 4")
    e("s_branch L2_ld")
    lab("L2_sparse")
    e("s_mov_b32 s60, 0")
    e("ds_read_b32 v%d, v%d offset:%d" % (t + 6, t + 5, L_TB))
    e("s_waitcnt lgkmcnt(0)")
    e("v_and_b32 v%d, 0x7ff, v%d" % (t + 2, t + 6))
    e("v_bfe_u32 v%d, v%d, 11, 11" % (REM, t + 6))
    e("v_add3_u32 v%d, v%d, v%d, v%d" % (t + 1, t + 1, t + 2, par))
    e("v_sub_u32 v%d, v%d, v%d" % (REM, REM, par))
    e("v_lshlrev_b32 v%d, 4, v%d" % (RB, t + 1))
    NS = 2
    lab("L2_batch")
    for i in range(U):
        e("v_cmpx_lt_i32 %s, %d, v%d" % (msk(i), 2 * i, REM))
        if i >= NS:
            e("s_mov_b32 s42, %d" % i)
            e("s_cbranch_execz L2_ld")
        e("global_load_dwordx4 v[%d:%d], v%d, s[14:15] offset:%d%s" % (rec(i), rec(i) + 3, RB, 32 * i, RFL))
    e("s_mov_b32 s42, %d" % U)
    lab("L2_ld")
    e("s_mov_b64 exec, -1")
    fstamp()
    e("s_cmp_ge_u32 s59, 160")
    e("s_cbranch_scc1 L2_nwp")
    for i in range(8):
        e("v_lshlrev_b32 v%d, 16, v%d" % (232 + i, 232 + i))
        unpack("v247", i, 240)
        e("v_mul_f32 v%d, v247, v%d" % (232 + i, 232 + i))
    for i in range(4):
        e("v_cvt_pk_bf16_f32 v%d, v%d, v%d" % (240 + i, 232 + 2 * i, 233 + 2 * i))
    lab("L2_nwp")
    e("s_lshl_b32 s4, s59, 10")
    e("s_add_u32 s4, s4, %d" % WS_WF)
    e("v_and_b32 v247, 63, v%d" % TID)
    e("v_lshl_add_u32 v247, v247, 4, s4")
    if ZL:
        e("s_cmp_gt_u32 s59, 160")
        e("s_cbranch_scc1 L2_noz")
        e("s_nop 2")
        zero_acc()
        lab("L2_noz")
    def stage(name, body):
        for i in range(U):
            if i >= NS:
                e("s_cmp_le_u32 s42, %d" % i)
                e("s_cbranch_scc1 L2_%s" % name)
            e("s_mov_b64 exec, %s" % msk(i))
            body(i)
        lab("L2_%s" % name)
    tab = {(0, 0): 0, (1, 1): 1, (1, 2): 2, (1, 3): 3,
           (4, 0): 1, (5, 1): 0, (6, 3): 2, (7, 2): 3,
           (8, 0): 2, (9, 2): 0, (10, 1): 3, (11, 3): 1,
           (12, 0): 3, (13, 3): 0, (14, 2): 1, (15, 1): 2}
    e("v_mov_b32 v%d, 64" % PSEL)
    for p_ in range(4):
        m_ = 0
        for (m, q), v in tab.items():
            if v == p_: m_ |= 1 << (16 * q + m)
        e("s_mov_b32 exec_lo, 0x%x" % (m_ & 0xffffffff))
        e("s_mov_b32 exec_hi, 0x%x" % (m_ >> 32))
        e("v_mov_b32 v%d, %d" % (PSEL, 16 * p_))
    e("s_mov_b64 exec, -1")
    va = 255; vo = 244; vb = 245; vf = 246; D0 = AF[0]
    e("v_and_b32 v%d, 63, v%d" % (vo, TID))
    e("s_mul_i32 s4, s17, %d" % (5 * 2048))
    e("s_add_u32 s4, s4, %d" % L_SLOT)
    e("v_lshl_add_u32 v%d, v%d, 4, s4" % (va, vo))
    e("v_lshlrev_b32 v%d, 2, v%d" % (vo, vo))
    e("v_and_b32 v%d, 28, v%d" % (vb, vo))
    e("s_mul_i32 s48, s17, %d" % (5 * OFFS_STRIDE))
    e("s_mul_i32 s49, s17, %d" % (5 * COEF_STRIDE))
    e("v_add_u32 v%d, s48, v%d" % (vo, vo))
    e("s_lshl_b32 s5, s17, 2")
    e("v_mov_b32 v%d, s5" % vf)
    e("v_cmp_lt_i32 vcc, %d, v%d" % (2 * U, REM))
    e("s_cmp_lg_u64 vcc, 0")
    e("s_cselect_b32 s43, 2, 0")
    one = t + 1
    e("v_mov_b32 v%d, 1" % one)
    e("v_and_b32 v%d, 63, v%d" % (t, TID))
    e("v_lshlrev_b32 v%d, 5, v%d" % (t, t))
    e("v_mov_b32 v%d, 0" % PEND)
    e("s_mov_b32 s6, %d" % (1 << 20))
    bad = t + 2
    if FINE == 1:
        e("s_waitcnt vmcnt(0)")
        fstamp()
    lab("L2_chk")
    e("s_waitcnt vmcnt(0)")
    e("v_mov_b32 v%d, 0" % bad)
    def b_ck(i):
        e("v_xor_b32 v%d, s57, v%d" % (rec(i) + 2, rec(i) + 2))
        e("v_xor_b32 v%d, s56, v%d" % (rec(i) + 3, rec(i) + 3))
        e("v_lshrrev_b32 v%d, 25, v%d" % (t + 3, rec(i) + 2))
        e("v_or3_b32 v%d, v%d, v%d, v%d" % (bad, bad, t + 3, rec(i) + 3))
    stage("ck", b_ck)
    e("s_mov_b64 exec, -1")
    e("v_cmp_ne_u32 vcc, 0, v%d" % bad)
    e("s_cmp_eq_u64 vcc, 0")
    e("s_cbranch_scc1 L2_ok")
    e("s_sub_u32 s6, s6, 1")
    e("s_cbranch_scc1 L2_end")
    if opt("rsl", 0): e("s_sleep %d" % opt("rsl", 0))
    e("s_cmp_eq_u32 s60, 1")
    e("s_cbranch_scc1 L2_rld")
    stage("rl", lambda i: e("global_load_dwordx4 v[%d:%d], v%d, s[14:15] offset:%d sc1" % (rec(i), rec(i) + 3, RB, 32 * i)))
    e("s_mov_b64 exec, -1")
    e("s_branch L2_chk")
    lab("L2_rld")
    for k in range(4):
        e("s_cmp_le_u32 s42, %d" % k)
        e("s_cbranch_scc1 L2_rk3")
        e("s_mov_b64 exec, %s" % msk(k))
        e("s_cbranch_execz L2_rk%d" % k)
        e("global_load_dwordx4 v[%d:%d], v%d, %s offset:%d sc1" % (rec(k), rec(k) + 3, kad(k), "s[14:15]" if k < 2 else "s[40:41]", 2048 * (k & 1)))
        lab("L2_rk%d" % k)
    e("s_mov_b64 exec, -1")
    e("s_branch L2_chk")
    lab("L2_ok")
    if DIAG: e("s_mov_b32 s97, s6")
    fstamp()
    def b_at(i):
        e("v_and_b32 v%d, 0x7fc, v%d" % (kad(i), rec(i) + 2))
        e("ds_add_rtn_u32 v%d, v%d, v%d offset:%d" % (rec(i) + 3, kad(i), one, L_CNT))
    stage("at", b_at)
    e("s_mov_b64 exec, s[46:47]")
    e("s_cmp_gt_u32 s59, 160")
    e("s_cbranch_scc1 L2_nf")
    if opt("k1pf", 1): e("global_load_dword v%d, v%d, s[62:63]%s" % (JUNK, JUNK - 1, TFL))
    e("s_cmp_eq_u32 s59, 160")
    e("s_cbranch_scc1 L2_nf")
    e("s_mov_b64 exec, -1")
    e("global_store_dwordx4 v247, v[240:243], s[14:15] sc1")
    e("s_mov_b64 exec, s[46:47]")
    lab("L2_nf")
    e("s_waitcnt lgkmcnt(0)")
    e("s_barrier")
    stamp()
    cc = 212
    e("ds_read_b128 v[%d:%d], v%d offset:%d" % (cc, cc + 3, t, L_CNT))
    e("ds_read_b128 v[%d:%d], v%d offset:%d" % (cc + 4, cc + 7, t, L_CNT + 16))
    lim = 220; tmp = 221; en = 222; nb_ = 223
    f = 224; fo = 232
    e("s_waitcnt lgkmcnt(0)")
    e("v_add3_u32 v%d, v%d, v%d, v%d" % (lim, cc, cc + 1, cc + 2))
    k = 3
    while k < NPH:
        if k + 1 < NPH:
            e("v_add3_u32 v%d, v%d, v%d, v%d" % (lim, lim, cc + k, cc + k + 1)); k += 2
        else:
            e("v_add_u32 v%d, v%d, v%d" % (lim, lim, cc + k)); k += 1
    e("v_sub_u32 v%d, 64, v%d" % (lim, lim))
    e("v_max_i32 v%d, 0, v%d" % (lim, lim))
    e("v_and_b32 v%d, -8, v%d" % (tmp, lim))
    e("v_min_u32 v%d, %d, v%d" % (f, 8 * R0, tmp))
    for k in range(1, NPH):
        e("v_add_u32 v%d, v%d, v%d" % (lim, lim, cc + k - 1))
        e("v_add_u32 v%d, v%d, v%d" % (en, f + k - 1, cc + k - 1))
        e("v_and_b32 v%d, -8, v%d" % (tmp, lim))
        e("v_min_u32 v%d, %d, v%d" % (tmp, 8 * (R0 + k), tmp))
        e("v_max_u32 v%d, v%d, v%d" % (f + k, tmp, en))
    e("ds_write_b128 v%d, v[%d:%d] offset:%d" % (t, f, f + 3, L_ST))
    e("ds_write_b128 v%d, v[%d:%d] offset:%d" % (t, f + 4, f + 7, L_ST + 16))
    st = lambda i: 232 + i
    def b_st(i):
        e("ds_read_b32 v%d, v%d offset:%d" % (st(i), kad(i), L_ST))
        e("v_and_b32 v%d, 0x7e0, v%d" % (kad(i), kad(i)))
        e("v_lshlrev_b32 v%d, 6, v%d" % (kad(i), kad(i)))
    stage("st", b_st)
    e("s_waitcnt lgkmcnt(0)")
    fstamp()
    def b_pl(i):
        e("v_add_u32 v%d, v%d, v%d" % (st(i), st(i), rec(i) + 3))
        e("v_min_u32 v%d, 64, v%d" % (st(i), st(i)))
        e("v_lshl_add_u32 v%d, v%d, 4, v%d" % (kad(i), st(i), kad(i)))
        e("v_lshrrev_b32 v%d, 6, v%d" % (st(i), st(i)))
        e("ds_write_b96 v%d, v[%d:%d] offset:%d" % (kad(i), rec(i), rec(i) + 2, L_SLOT))
        e("v_lshl_or_b32 v%d, v%d, %d, v%d" % (PEND, st(i), i, PEND))
    stage("pl", b_pl)
    e("s_mov_b64 exec, -1")
    e("v_cmp_ne_u32 vcc, 0, v%d" % PEND)
    e("s_cmp_lg_u64 vcc, 0")
    e("s_addc_u32 s4, s43, 0")
    e("v_mov_b32 v%d, s4" % (t + 2))
    e("ds_write_b32 v%d, v%d offset:%d" % (vf, t + 2, L_WT))
    e("s_waitcnt lgkmcnt(0)")
    e("s_barrier")
    stamp()
    for u in range(5):
        e("ds_read_b32 v%d, v%d offset:%d" % (D0 + u, va, 2048 * u + 8))
    e("ds_read_b32 v238, v%d offset:%d" % (vb, L_WT))
    vb = 238
    for r in range(LB[0], LB[0] + 32, 2): e("v_mov_b64 v[%d:%d], 0" % (r, r + 1))
    for u in range(5):
        e("s_waitcnt lgkmcnt(5)")
        e("v_lshrrev_b32 v%d, 11, v%d" % (D0 + u, D0 + u))
        e("v_lshlrev_b32 v%d, 10, v%d" % (D0 + u, D0 + u))
        e("v_cmp_gt_u32 s[%d:%d], s10, v%d" % (SM + 2 * u, SM + 2 * u + 1, D0 + u))
        if opt("small", 0): e("v_and_b32 v%d, 0xffc00, v%d" % (D0 + u, D0 + u))
        e("ds_write_b32 v%d, v%d offset:%d" % (vo, D0 + u, L_OFFS + OFFS_STRIDE * u))
    e("s_or_b64 s[4:5], s[%d:%d], s[%d:%d]" % (SM, SM + 1, SM + 2, SM + 3))
    for u in range(2, 5):
        e("s_or_b64 s[4:5], s[4:5], s[%d:%d]" % (SM + 2 * u, SM + 2 * u + 1))
    e("s_bitset1_b32 s5, 24")
    e("s_ff1_i32_b64 s6, s[4:5]")
    e("s_and_b32 s6, s6, 0x38")
    for u in range(5):
        e("s_lshr_b64 s[%d:%d], s[%d:%d], s6" % (SM + 2 * u, SM + 2 * u + 1, SM + 2 * u, SM + 2 * u + 1))
    e("s_lshl_b32 s7, s6, 2")
    e("s_add_u32 s7, s7, s48")
    e("v_mov_b32 v%d, s7" % VOA)
    e("s_mul_i32 s7, s6, 10")
    e("s_add_u32 s7, s7, s49")
    e("v_add_u32 v%d, s7, v%d" % (VCA, PSEL))
    e("s_lshr_b32 s6, s6, 3")
    e("s_sub_u32 s40, 8, s6")
    e("s_and_b32 s51, s6, 1")
    e("s_cmp_lt_u32 s17, 4")
    e("s_cselect_b32 s41, %d, %d" % (opt("po", 1), opt("py", 0)))
    e("s_add_u32 s41, s41, s6")
    def ooff(g): return L_OFFS + (g % 5) * OFFS_STRIDE + (g // 5) * 32
    def coff(g): return L_COEF + (g % 5) * COEF_STRIDE + (g // 5) * 80
    def rdoff(g, r=VO):
        e("ds_read_b128 v[%d:%d], v%d offset:%d" % (r, r + 3, VOA, ooff(g)))
        e("ds_read_b128 v[%d:%d], v%d offset:%d" % (r + 4, r + 7, VOA, ooff(g) + 16))
    NC = [38, 39]
    lid = [0]
    def count(u, buf):
        m = SM + 2 * u
        e("s_and_b32 s%d, s%d, 0xff" % (NC[buf], m))
        e("s_bcnt1_i32_b32 s%d, s%d" % (NC[buf], NC[buf]))
        e("s_lshr_b64 s[%d:%d], s[%d:%d], 8" % (m, m + 1, m, m + 1))
    def ladder(buf, wait=True, r=VO):
        n = lid[0]; lid[0] += 1
        for i in range(8):
            e("s_cmp_le_u32 s%d, %d" % (NC[buf], i))
            e("s_cbranch_scc1 L2_w%d_%d" % (n, i if wait else 8))
            e("buffer_load_dwordx4 v[%d:%d], v%d, s[8:11], 0 offen" %
              (LB[buf] + 4 * i, LB[buf] + 4 * i + 3, r + i))
        if wait:
            e("s_branch L2_w%d_8" % n)
            for i in range(8):
                lab("L2_w%d_%d" % (n, i))
                e("s_waitcnt vmcnt(%d)" % i)
        lab("L2_w%d_8" % n)
        if wait: e("s_waitcnt vmcnt(8)")
    rdoff(0)
    for r in range(LB[1], LB[1] + 32, 2): e("v_mov_b64 v[%d:%d], 0" % (r, r + 1))
    count(0, 0)
    count(1, 1)
    e("s_mov_b32 s43, s39")
    e("s_cmp_eq_u32 s51, 1")
    e("s_cselect_b32 s39, s38, s39")
    e("s_cselect_b32 s38, s43, s38")
    e("s_waitcnt lgkmcnt(0)")
    fstamp()
    def ladder2(k):
        e("s_cmp_eq_u32 s51, 1")
        e("s_cbranch_scc1 L2_o%d" % k)
        ladder(k, False)
        e("s_branch L2_oe%d" % k)
        lab("L2_o%d" % k)
        ladder(k ^ 1, False)
        lab("L2_oe%d" % k)
    ladder2(0)
    rdoff(1)
    e("v_and_b32 v239, 1, v%d" % vb)
    e("v_cmp_ne_u32 vcc, 0, v239")
    e("s_or_b32 s44, vcc_lo, vcc_hi")
    e("v_cmp_lt_u32 vcc, 1, v%d" % vb)
    e("s_or_b32 s45, vcc_lo, vcc_hi")
    e("s_or_b32 s50, s44, s45")
    e("s_cselect_b32 s50, -1, 1")
    CF = 224
    for u in range(5):
        e("ds_read_b64 v[%d:%d], v%d offset:%d" % (CF + 2 * u, CF + 2 * u + 1, va, 2048 * u))
    sa = 234; sb = 235; kp = 236; sd = 237; wa = 238; rc = 239
    e("v_mov_b32 v%d, s18" % sa)
    e("v_mov_b32 v%d, s19" % sb)
    e("v_bfe_u32 v%d, v%d, 3, 3" % (wa, TID))
    e("v_mul_u32_u24 v%d, 80, v%d" % (wa, wa))
    e("v_bfe_u32 v%d, v%d, 1, 2" % (kp, TID))
    e("v_lshl_add_u32 v%d, v%d, 2, v%d" % (wa, kp, wa))
    e("v_add_u32 v%d, s49, v%d" % (wa, wa))
    e("s_mov_b32 s6, 0xaaaaaaaa")
    e("s_mov_b32 s7, 0xaaaaaaaa")
    e("s_mov_b64 exec, s[6:7]")
    e("v_mov_b32 v%d, 0x01000504" % sa)
    e("v_mov_b32 v%d, 0x03020706" % sb)
    e("v_add_u32 v%d, 32, v%d" % (wa, wa))
    e("s_mov_b64 exec, -1")
    e("s_waitcnt lgkmcnt(5)")
    ladder2(1)
    e("s_waitcnt lgkmcnt(0)")
    for u in range(5):
        lo = CF + 2 * u; hi = lo + 1
        e("v_cndmask_b32 v%d, v%d, v%d, s[6:7]" % (sd, hi, lo))
        e("v_cndmask_b32 v%d, v%d, v%d, s[6:7]" % (kp, lo, hi))
        e("s_nop 0")
        e("v_mov_b32_dpp v%d, v%d quad_perm:[1,0,3,2] row_mask:0xf bank_mask:0xf" % (rc, sd))
        e("v_perm_b32 v%d, v%d, v%d, v%d" % (lo, rc, kp, sa))
        e("v_perm_b32 v%d, v%d, v%d, v%d" % (hi, rc, kp, sb))
        e("ds_write2_b32 v%d, v%d, v%d offset0:0 offset1:4" % (wa, lo, hi))
        if u < 4: e("v_add_u32 v%d, %d, v%d" % (wa, COEF_STRIDE, wa))
    e("v_and_b32 v%d, 63, v%d" % (rc, TID))
    e("v_mul_u32_u24 v%d, 80, v%d" % (rc, rc))
    e("v_add_u32 v%d, s49, v%d" % (rc, rc))
    e("s_waitcnt lgkmcnt(0)")
    for r in range(BT[0], BT[0] + 8, 2): e("v_mov_b64 v[%d:%d], 0" % (r, r + 1))
    e("s_mov_b64 exec, s[46:47]")
    e("ds_write_b128 v%d, v[%d:%d] offset:%d" % (rc, BT[0], BT[0] + 3, L_COEF + 64))
    e("s_mov_b64 exec, -1")
    e("ds_read_b128 v[%d:%d], v%d offset:%d" % (AF[0], AF[0] + 3, VCA, coff(0)))
    e("ds_read_b128 v[%d:%d], v%d offset:%d" % (AF[1], AF[1] + 3, VCA, coff(0)))
    e("s_mul_i32 s4, s51, 80")
    e("s_lshl_b32 s5, s51, 5")
    e("v_subrev_u32 v%d, s4, v%d" % (VCA, VCA))
    e("v_subrev_u32 v%d, s5, v%d" % (VOA, VOA))
    def wfl_load():
        e("v_and_b32 v254, 63, v%d" % TID)
        e("v_min_u32 v254, 39, v254")
        e("s_and_b32 s4, s17, 3")
        e("s_mul_i32 s4, s4, 320")
        e("s_add_u32 s4, s4, %d" % WS_WFL)
        e("v_lshl_add_u32 v254, v254, 3, s4")
        e("global_load_dwordx2 v[254:255], v254, s[14:15] sc1")
    if NB == 256:
        e("s_mul_i32 s5, s16, 625")
        e("s_add_u32 s6, s5, %d" % (625 + 15))
        e("s_add_u32 s5, s5, 15")
        e("s_lshr_b32 s5, s5, 4")
        e("s_lshr_b32 s6, s6, 4")
        e("s_sub_u32 s7, s6, s5")
    else:
        e("s_mul_i32 s5, s16, 40")
        e("s_mov_b32 s7, 40")
    e("s_cmp_eq_u32 s7, 40")
    e("s_cselect_b32 s54, -1, 0x7f7f7f7f")
    e("s_and_b32 s52, s54, 0x00ff00ff")
    e("s_mov_b32 s53, s52")
    e("s_mov_b32 s55, s54")
    e("s_lshl_b32 s5, s5, 10")
    e("s_and_b32 s6, s17, 3")
    e("s_lshl_b32 s6, s6, 6")
    e("s_add_u32 s5, s5, s6")
    e("s_add_u32 s20, s12, s5")
    e("s_addc_u32 s21, s13, 0")
    e("s_add_u32 s22, s20, 16384")
    e("s_addc_u32 s23, s21, 0")
    e("s_add_u32 s24, s20, 32768")
    e("s_addc_u32 s25, s21, 0")
    e("s_and_b32 s4, s17, 3")
    e("s_mul_i32 s4, s4, 40960")
    e("s_add_u32 s4, s4, %d" % (WS_WF + 4096))
    e("s_add_u32 s26, s14, s4")
    e("s_addc_u32 s27, s15, 0")
    e("s_barrier")
    for i in range(8):
        e("s_cmp_le_u32 s43, %d" % i)
        e("s_cbranch_scc1 L2_f%d" % i)
    e("s_branch L2_f8")
    for i in range(9):
        lab("L2_f%d" % i)
        e("s_waitcnt vmcnt(%d)" % i)
    e("s_waitcnt lgkmcnt(0)")
    fstamp()
    e("s_cmp_ge_u32 s59, 160")
    e("s_cbranch_scc1 L2_nfl")
    e("s_lshl_b32 s4, s59, 3")
    e("s_add_u32 s4, s4, %d" % WS_WFL)
    e("v_mov_b32 v%d, s4" % VO)
    e("v_mov_b32 v254, s56")
    e("v_mov_b32 v255, s58")
    e("s_mov_b64 exec, 1")
    e("global_store_dwordx2 v%d, v[254:255], s[14:15] sc1" % VO)
    e("s_mov_b64 exec, -1")
    lab("L2_nfl")
    e("s_mov_b32 s59, 161")
    e("v_mov_b32 v255, -1")
    e("s_cmp_eq_u32 s51, 1")
    e("s_cbranch_scc1 L2_g5")
    X = opt("x", "")
    VAR = opt("var", 1)
    out.append(".p2align 6")
    lab("L2_sweep")
    for g in range(10):
        u = g % 5; buf = g & 1; L = LB[buf]; A = AF[buf]
        u2 = (g + 2) % 5
        lab("L2_g%d" % g)
        rdoff(g + 2)
        e("ds_read_b128 v[%d:%d], v%d offset:%d" % (AF[buf ^ 1], AF[buf ^ 1] + 3, VCA, coff(g + 1)))
        def body(np_):
            def P(j):
                if "P" in X: return
                d = j >> 1; s = "s19" if j & 1 else "s18"
                for tt in range(np_):
                    e("v_perm_b32 v%d, v%d, v%d, %s" % (BT[j & 1] + tt, L + 4 * (2 * tt + 1) + d, L + 4 * (2 * tt) + d, s))
            def M(j):
                if "M" in X: return
                a = ACC + 32 * u + 4 * j
                if np_ == 2:
                    e("v_mfma_f32_16x16x16_bf16 v[%d:%d], v[%d:%d], v[%d:%d], v[%d:%d]" %
                      (a, a + 3, A, A + 1, BT[j & 1], BT[j & 1] + 1, a, a + 3))
                else:
                    e("v_mfma_f32_16x16x32_bf16 v[%d:%d], v[%d:%d], v[%d:%d], v[%d:%d]" %
                      (a, a + 3, A, A + 3, BT[j & 1], BT[j & 1] + 3, a, a + 3))
            P(0); P(1); M(0)
            for j in range(2, 8):
                P(j); M(j - 1)
            e("s_nop 0")
            M(7)
        if VAR:
            e("s_cmp_gt_u32 s%d, 6" % NC[buf])
            e("s_cbranch_scc1 L2_v4_%d" % g)
            e("s_cmp_gt_u32 s%d, 4" % NC[buf])
            e("s_cbranch_scc1 L2_v3_%d" % g)
            e("s_cmp_eq_u32 s%d, 0" % NC[buf])
            e("s_cbranch_scc1 L2_skip%d" % g)
            body(2)
            e("s_branch L2_skip%d" % g)
            lab("L2_v3_%d" % g)
            body(3)
            e("s_branch L2_skip%d" % g)
            lab("L2_v4_%d" % g)
            body(4)
        else:
            e("s_cmp_eq_u32 s%d, 0" % NC[buf])
            e("s_cbranch_scc1 L2_skip%d" % g)
            body(4)
        lab("L2_skip%d" % g)
        if g >= 5:
            e("s_cmp_eq_u32 s40, s50")
            e("s_cbranch_scc1 L2_x%d" % u)
        count(u2, buf)
        if g == 4:
            e("s_sub_u32 s40, s40, 1")
            e("s_cmp_lg_u32 s40, 1")
            e("s_cbranch_scc1 L2_nz")
            wfl_load()
            lab("L2_nz")
        if g == 9:
            e("v_add_u32 v%d, 160, v%d" % (VCA, VCA))
            e("v_add_u32 v%d, 64, v%d" % (VOA, VOA))
            e("s_sub_u32 s40, s40, 1")
        e("s_waitcnt lgkmcnt(0)")
        ladder(buf)
        if g in (4, 9):
            e("s_add_u32 s41, s41, 1")
            e("s_cmp_ge_u32 s41, %d" % opt("t2", 4)); e("s_cbranch_scc0 L2_pr%d" % g); e("s_setprio 2")
            e("s_cmp_ge_u32 s41, %d" % opt("t1", 6)); e("s_cbranch_scc0 L2_pr%d" % g); e("s_setprio 1")
            e("s_cmp_ge_u32 s41, %d" % opt("t0", 8)); e("s_cbranch_scc0 L2_pr%d" % g); e("s_setprio 0")
            lab("L2_pr%d" % g)
            if g == 9:
                e("s_cmp_lg_u32 s40, 0")
                e("s_cbranch_scc1 L2_sweep")
    e("s_barrier")
    lds_init()
    e("s_waitcnt lgkmcnt(0)")
    e("s_barrier")
    e("s_cmp_lg_u32 s44, 0")
    e("s_cbranch_scc1 L2_pass")
    e("v_add_u32 v%d, %d, v%d" % (RB, 32 * U, RB))
    e("v_add_u32 v%d, %d, v%d" % (REM, -2 * U, REM))
    e("s_branch L2_batch")
    lab("L2_pass")
    e("s_cmp_eq_u32 s60, 0")
    e("s_cbranch_scc1 L2_pass1")
    e("v_and_b32 v%d, 127, v%d" % (t + 2, TID))
    e("s_lshr_b32 s4, s17, 1")
    e("s_lshl_b32 s5, s4, 11")
    e("s_add_u32 s5, s5, %d" % L_IDX)
    e("v_lshl_add_u32 v%d, v%d, 2, s5" % (DA, t + 2))
    e("s_add_u32 s40, s14, 4096")
    e("s_addc_u32 s41, s15, 0")
    for k in range(4):
        e("ds_read_b32 v%d, v%d offset:%d" % (kad(k), DA, 512 * k))
    e("s_waitcnt lgkmcnt(0)")
    for k in range(4):
        e("v_add_lshl_u32 v%d, v%d, v%d, 4" % (kad(k), kad(k), t + 2))
        e("v_and_b32 v%d, %d, v%d" % (t, 1 << k, PEND))
        e("v_cmp_ne_u32 %s, 0, v%d" % (msk(k), t))
        e("s_mov_b64 exec, %s" % msk(k))
        e("s_cbranch_execz L2_pk%d" % k)
        e("global_load_dwordx4 v[%d:%d], v%d, %s offset:%d sc1" % (rec(k), rec(k) + 3, kad(k), "s[14:15]" if k < 2 else "s[40:41]", 2048 * (k & 1)))
        lab("L2_pk%d" % k)
        e("s_mov_b64 exec, -1")
    e("s_mov_b32 s42, 4")
    e("s_branch L2_ld")
    lab("L2_pass1")
    for i in range(U):
        e("v_and_b32 v%d, %d, v%d" % (t, 1 << i, PEND))
        e("v_cmp_ne_u32 %s, 0, v%d" % (msk(i), t))
        e("s_mov_b64 exec, %s" % msk(i))
        e("global_load_dwordx4 v[%d:%d], v%d, s[14:15] offset:%d sc1" % (rec(i), rec(i) + 3, RB, 32 * i))
        e("s_mov_b64 exec, -1")
    e("s_mov_b32 s42, %d" % U)
    e("s_branch L2_ld")
    LC = 252; LA = 249; TS = 250; LBB = 251; SG = 254; SG2 = 255; ADR = VO; TMP = VO + 1
    TA0 = BT[0]; TA1 = BT[1]
    def wreg(f_): return 4 * f_ if f_ < 20 else 160 + 4 * (f_ - 20)
    def wload(lo, hi):
        for f_ in range(lo, hi):
            if f_ and f_ % 8 == 0:
                e("s_add_u32 s26, s26, 8192")
                e("s_addc_u32 s27, s27, 0")
            e("global_load_dwordx4 v[%d:%d], v%d, s[26:27] offset:%d sc1" % (wreg(f_), wreg(f_) + 3, LC, (f_ % 8) * 1024 - 4096))
    def waitn(tag, nreg, extra):
        for i in range(8):
            e("s_cmp_le_u32 s%d, %d" % (nreg, i))
            e("s_cbranch_scc1 L2_%s_%d" % (tag, i))
        e("s_branch L2_%s_8" % tag)
        for i in range(9):
            lab("L2_%s_%d" % (tag, i))
            e("s_waitcnt vmcnt(%d)" % (i + extra))
    RA = [80, 81, 82, 83]; OA = 84; OAX = 85
    e1, e2, e3 = [int(x) for x in opt("ws", "0,8,16").split(",")]
    wsch = {1: (0, e1), 2: (e1, e2), 3: (e2, e3)}
    wn = {0: 0, 1: e1, 2: e2 - e1, 3: e3 - e2}
    for u in range(5):
        g = 5 + u; buf = g & 1; A = ACC + 32 * u
        lab("L2_x%d" % u)
        if u == 4: stamp()
        if u <= 2:
            count((g + 2) % 5, buf)
            e("s_waitcnt lgkmcnt(0)")
            ladder(buf, False)
        else:
            e("s_waitcnt lgkmcnt(0)")
        if u == 0:
            e("s_mov_b32 s6, %d" % (1 << 20))
            lab("L2_wchk")
            e("v_cmp_ne_u32 vcc, s56, v254")
            e("v_cmp_ne_u32 s[4:5], s58, v255")
            e("s_or_b64 vcc, vcc, s[4:5]")
            e("s_cbranch_scc0 L2_wok")
            e("s_waitcnt vmcnt(0)")
            wfl_load()
            e("s_sub_u32 s6, s6, 1")
            e("s_waitcnt vmcnt(0)")
            e("s_cbranch_scc0 L2_wchk")
            lab("L2_wok")
            e("v_and_b32 v%d, 63, v%d" % (LC, TID))
            e("v_and_b32 v%d, 3, v%d" % (SG, LC))
            e("v_bfe_u32 v%d, v%d, 2, 2" % (ADR, LC))
            e("v_lshlrev_b32 v%d, 4, v%d" % (LC, LC))
            e("v_lshlrev_b32 v%d, 8, v%d" % (LA, SG))
            e("v_lshl_add_u32 v%d, v%d, 10, v%d" % (LA, ADR, LA))
            e("v_and_b32 v%d, 1, v%d" % (ADR, ADR))
            e("v_mul_u32_u24 v%d, 12, v%d" % (ADR, ADR))
            e("v_or_b32 v%d, v%d, v%d" % (SG, SG, ADR))
            e("v_lshlrev_b32 v%d, 4, v%d" % (SG, SG))
            e("v_mov_b32 v%d, v%d" % (SG2, SG))
            e("v_add_u32 v%d, %d, v%d" % (LBB, L_F0 + 16384, LA))
            e("v_mov_b32 v%d, 8192" % TS)
            e("v_mov_b32 v%d, v%d" % (TMP, LA))
            e("v_add_u32 v%d, %d, v%d" % (LA, L_F0, LA))
            for gp in range(1, 4):
                lo = 0xffff0000 if gp == 1 else 0
                hi = {1: 0, 2: 0x0000ffff, 3: 0xffff0000}[gp]
                e("s_mov_b32 exec_lo, 0x%x" % lo)
                e("s_mov_b32 exec_hi, 0x%x" % hi)
                e("v_add_u32 v%d, %d, v%d" % (LA, L_F1 + (gp - 1) * 24576, TMP))
                e("v_add_u32 v%d, %d, v%d" % (LBB, L_F1 + (7 if gp == 3 else 6) * 12288, TMP))
                e("v_mov_b32 v%d, 12288" % TS)
                if gp == 2: e("v_xor_b32 v%d, 128, v%d" % (SG2, SG2))
            e("s_mov_b64 exec, -1")
            e("s_mul_i32 s51, s17, 5")
            e("s_mov_b32 s48, 0xffff0000")
            e("s_mov_b32 s49, -1")
        if u == 4 and not opt("wlate", 0):
            e("s_cmp_lt_u32 s17, 4")
            e("s_cbranch_scc1 L2_xw4")
            if opt("wp0", 0): e("s_setprio 0")
            wload(e3, 36)
            lab("L2_xw4")
        e("s_lshr_b32 s5, s51, 4")
        e("s_and_b32 s6, s51, 15")
        e("s_lshl_b32 s6, s6, 4")
        e("s_cmp_lt_u32 s51, 32")
        e("s_cselect_b64 s[42:43], -1, 0")
        e("v_mad_u32_u24 v%d, v%d, s5, v%d" % (ADR, TS, LA))
        e("v_cndmask_b32 v%d, v%d, v%d, s[42:43]" % (ADR, LBB, ADR))
        e("v_cndmask_b32 v%d, v%d, v%d, s[42:43]" % (TMP, SG2, SG))
        e("v_xor_b32 v%d, s6, v%d" % (TMP, TMP))
        e("v_add_u32 v%d, v%d, v%d" % (ADR, ADR, TMP))
        for dd in range(4):
            e("v_cvt_pk_bf16_f32 v%d, v%d, v%d" % (TA0 + dd, A + 8 * dd, A + 8 * dd + 4))
        e("ds_write_b128 v%d, v[%d:%d]" % (ADR, TA0, TA0 + 3))
        for dd in range(4):
            e("v_cvt_pk_bf16_f32 v%d, v%d, v%d" % (TA1 + dd, A + 8 * dd + 1, A + 8 * dd + 5))
        e("ds_write_b128 v%d, v[%d:%d] offset:4096" % (ADR, TA1, TA1 + 3))
        for j in range(8):
            e("v_sub_f32 v%d, v%d, v%d" % (A + 4 * j + 2, A + 4 * j + 2, A + 4 * j + 3))
        for dd in range(4):
            e("v_cvt_pk_bf16_f32 v%d, v%d, v%d" % (A + dd, A + 8 * dd + 2, A + 8 * dd + 6))
        e("s_mov_b64 exec, s[48:49]")
        e("ds_write_b128 v%d, v[%d:%d] offset:8192" % (ADR, A, A + 3))
        e("s_mov_b64 exec, -1")
        e("s_add_u32 s51, s51, 1")
        if u == 0:
            waitn("y0", NC[buf], 0)
            e("s_branch L2_g6")
        elif u <= 3:
            e("s_cmp_lt_u32 s17, 4")
            e("s_cbranch_scc1 L2_xo%d" % u)
            wload(*wsch[u])
            if u == 3:
                T2 = 86; T3 = 87
                e("v_lshrrev_b32 v%d, 8, v%d" % (T2, LC))
                e("v_bfe_u32 v%d, v%d, 4, 4" % (T3, LC))
                e("v_xor_b32 v%d, v%d, v%d" % (RA[0], T3, T2))
                e("v_lshlrev_b32 v%d, 4, v%d" % (RA[0], RA[0]))
                e("v_lshl_add_u32 v%d, v%d, 8, v%d" % (RA[0], T2, RA[0]))
                e("v_xor_b32 v%d, 0xc0, v%d" % (RA[1], RA[0]))
                e("v_add_u32 v%d, %d, v%d" % (RA[2], L_F + 65536, RA[0]))
                e("v_add_u32 v%d, %d, v%d" % (RA[3], L_F + 65536, RA[1]))
                e("v_add_u32 v%d, %d, v%d" % (RA[0], L_F, RA[0]))
                e("v_add_u32 v%d, %d, v%d" % (RA[1], L_F, RA[1]))
                e("v_lshlrev_b32 v%d, 10, v%d" % (OA, T3))
                e("v_lshl_add_u32 v%d, v%d, 4, v%d" % (OA, T2, OA))
                e("v_mov_b32 v%d, v%d" % (OAX, OA))
                e("s_mov_b32 exec_lo, 0xff00ff00")
                e("s_mov_b32 exec_hi, 0xff00ff00")
                e("v_add_u32 v%d, %d, v%d" % (OAX, -8192 + 256, OAX))
                e("s_mov_b64 exec, -1")
                e("s_waitcnt vmcnt(%d)" % (wn[2] + wn[3]))
            else:
                waitn("y%d" % u, NC[buf], wn[u - 1] + wn[u])
            e("s_branch L2_g%d" % (g + 1))
            lab("L2_xo%d" % u)
            if u == 3: e("s_waitcnt vmcnt(0)")
            else: waitn("z%d" % u, NC[buf], 0)
            e("s_branch L2_g%d" % (g + 1))
    e("s_waitcnt lgkmcnt(0)")
    e("s_cmp_lt_u32 s17, 4")
    e("s_cbranch_scc0 L2_gemm")
    stamp()
    e("s_barrier")
    if DIAG:
        e("s_branch L2_fin")
        if not FINE: nstamp[0] -= 1
    else:
        e("s_endpgm")
    lab("L2_gemm")
    if opt("wp0", 0): e("s_setprio 0")
    wload(e3 if opt("wlate", 0) else 36, 40)
    WLM = 1
    stamp()
    e("s_barrier")
    stamp()
    jobs = [("g", tau, tau * 8192, 0, 8, 0) for tau in range(3)]
    for tau in range(2):
        for i in range(3): jobs.append(("o", tau, 24576 + (2 * i + tau) * 12288, 8, 12, i + 1))
    jobs.append(("x", 2, 24576 + 6 * 12288, 8, 12, 1))
    jobs.append(("y", 2, 24576 + 7 * 12288, 8, 12, 3))
    GA = [96, 104, 112]
    AC = [120, 128]; RING = [136, 140, 144, 148, 152, 156, 240, 244]; NR = 8; AHEAD = opt("ahead", 6)
    PK = [88, 92]
    def acc_of(jn): return GA[jn] if jn < 3 else AC[jn & 1]
    seq = []; jstart = []
    for jn, (kind, tau, off, k0, nk, part) in enumerate(jobs):
        jstart.append(len(seq))
        for ks in range(nk): seq.append((jn, k0 + ks, off + ks * 1024, ks))
    jstart.append(len(seq))
    nl = [0]; rdq = {}
    def rd(n):
        jn, wk, off, ks = seq[n]
        hi = off >= 65536
        r = RING[n % NR]
        e("ds_read_b128 v[%d:%d], v%d offset:%d" % (r, r + 3, RA[(2 if hi else 0) + (ks & 1)], off - (65536 if hi else 0)))
        rdq[n] = nl[0]; nl[0] += 1
    def fin(jn):
        kind, tau, off, k0, nk, part = jobs[jn]
        a = acc_of(jn); g = GA[tau]; p = PK[jn & 1]; c = []
        sb = "s[%d:%d]" % (20 + 2 * tau, 21 + 2 * tau)
        if kind != "g":
            c += ["v_mul_f32 v%d, v%d, v%d" % (a + r, a + r, g + r) for r in range(8)]
        c += ["v_cvt_pk_bf16_f32 v%d, v%d, v%d" % (p + r, a + 2 * r, a + 2 * r + 1) for r in range(4)]
        stt = "global_store_dwordx4 v%d, v[%d:%d], %s offset:%d%s" % (OAX if kind == "x" else OA, p, p + 3, sb, 256 * part, SFL)
        if tau == 2:
            c.append(["s_mov_b64 exec, %s" % ("s[54:55]" if kind == "x" else "s[52:53]"), stt, "s_mov_b64 exec, -1"])
        else:
            c.append(stt)
        return c
    def gate(tau):
        g = GA[tau]; c = []
        c += ["v_mul_f32 v%d, 0xbfb8aa3b, v%d" % (g + r, g + r) for r in range(8)]
        c += ["v_exp_f32 v%d, v%d" % (g + r, g + r) for r in range(8)]
        c += ["v_add_f32 v%d, 1.0, v%d" % (g + r, g + r) for r in range(8)]
        c += ["v_rcp_f32 v%d, v%d" % (g + r, g + r) for r in range(8)]
        if tau == 2:
            c += ["v_mov_b32_dpp v%d, v%d row_shr:8 row_mask:0xf bank_mask:0xc" % (g + r, g + r) for r in range(8)]
        return c
    INF = 10 ** 6
    side = []
    for f_ in range(20, 20 if WLM else 40):
        it = []
        if f_ % 8 == 0: it += ["s_add_u32 s46, s46, 8192", "s_addc_u32 s47, s47, 0"]
        it.append("global_load_dwordx4 v[%d:%d], v%d, s[46:47] offset:%d sc1" % (wreg(f_), wreg(f_) + 3, LC, (f_ % 8) * 1024 - 4096))
        side.append((0, jstart[3] - 8, it))
    ready = lambda jn: jstart[jn + 1] + 2
    def add(items, lo, dl): side.extend((lo, dl, x) for x in items)
    add(fin(0), ready(0), INF); add(gate(0), ready(0), INF)
    add(fin(1), ready(1), INF); add(fin(2), ready(2), INF)
    g1 = gate(1); g2 = gate(2)
    for jn in range(3, len(jobs)):
        dl = jstart[jn + 2] if jn + 2 < len(jobs) else INF
        add(fin(jn), ready(jn), dl)
        if jn in (3, 4): add(g1[16 * (jn - 3):16 * (jn - 2)], 0, INF)
        if jn in (5, 6, 7): add(g2[14 * (jn - 5):14 * (jn - 4)], 0, INF)
    if opt("noside", 0): side = [x for x in side if x[0] >= ready(len(jobs) - 1)]
    vm = []
    def emit(x):
        cost = 0
        for y in (x if isinstance(x, list) else [x]):
            e(y); cost += 2 if y.startswith(("v_exp", "v_rcp")) else 1
            if y.startswith("global_"): vm.append(y)
        return cost
    def wait_frag(f_):
        if WLM: n = 39 - f_ + len(vm)
        elif f_ < 20: n = 19 - f_ + len(vm)
        else:
            pos = [k for k, y in enumerate(vm) if y.startswith("global_load")][f_ - 20]
            n = len(vm) - 1 - pos
        e("s_waitcnt vmcnt(%d)" % n)
    for n in range(AHEAD): rd(n)
    wdone = -1; credit = 0.0
    BUD = float(opt("bud", 3.0))
    for n in range(len(seq)):
        jn, wk, off, ks = seq[n]
        while any(dl <= n for _, dl, _ in side): emit(side.pop(0)[2])
        if wk > wdone:
            wait_frag(2 * wk + 3); wdone = wk + 1
        if n % 2 == 0:
            e("s_waitcnt lgkmcnt(%d)" % (nl[0] - 1 - rdq[min(n + 1, len(seq) - 1)]))
        r = RING[n % NR]
        credit = min(credit + BUD, BUD + 1)
        for T in range(2):
            a = acc_of(jn) + 4 * T; w = wreg(2 * wk + T)
            e("v_mfma_f32_16x16x32_bf16 v[%d:%d], v[%d:%d], v[%d:%d], %s" %
              (a, a + 3, w, w + 3, r, r + 3, "0" if ks == 0 else "v[%d:%d]" % (a, a + 3)))
            if T == 0 and n + AHEAD < len(seq): rd(n + AHEAD)
            used = 0
            while side and side[0][0] <= n and credit >= 1 and used < 1 + T:
                c_ = emit(side.pop(0)[2]); credit -= c_; used += c_
    stamp()
    while side and side[0][0] < ready(len(jobs) - 1): emit(side.pop(0)[2])
    e("s_nop 7")
    for _, _, x in side: emit(x)
    lab("L2_fin")
    if DIAG: e("s_waitcnt vmcnt(0)")
    dump_stamps("s[14:15]", "s17", 1 << 20, 140)
    if "enc" in OPT:
        k = int(OPT["enc"])
        if k < 0:
            e("s_mov_b64 exec, -1")
            e("v_mov_b32 v142, %d" % (WS_DBG + 4 * (-k - 1)))
            e("global_load_dword v143, v142, s[14:15]")
            e("s_waitcnt vmcnt(0)")
            e("v_readfirstlane_b32 s44, v143")
        else:
            e("s_mov_b32 s44, s%d" % (64 + 2 * k))
        lab("L2_spin")
        e("s_memrealtime s[46:47]")
        e("s_waitcnt lgkmcnt(0)")
        e("s_sub_u32 s46, s46, s44")
        e("s_cmp_lt_u32 s46, 6000")
        e("s_cbranch_scc1 L2_spin")
    lab("L2_end")
    e("s_endpgm")
    if CPF:
        out.append(".fill (28672 + 256 - (L2_end - %s_kernel)) / 4, 4, 0xbf810000" % NAME)

header()
k2()
out.append('.section .rodata,"a"')
kdesc(NAME + "_kernel", 256, 100 if DIAG else 64)
open(sys.argv[1], "w").write("\n".join(out) + "\n")
```
